```python
import torch

def _softmax(x, axis=-1):
    return torch.softmax(x, dim=axis)
def _gelu(x):
    return torch.nn.functional.gelu(x, approximate="tanh")
def _silu(x):
    return torch.nn.functional.silu(x)
def _sigmoid(x):
    return torch.sigmoid(x)
def _layernorm(x, axis=-1, eps=1e-5):
    m = x.mean(dim=axis, keepdim=True)
    v = x.var(dim=axis, keepdim=True, unbiased=False)
    return (x - m) / torch.sqrt(v + eps)
def _scatter_add(tgt, idx, src, axis=0):
    return tgt.clone().index_add_(axis, idx, src)
def _segment_sum(src, seg, n):
    out = torch.zeros((n,) + src.shape[1:], dtype=src.dtype)
    return out.index_add_(0, seg, src)
def _pad(x, pw):
    flat = tuple(v for pair in reversed(pw) for v in pair)
    return torch.nn.functional.pad(x, flat)

kernel_name = 'parallel_sum__linear_attn_block__glu_gated_reglu__prompt'

def setup_inputs():

    _w = (lambda a: (lambda t: t.to(torch.bfloat16) if t.is_floating_point() else t)(torch.as_tensor(a)))
    def _A_setup():
        B, S, D = 1, 2048, 512
        return {
            "x": _w((lambda *s: torch.randn(*s, dtype=torch.bfloat16) * 0.05)(B, S, D)),
            "wqkv": _w((lambda *s: torch.randn(*s, dtype=torch.bfloat16) * 0.05)(D, 3 * D)),
            "wo": _w((lambda *s: torch.randn(*s, dtype=torch.bfloat16) * 0.05)(D, D)),
        }
    _A_in = _A_setup()

    def _B_setup():
        B, S, D, F = 1, 2048, 512, 1792
        return {
            "x": _w((lambda *s: torch.randn(*s, dtype=torch.bfloat16) * 0.05)(B, S, D)),
            "W_gate": _w((lambda *s: torch.randn(*s, dtype=torch.bfloat16) * 0.2)(D, F) * (2.0 / D) ** 0.5),
            "W_up": _w((lambda *s: torch.randn(*s, dtype=torch.bfloat16) * 0.2)(D, F) * (2.0 / D) ** 0.5),
            "W_down": _w((lambda *s: torch.randn(*s, dtype=torch.bfloat16) * 0.2)(F, D) * (1.0 / F) ** 0.5),
        }
    _B_in = _B_setup()

    return {
        "A_x": _A_in["x"],
        "A_wqkv": _A_in["wqkv"],
        "A_wo": _A_in["wo"],
        "B_x": _B_in["x"],
        "B_W_gate": _B_in["W_gate"],
        "B_W_up": _B_in["W_up"],
        "B_W_down": _B_in["W_down"],
    }

def reference(A_x, A_wqkv, A_wo, B_x, B_W_gate, B_W_up, B_W_down):
    def _A_ref(x, wqkv, wo):
        B, S, D = x.shape
        H = 32; Dh = D // H
        qkv = (lambda x, *d: x.permute(*d))((x @ wqkv).reshape(B, S, 3, H, Dh), 2, 0, 3, 1, 4)
        q, k, v = qkv[0], qkv[1], qkv[2]
        phi = lambda t: torch.where(t > 0, t + 1, torch.exp(t)) + 1e-6
        pq, pk = phi(q), phi(k)
        kv = torch.einsum("bhsd,bhse->bhde", pk, v)
        z = torch.einsum("bhsd->bhd", pk)
        num = torch.einsum("bhqd,bhde->bhqe", pq, kv)
        den = torch.einsum("bhqd,bhd->bhq", pq, z)[..., None] + 1e-6
        o = num / den
        return (lambda x, *d: x.permute(*d))(o, 0, 2, 1, 3).reshape(B, S, D) @ wo

    def _B_ref(x, W_gate, W_up, W_down):
        gate = torch.einsum("bsd,df->bsf", x, W_gate)
        up = torch.einsum("bsd,df->bsf", x, W_up)
        gate = gate * (lambda x, dt: x.to(dt))(gate > 0, gate.dtype)
        h = gate * up
        return torch.einsum("bsf,fd->bsd", h, W_down)

    x = A_x
    xn = _layernorm(x, axis=-1)
    return x + _A_ref(xn, A_wqkv, A_wo) + _B_ref(xn, B_W_gate, B_W_up, B_W_down)
```

```python
NAME = 'parallel_sum__linear_attn_block__glu_gated_reglu__prompt'

HEADER_COMMENT = """; Kernarg layout for this problem (80 bytes, ptrs only, base s[0:1]):
"""

class Asm:
    def __init__(self):
        self.lines = []
        self.nlabel = 0
    def __call__(self, s):
        for l in s.split('\n'):
            self.lines.append('    ' + l.strip() if l.strip() and not l.strip().endswith(':') else l.strip())
    def label(self, name):
        self.lines.append(name + ':')
    def newlabel(self, prefix='L'):
        self.nlabel += 1
        return '%s_%d' % (prefix, self.nlabel)
    def comment(self, s):
        self.lines.append('    ; ' + s)
    def text(self):
        return '\n'.join(self.lines) + '\n'

def kernel_begin(name):
    return ('.globl %s\n.p2align 8\n.type %s,@function\n%s:\n' % (name, name, name))

def kernel_desc(name, vgpr=256, sgpr=102, accum=256):
    return ('''.p2align 6
.amdhsa_kernel %s
  .amdhsa_next_free_vgpr %d
  .amdhsa_next_free_sgpr %d
  .amdhsa_accum_offset %d
  .amdhsa_group_segment_fixed_size 0
  .amdhsa_kernarg_size 80
  .amdhsa_user_sgpr_count 2
  .amdhsa_user_sgpr_kernarg_segment_ptr 1
  .amdhsa_system_sgpr_workgroup_id_x 1
.end_amdhsa_kernel
''' % (name, vgpr, sgpr, accum))

def make_file(kernels, single=False):
    s = HEADER_COMMENT
    for k in kernels:
        g, b = k['grid'], k['block']
        if single:
            s += '; @launch grid=(%d,%d,%d) block=(%d,%d,%d) lds=%d\n' % (*g, *b, k['lds'])
        else:
            s += '; @launch kernel=%s grid=(%d,%d,%d) block=(%d,%d,%d) lds=%d\n' % (k['name'], *g, *b, k['lds'])
    s += '.amdgcn_target "amdgcn-amd-amdhsa--gfx950"\n.text\n'
    seen = []
    for k in kernels:
        if k['name'] in seen: continue
        seen.append(k['name'])
        s += kernel_begin(k['name']) + k['body'] + '    s_endpgm\n'
    s += '.section .rodata,"a"\n'
    seen = []
    for k in kernels:
        if k['name'] in seen: continue
        seen.append(k['name'])
        s += kernel_desc(k['name'], k.get('vgpr', 256), k.get('sgpr', 102), k.get('accum', 256))
    return s
```

```python
import re

class Tok:
    __slots__ = ('kind', 'seq', 'done')
    def __init__(self, kind, seq):
        self.kind = kind; self.seq = seq; self.done = False

class Prog:
    def __init__(self):
        self.ins = []
        self.vm_issued = 0
        self.vm_done = 0
        self.lg_issued = 0
        self.lg_done = 0
        self.nlab = 0
    def __call__(self, s):
        for l in s.split('\n'):
            l = l.strip()
            if l: self.ins.append(l)
    def label(self, n): self.ins.append(n + ':')
    def newlabel(self, p='L'):
        self.nlab += 1; return '%s%d' % (p, self.nlab)
    def c(self, s): self.ins.append('; ' + s)
    def vm(self, s):
        self(s); t = Tok('vm', self.vm_issued); self.vm_issued += 1; return t
    def lg(self, s):
        self(s); t = Tok('lg', self.lg_issued); self.lg_issued += 1; return t
    def need(self, toks):
        if isinstance(toks, Tok): toks = [toks]
        vmx = max([t.seq for t in toks if t is not None and t.kind == 'vm'], default=-1)
        lgx = max([t.seq for t in toks if t is not None and t.kind == 'lg'], default=-1)
        parts = []
        if vmx >= self.vm_done:
            n = min(self.vm_issued - 1 - vmx, 63)
            parts.append('vmcnt(%d)' % n); self.vm_done = max(self.vm_done, self.vm_issued - n)
        if lgx >= self.lg_done:
            n = min(self.lg_issued - 1 - lgx, 15)
            parts.append('lgkmcnt(%d)' % n); self.lg_done = max(self.lg_done, self.lg_issued - n)
        return ('s_waitcnt ' + ' '.join(parts)) if parts else None
    def wait(self, toks):
        w = self.need(toks)
        if w: self(w)
    def wait_all(self, vm=True, lg=True):
        parts = []
        if vm: parts.append('vmcnt(0)'); self.vm_done = self.vm_issued
        if lg: parts.append('lgkmcnt(0)'); self.lg_done = self.lg_issued
        self('s_waitcnt ' + ' '.join(parts))
    def text(self):
        out = []
        for l in self.ins:
            out.append(l if l.endswith(':') else '    ' + l)
        return '\n'.join(out) + '\n'

REG = re.compile(r'^(-|\|)?(abs\()?([vas])(\d+|\[(\d+):(\d+)\])\)?\|?$')
def regs_of(op):
    op = op.strip()
    if op in ('vcc',): return [('s', 106), ('s', 107)]
    if op in ('vcc_lo',): return [('s', 106)]
    if op in ('exec',): return [('s', 126), ('s', 127)]
    if op == 'm0': return [('s', 124)]
    m = REG.match(op)
    if not m: return []
    f = m.group(3)
    if m.group(5) is not None:
        return [(f, i) for i in range(int(m.group(5)), int(m.group(6)) + 1)]
    return [(f, int(m.group(4)))]

TRANS = ('v_exp_f32', 'v_log_f32', 'v_rcp_f32', 'v_rsq_f32', 'v_sqrt_f32', 'v_sin_f32', 'v_cos_f32')
def parse(line):
    line = line.split(';')[0].strip()
    if not line or line.endswith(':') or line.startswith('.'): return None
    sp = line.split(None, 1)
    mn = sp[0]
    rest = sp[1] if len(sp) > 1 else ''
    ops = [o.strip() for o in re.split(r',(?![^\[]*\])', rest)] if rest else []
    mods = ''
    if ops:
        last = ops[-1].split()
        if last:
            ops[-1] = last[0]; mods = ' '.join(last[1:])
    d = dict(mn=mn, ops=ops, mods=mods, w=[], r=[], cls='other', text=line)
    R = lambda i: regs_of(ops[i]) if i < len(ops) else []
    allr = lambda s: [x for i in range(s, len(ops)) for x in R(i)]
    if mn.startswith('v_mfma'):
        d['cls'] = 'mfma'; d['w'] = R(0); d['a'] = R(1); d['b'] = R(2); d['cc'] = R(3); d['r'] = d['a'] + d['b'] + d['cc']
        d['passes'] = 8 if '32x32' in mn else 4
    elif mn.startswith('v_cmp'):
        d['cls'] = 'valu'; d['w'] = R(0); d['r'] = allr(1)
        if mn.startswith('v_cmpx'): d['w'] += regs_of('exec')
    elif mn.startswith('v_readfirstlane') or mn.startswith('v_readlane'):
        d['cls'] = 'valu'; d['w'] = R(0); d['r'] = allr(1); d['rl'] = True
    elif mn.startswith('v_permlane'):
        d['cls'] = 'valu'; d['w'] = R(0) + R(1); d['r'] = R(0) + R(1); d['perm'] = True
    elif mn.startswith('v_'):
        d['cls'] = 'valu'; d['w'] = R(0); d['r'] = allr(1)
        if mn.startswith(('v_add_co', 'v_sub_co', 'v_addc_co', 'v_subb_co', 'v_subrev_co')): d['w'] += R(1); d['r'] = allr(2)
        if mn.startswith(('v_fmac', 'v_dot2c', 'v_mac')): d['r'] += R(0)
        if mn.startswith('v_cndmask') and len(ops) == 3: d['r'] += regs_of('vcc')
        if mn.split('_e')[0] in TRANS or mn in TRANS: d['trans'] = True
        if 'dpp' in mn or 'row_' in mods or 'quad_perm' in mods: d['dpp'] = True
    elif mn.startswith('ds_read') or mn.startswith('ds_bpermute') or mn.startswith('ds_swizzle'):
        d['cls'] = 'ds'; d['w'] = R(0); d['r'] = allr(1)
    elif mn.startswith('ds_'):
        d['cls'] = 'ds'; d['r'] = allr(0)
    elif mn.startswith(('buffer_load', 'global_load')):
        d['cls'] = 'vmem'
        if 'lds' in mods.split() or 'lds' in mn:
            d['r'] = allr(0) + regs_of('m0'); d['ldsdma'] = True
        else:
            d['w'] = R(0); d['r'] = allr(1)
    elif mn.startswith(('buffer_store', 'global_store')):
        d['cls'] = 'vmem'; d['r'] = allr(0); d['store'] = True
        d['wide'] = ('x3' in mn or 'x4' in mn)
        d['data'] = R(0) if mn.startswith('buffer') else R(1)
    elif mn.startswith(('buffer_atomic', 'global_atomic')):
        d['cls'] = 'vmem'; d['r'] = allr(0)
        if 'sc0' in mods: d['w'] = R(0)
    elif mn.startswith(('buffer_', 'global_')):
        d['cls'] = 'vmem'
    elif mn.startswith('s_nop'):
        d['cls'] = 'nop'; d['n'] = int(ops[0], 0) + 1
    elif mn.startswith(('s_load', 's_memtime', 's_memrealtime', 's_getreg', 's_getpc')):
        d['cls'] = 'salu'; d['w'] = R(0); d['r'] = allr(1)
    elif mn.startswith('s_cmp') or mn.startswith('s_cbranch') or mn.startswith('s_branch') or mn in ('s_barrier', 's_waitcnt', 's_endpgm', 's_sleep', 's_setprio'):
        d['cls'] = 'salu'; d['r'] = allr(0)
    elif mn.startswith('s_'):
        d['cls'] = 'salu'; d['w'] = R(0); d['r'] = allr(1)
        if 'saveexec' in mn: d['w'] += regs_of('exec')
    return d

def check_hazards(lines, name=''):
    ins = [p for p in (parse(l) for l in lines) if p]
    probs = []
    pos = 0
    hist = []
    for d in ins:
        for (p, e) in reversed(hist):
            dist = pos - p - e.get('n', 1)
            if dist > 20: break
            ew = set(e['w']); dr = set(d['r']); dw = set(d['w'])
            def bad(need, why):
                if dist < need: probs.append('%s: need %d have %d (%s): [%s] -> [%s]' % (name, need, dist, why, e['text'], d['text']))
            if e['cls'] == 'valu':
                vw = {x for x in ew if x[0] in 'va'}
                sw = {x for x in ew if x[0] == 's'}
                if d['cls'] == 'mfma' and vw & dr: bad(2, 'valu->mfma')
                if d.get('rl') and vw & dr: bad(1, 'valu->readlane')
                if d.get('perm') and vw & dr: bad(2, 'valu->permlane')
                if d.get('dpp') and vw & dr: bad(2, 'valu->dpp')
                if e.get('trans') and d['cls'] in ('valu', 'mfma') and not d.get('trans') and vw & dr: bad(1, 'trans->use')
                if e.get('trans') and d['cls'] in ('vmem', 'ds') and vw & dr: bad(1, 'trans->mem')
                if sw & dr:
                    if d['cls'] == 'valu': bad(4 if d.get('rl') else 2, 'valu sgpr->valu')
                    if d['cls'] == 'vmem': bad(5, 'valu sgpr->vmem')
                    if d['cls'] == 'salu': bad(1, 'valu sgpr->salu (my pad)')
                    if d['cls'] == 'mfma': bad(4, 'valu exec->mfma')
                if (('s', 126) in sw) and d['cls'] == 'mfma': bad(4, 'valu exec->mfma')
            if e['cls'] == 'mfma':
                n = 12 if e['passes'] == 8 else 8
                if d['cls'] == 'mfma':
                    if ew & (set(d['a']) | set(d['b'])): bad(n, 'mfma D->A/B')
                    if ew & set(d['cc']) and d['cc'] != e['w']: bad(n - 2, 'mfma D->C overlap')
                    if ew & dw and d['w'] != e['w']: bad(n, 'mfma D->D overlap')
                elif d['cls'] in ('valu', 'vmem', 'ds'):
                    if ew & (dr | dw): bad(n, 'mfma D->valu/mem')
                    if d['cls'] == 'valu' and set(e['cc']) & dw: bad(7 if e['passes'] == 8 else 3, 'mfma C WAR')
            if e['cls'] == 'salu' and ('s', 124) in ew and d.get('ldsdma'): bad(1, 'm0->ldsdma')
            if e.get('store') and e.get('wide') and d['cls'] == 'valu' and set(e['data']) & dw: bad(2, 'store data WAR')
            if e.get('store') and e.get('wide') and d['cls'] in ('ds', 'vmem') and set(e['data']) & dw: bad(1, 'store data WAR(mem)')
        hist.append((pos, d))
        pos += d.get('n', 1)
        if len(hist) > 64: hist.pop(0)
    return probs

def maxregs(lines):
    mx = {'v': -1, 'a': -1, 's': -1}
    for l in lines:
        p = parse(l)
        if not p: continue
        for o in p['ops']:
            for (f, i) in regs_of(o):
                if f == 's' and i >= 106: continue
                mx[f] = max(mx[f], i)
    return mx


def fix_hazards(lines, name=''):
    out = []
    total = 0
    hist = []; pos = 0
    for l in lines:
        d = parse(l)
        if d is None:
            out.append(l); continue
        need = 0
        for (p, e) in reversed(hist):
            dist = pos - p - e.get('n', 1)
            if dist > 20: break
            pr = check_pair(e, d)
            if pr > dist: need = max(need, pr - dist)
        if need:
            total += need
            k = need
            while k > 0:
                n = min(k, 16); out.append('s_nop %d' % (n - 1)); hist.append((pos, dict(cls='nop', n=n, w=[], r=[], text='s_nop'))); pos += n; k -= n
        out.append(l)
        hist.append((pos, d)); pos += d.get('n', 1)
        if len(hist) > 64: hist = hist[-64:]
    return out, total

def check_pair(e, d):
    need = 0
    ew = set(e['w']); dr = set(d['r']); dw = set(d['w'])
    if e['cls'] == 'valu':
        vw = {x for x in ew if x[0] in 'va'}
        sw = {x for x in ew if x[0] == 's'}
        if d['cls'] == 'mfma' and vw & dr: need = max(need, 2)
        if d.get('rl') and vw & dr: need = max(need, 1)
        if d.get('perm') and vw & dr: need = max(need, 2)
        if d.get('dpp') and vw & dr: need = max(need, 2)
        if e.get('trans') and d['cls'] in ('valu', 'mfma', 'vmem', 'ds') and not d.get('trans') and vw & dr: need = max(need, 1)
        if sw & dr:
            if d['cls'] == 'valu': need = max(need, 4 if d.get('rl') else 2)
            if d['cls'] == 'vmem': need = max(need, 5)
            if d['cls'] == 'salu': need = max(need, 1)
            if d['cls'] == 'mfma': need = max(need, 4)
        if (('s', 126) in sw) and d['cls'] == 'mfma': need = max(need, 4)
    if e['cls'] == 'mfma':
        n = 12 if e['passes'] == 8 else 8
        if d['cls'] == 'mfma':
            if ew & (set(d['a']) | set(d['b'])): need = max(need, n)
            if ew & set(d['cc']) and d['cc'] != e['w']: need = max(need, n - 2)
            if ew & dw and d['w'] != e['w']: need = max(need, n)
        elif d['cls'] in ('valu', 'vmem', 'ds'):
            if ew & (dr | dw): need = max(need, n)
            if d['cls'] == 'valu' and set(e['cc']) & dw: need = max(need, 7 if e['passes'] == 8 else 3)
    if e['cls'] == 'salu' and ('s', 124) in ew and d.get('ldsdma'): need = max(need, 1)
    if e.get('store') and e.get('wide') and d['cls'] == 'valu' and set(e['data']) & dw: need = max(need, 2)
    if e.get('store') and e.get('wide') and d['cls'] in ('ds', 'vmem') and set(e['data']) & dw: need = max(need, 1)
    return need

def check_waits(lines, name=''):
    vmq, lgq = [], []
    probs = []
    for l in lines:
        d = parse(l)
        if d is None: continue
        if d['mn'] == 's_waitcnt':
            m = re.search(r'vmcnt\((\d+)\)', d['text'])
            if m:
                n = int(m.group(1)); vmq = vmq[len(vmq) - n:] if n < len(vmq) else vmq
                if n == 0: vmq = []
            m = re.search(r'lgkmcnt\((\d+)\)', d['text'])
            if m:
                n = int(m.group(1))
                if any(x[2] for x in lgq) and n != 0: pass
                else:
                    lgq = lgq[len(lgq) - n:] if n < len(lgq) else lgq
                    if n == 0: lgq = []
            continue
        use = set(d['r']) | set(d['w'])
        for q in (vmq, lgq):
            for e in q:
                if e[0] & use: probs.append('%s: [%s] touches %s pending from [%s]' % (name, d['text'], sorted(e[0] & use)[:2], e[1]))
        if d['cls'] == 'vmem': vmq.append((set(d['w']), d['text'], False))
        elif d['cls'] == 'ds': lgq.append((set(d['w']), d['text'], False))
        elif d['mn'].startswith(('s_load', 's_memtime', 's_memrealtime')): lgq.append((set(d['w']), d['text'], True))
    return probs
```

```python
from fw import *

H_OFF, PQ_OFF, KVP_OFF, KVZ_OFF = 0x0, 0x800000, 0xA00000, 0xB00000
WS_BYTES = 268435456
SPARE = 131072

S_X, S_WQ, S_WG, S_WU, S_WS = 4, 8, 12, 16, 20
sW, sI, sMEM, sQD, sWB = 24, 25, 26, 27, 28
sMASK, sLOG2E, sEPS, sONES = 29, 30, 31, 32
sX = [33, 34, 35, 36]
sL = [37, 38, 39, 40, 41, 42]
sG2 = [43, 44]
sHST1, sHST1b, sHST2, sPQ, sKVP = 45, 46, 47, 48, 49
sT0, sT1, sT2 = 50, 51, 52
sMLO, sMHI = 54, 56
def srd(b): return 's[%d:%d]' % (b, b + 3)

vL = 1
vX0, vX1 = 2, 3
vWA, vWB, vWC, vWD = 4, 5, 6, 7
vST = 8
vRS, vNM = 9, 10
vTR = 12
vT = 24
ACC2 = 64
XF = 128
def xf(s): return 'v[%d:%d]' % (XF + 4 * s, XF + 4 * s + 3)
ACC1 = 0
WF = 96
EPSB = 144

def slot_base_const(S):
    T = S >> 2; r = S & 3
    if T == 0: return SPARE + 6144 * r
    return 32768 * r + 6144 * ((T - 1) % 5)

def prologue(p):
    p('s_load_dwordx4 s[60:63], s[0:1], 0')
    p('s_load_dwordx4 s[64:67], s[0:1], 32')
    p('s_load_dwordx2 s[68:69], s[0:1], 72')
    p('v_and_b32 v%d, 63, v0' % vL)
    p('v_lshrrev_b32 v%d, 6, v0' % vT)
    p('s_and_b32 s%d, s2, 7' % sT0)
    p('s_lshr_b32 s%d, s2, 3' % sT1)
    p('v_readfirstlane_b32 s%d, v%d' % (sW, vT))
    p('s_lshr_b32 s%d, s%d, 1' % (sQD, sT0))
    p('s_and_b32 s%d, s%d, 1' % (sT0, sT0)); p('s_lshl_b32 s%d, s%d, 3' % (sT0, sT0))
    p('s_and_b32 s%d, s%d, 7' % (sI, sT1)); p('s_add_u32 s%d, s%d, s%d' % (sI, sI, sT0))
    p('s_lshr_b32 s%d, s%d, 3' % (sMEM, sT1))
    p('s_mov_b32 s%d, 0xffff0000' % sMASK)
    p('s_mov_b32 s%d, 0x3fb8aa3b' % sLOG2E)
    p('s_mov_b32 s%d, 0x358637bd' % sEPS)
    p('s_mov_b32 s%d, 0x3f803f80' % sONES)
    p('s_mov_b32 s%d, 0x0000ffff' % sMLO); p('s_mov_b32 s%d, 0x0000ffff' % (sMLO + 1))
    p('s_mov_b32 s%d, 0xffff0000' % sMHI); p('s_mov_b32 s%d, 0xffff0000' % (sMHI + 1))
    p('s_lshl_b32 s%d, s%d, 15' % (sWB, sW))
    a, b, c = vT, vT + 1, vT + 2
    p('v_lshrrev_b32 v%d, 3, v%d' % (a, vL)); p('v_lshlrev_b32 v%d, 10, v%d' % (a, a))
    p('v_and_b32 v%d, 7, v%d' % (b, vL)); p('v_lshrrev_b32 v%d, 4, v%d' % (c, vL)); p('v_xor_b32 v%d, v%d, v%d' % (b, b, c))
    p('v_lshl_add_u32 v%d, v%d, 4, v%d' % (vX0, b, a))
    p('v_xor_b32 v%d, 64, v%d' % (vX1, vX0))
    p('v_lshlrev_b32 v%d, 4, v%d' % (vST, vL))
    p('s_lshl_b32 s%d, s%d, 2' % (sT0, sI)); p('s_add_u32 s%d, s%d, s%d' % (sT0, sT0, sW))
    p('s_lshl_b32 s%d, s%d, 15' % (sX[0], sT0))
    for q in range(1, 4): p('s_add_u32 s%d, s%d, %d' % (sX[q], sX[0], 7168 * q))
    p('s_mul_i32 s%d, s%d, %d' % (sHST1, sT0, 112 * 1024))
    p('s_lshl_b32 s%d, s%d, 15' % (sPQ, sT0)); p('s_add_u32 s%d, s%d, 0x%x' % (sPQ, sPQ, PQ_OFF))
    p('s_waitcnt lgkmcnt(0)')
    for base, src, n in ((S_X, 60, 2048 * 1024), (S_WQ, 62, 512 * 3072), (S_WG, 64, 512 * 3584), (S_WU, 66, 512 * 3584), (S_WS, 68, WS_BYTES)):
        p('s_mov_b32 s%d, s%d' % (base, src)); p('s_mov_b32 s%d, s%d' % (base + 1, src + 1))
        p('s_mov_b32 s%d, 0x%x' % (base + 2, n)); p('s_mov_b32 s%d, 0x00020000' % (base + 3))

def issue_x(p):
    toks = []
    for c in range(8):
        p('s_add_u32 m0, s%d, %d' % (sWB, 4096 * c))
        t = []
        for q in range(4):
            if q == 0: p('s_nop 0')
            t.append(p.vm('buffer_load_dwordx4 v%d, %s, s%d offen offset:%d lds' % ((vX0, vX1)[q & 1], srd(S_X), sX[q], 1024 * q)))
        toks.append(t)
        if c < 7:
            p('v_add_u32 v%d, 128, v%d' % (vX0, vX0)); p('v_add_u32 v%d, 128, v%d' % (vX1, vX1))
    return toks

def lane_w_voffs(p, role):
    a, b, c = vT, vT + 1, vT + 2
    p('v_lshrrev_b32 v%d, 3, v%d' % (a, vL))
    p('v_lshrrev_b32 v%d, 2, v%d' % (c, vL)); p('v_and_b32 v%d, 4, v%d' % (c, c))
    p('v_and_b32 v%d, 7, v%d' % (b, vL)); p('v_xor_b32 v%d, v%d, v%d' % (b, b, c)); p('v_lshlrev_b32 v%d, 4, v%d' % (b, b))
    p('s_movk_i32 s%d, 3072' % sT1); p('s_movk_i32 s%d, 3584' % sT2)
    if role == 'AB':
        p('v_mad_u32_u24 v%d, v%d, s%d, v%d' % (vWA, a, sT1, b))
        p('v_mad_u32_u24 v%d, v%d, s%d, v%d' % (vWB, a, sT2, b))
        p('v_xor_b32 v%d, 32, v%d' % (vWC, vWB))
    else:
        p('v_mad_u32_u24 v%d, v%d, s%d, v%d' % (vWA, a, sT2, b))
        p('v_xor_b32 v%d, 32, v%d' % (vWB, vWA))
        p('v_lshrrev_b32 v%d, 2, v%d' % (a, vL)); p('v_and_b32 v%d, 3, v%d' % (b, vL)); p('v_lshlrev_b32 v%d, 4, v%d' % (b, b))
        p('v_mad_u32_u24 v%d, v%d, s%d, v%d' % (vWC, a, sT2, b))
        p('v_xor_b32 v%d, 32, v%d' % (vWD, vWC))

def lane_tr_addrs(p, role, tmpbase):
    t0, t1, t2, t3, t4 = vT, vT + 1, vT + 2, vT + 3, vT + 4
    p('v_lshrrev_b32 v%d, 5, v%d' % (t0, vL)); p('v_lshlrev_b32 v%d, 3, v%d' % (t0, t0))
    p('v_bfe_u32 v%d, v%d, 2, 2' % (t1, vL)); p('v_add_u32 v%d, v%d, v%d' % (t0, t0, t1))
    p('v_bfe_u32 v%d, v%d, 4, 1' % (t1, vL))
    p('v_bfe_u32 v%d, v%d, 1, 1' % (t2, vL))
    p('v_bfe_u32 v%d, v%d, 3, 1' % (t3, vL))
    p('v_and_b32 v%d, 1, v%d' % (t4, vL)); p('v_lshlrev_b32 v%d, 3, v%d' % (t4, t4))
    variants = {}
    names = (['q0', 'q1', 'm0', 'm1', 'm2', 'm3'] if role == 'AB' else ['m0', 'm1', 'm2', 'm3', 'h0', 'h1'])
    u0, u1 = vT + 5, vT + 6
    for vi, nm in enumerate(names):
        r0 = vTR + 2 * vi
        if nm[0] == 'q':
            th = int(nm[1])
            p('v_lshl_add_u32 v%d, v%d, 1, v%d' % (u0, t1, t2))
            p('v_lshlrev_b32 v%d, 2, v%d' % (u1, t3)); p('v_xor_b32 v%d, %d, v%d' % (u1, 4 * th, u1)); p('v_add_u32 v%d, v%d, v%d' % (u0, u0, u1))
            p('v_lshl_add_u32 v%d, v%d, 4, v%d' % (u0, u0, t4))
            p('v_lshl_add_u32 v%d, v%d, 7, v%d' % (r0, t0, u0))
        elif nm[0] == 'm':
            tt = int(nm[1])
            p('v_add_u32 v%d, %d, v%d' % (u0, 2 * tt, t2))
            p('v_lshlrev_b32 v%d, 2, v%d' % (u1, t3)); p('v_xor_b32 v%d, v%d, v%d' % (u0, u0, u1))
            p('v_lshlrev_b32 v%d, 1, v%d' % (u1, t1)); p('v_xor_b32 v%d, v%d, v%d' % (u0, u0, u1))
            p('v_lshl_add_u32 v%d, v%d, 4, v%d' % (u0, u0, t4))
            p('v_lshl_add_u32 v%d, v%d, 7, v%d' % (u0, t0, u0))
            p('v_lshl_add_u32 v%d, v%d, 11, v%d' % (r0, t1, u0))
        else:
            tt = int(nm[1])
            p('v_add_u32 v%d, %d, v%d' % (u0, 2 * tt, t2))
            p('v_lshlrev_b32 v%d, 1, v%d' % (u1, t1)); p('v_xor_b32 v%d, v%d, v%d' % (u0, u0, u1))
            p('v_lshl_add_u32 v%d, v%d, 4, v%d' % (u0, u0, t4))
            p('v_lshl_add_u32 v%d, v%d, 6, v%d' % (u0, t0, u0))
            p('v_lshl_add_u32 v%d, v%d, 10, v%d' % (r0, t1, u0))
        p('v_add_u32 v%d, 0x10000, v%d' % (r0 + 1, r0))
        p('v_add_u32 v%d, 0x20000, v%d' % (tmpbase + vi, r0))
        variants[nm] = {0: r0, 1: r0 + 1, 2: tmpbase + vi}
    return variants

def role_setup(p, role):
    p('s_mul_i32 s%d, s%d, %d' % (sT1, sW, 16 * 3072)); p('s_mul_i32 s%d, s%d, %d' % (sT2, sW, 16 * 3584))
    if role == 'AB':
        p('s_lshl_b32 s%d, s%d, 1' % (sT0, sQD)); p('s_add_u32 s%d, s%d, s%d' % (sT0, sT0, sMEM))
        p('s_lshl_b32 s%d, s%d, 12' % (sKVP, sT0)); p('s_add_u32 s%d, s%d, s%d' % (sPQ, sPQ, sKVP))
        p('s_lshl_b32 s%d, s%d, 2' % (sKVP, sT0)); p('s_add_u32 s%d, s%d, s%d' % (sKVP, sKVP, sW)); p('s_lshl_b32 s%d, s%d, 15' % (sKVP, sKVP))
        p('s_lshl_b32 s%d, s%d, 11' % (sHST2, sI)); p('s_add_u32 s%d, s%d, s%d' % (sKVP, sKVP, sHST2)); p('s_add_u32 s%d, s%d, 0x%x' % (sKVP, sKVP, KVP_OFF))
        p('s_lshl_b32 s%d, s%d, 7' % (sT0, sT0)); p('s_add_u32 s%d, s%d, s%d' % (sT0, sT0, sT1))
        for li, col in enumerate((1024, 2048, 0)):
            p('s_add_u32 s%d, s%d, %d' % (sL[2 * li], sT0, col)); p('s_add_u32 s%d, s%d, %d' % (sL[2 * li + 1], sT0, col + 8 * 3072 - 1024))
        p('s_mul_i32 s%d, s%d, 7' % (sT0, sQD)); p('s_add_u32 s%d, s%d, s%d' % (sT0, sT0, sMEM))
        p('s_lshl_b32 s%d, s%d, 12' % (sHST2, sT0)); p('s_add_u32 s%d, s%d, s%d' % (sHST2, sHST2, sHST1))
        p('s_lshl_b32 s%d, s%d, 7' % (sT0, sT0)); p('s_add_u32 s%d, s%d, s%d' % (sG2[0], sT0, sT2)); p('s_add_u32 s%d, s%d, %d' % (sG2[1], sG2[0], 8 * 3584 - 1024))
    else:
        p('s_mul_i32 s%d, s%d, 7' % (sT0, sQD))
        p('s_sub_u32 s%d, s%d, 2' % (sT1, sMEM))
        p('s_mul_i32 s%d, s%d, 3' % (sL[5], sT1)); p('s_add_u32 s%d, s%d, s%d' % (sL[5], sL[5], sT0)); p('s_add_u32 s%d, s%d, 2' % (sL[5], sL[5]))
        p('s_add_u32 s%d, s%d, 4' % (sL[4], sT0))
        p('s_lshl_b32 s%d, s%d, 12' % (sHST1b, sL[4])); p('s_lshl_b32 s%d, s%d, 11' % (sL[3], sT1)); p('s_add_u32 s%d, s%d, s%d' % (sHST1b, sHST1b, sL[3]))
        p('s_add_u32 s%d, s%d, s%d' % (sHST1b, sHST1b, sHST1))
        p('s_lshl_b32 s%d, s%d, 12' % (sL[3], sL[5])); p('s_add_u32 s%d, s%d, 4096' % (sHST2, sL[3])); p('s_add_u32 s%d, s%d, s%d' % (sHST2, sHST2, sHST1))
        p('s_add_u32 s%d, s%d, s%d' % (sHST1, sHST1, sL[3]))
        p('s_lshl_b32 s%d, s%d, 7' % (sL[2], sL[4])); p('s_lshl_b32 s%d, s%d, 6' % (sT1, sT1)); p('s_add_u32 s%d, s%d, s%d' % (sL[2], sL[2], sT1))
        p('s_add_u32 s%d, s%d, s%d' % (sL[2], sL[2], sT2))
        p('s_lshl_b32 s%d, s%d, 7' % (sL[0], sL[5])); p('s_add_u32 s%d, s%d, s%d' % (sL[0], sL[0], sT2)); p('s_add_u32 s%d, s%d, %d' % (sL[1], sL[0], 8 * 3584 - 1024))
        p('s_add_u32 s%d, s%d, 128' % (sG2[0], sL[0])); p('s_add_u32 s%d, s%d, 128' % (sG2[1], sL[1]))

def dma_stage_items(p, role, T):
    toks = []
    items = []
    base = (SPARE if T == 0 else 6144 * ((T - 1) % 5))
    def setm0(off):
        if T == 0: return lambda: p('s_add_u32 m0, s%d, %d' % (sT0, off))
        return lambda: p('s_add_u32 m0, s%d, %d' % (sWB, base + off))
    def ld(v, s, so, off):
        return lambda: toks.append(p.vm('buffer_load_dwordx4 v%d, %s, s%d offen %slds' % (v, srd(s), so, ('offset:%d ' % off) if off else '')))
    def pair2(f, g):
        return lambda: (f(), p('s_nop 0'), g())
    if T < 8:
        if role == 'AB':
            for li in range(3):
                items += [pair2(setm0(2048 * li), ld(vWA, S_WQ, sL[2 * li], 0)), ld(vWA, S_WQ, sL[2 * li + 1], 1024)]
            items.append(lambda: p('v_add_u32 v%d, %d, v%d' % (vWA, 64 * 3072, vWA)))
        else:
            items += [pair2(setm0(0), ld(vWA, S_WG, sL[0], 0)), ld(vWA, S_WG, sL[1], 1024)]
            items += [pair2(setm0(2048), ld(vWB, S_WU, sL[0], 0)), ld(vWB, S_WU, sL[1], 1024)]
            items += [pair2(setm0(4096), ld(vWC, S_WG, sL[2], 0))]
            items += [pair2(setm0(5120), ld(vWD, S_WU, sL[2], 0))]
            d = 64 * 3584 if T < 7 else -7 * 64 * 3584
            for v in (vWA, vWB): items.append(lambda v=v, d=d: p('v_add_u32 v%d, 0x%x, v%d' % (v, d & 0xffffffff, v)))
            if T < 7:
                for v in (vWC, vWD): items.append(lambda v=v: p('v_add_u32 v%d, %d, v%d' % (v, 64 * 3584, v)))
    else:
        g, u = (vWB, vWC) if role == 'AB' else (vWA, vWB)
        items += [pair2(setm0(0), ld(g, S_WG, sG2[0], 0)), ld(g, S_WG, sG2[1], 1024)]
        items += [pair2(setm0(2048), ld(u, S_WU, sG2[0], 0)), ld(u, S_WU, sG2[1], 1024)]
        if T < 15:
            for v in (g, u): items.append(lambda v=v: p('v_add_u32 v%d, %d, v%d' % (v, 64 * 3584, v)))
    return items, toks

def tiles_of(role, grp):
    if grp == 2: return [('m%d' % t, 0, 512, False) for t in range(4)]
    if role == 'AB':
        return [('q0', 0, 512, True), ('q1', 0, 512, True), ('q0', 2048, 512, True), ('q1', 2048, 512, True), ('q0', 4096, 512, False), ('q1', 4096, 512, False)]
    return [('m%d' % t, 0, 512, False) for t in range(4)] + [('h0', 4096, 256, False), ('h1', 4096, 256, False)]

def wf(S, j, G):
    b = WF + (S & 1) * 4 * G + 4 * j
    return b

def tr_items(p, role, S, variants, ftok):
    grp = 1 if S < 32 else 2
    tl = tiles_of(role, grp); G = len(tl)
    items = []
    blk = slot_base_const(S)
    for j, (var, lo, rds, sw) in enumerate(tl):
        ftok[(S, j)] = []
        for rd in range(2):
            const = blk + lo + rd * rds
            win, off = const >> 16, const & 0xffff
            b = wf(S, j, G) + 2 * rd
            def f(b=b, reg=variants[var][win], off=off, key=(S, j)):
                ftok[key].append(p.lg('ds_read_b64_tr_b16 a[%d:%d], v%d offset:%d' % (b, b + 1, reg, off)))
            items.append(f)
    return items

def norm_items(p, s, t):
    it = []
    for pr in range(2):
        r0, r1 = XF + 4 * s + 2 * pr, XF + 4 * s + 2 * pr + 1
        a0, a1, b0, b1 = t + 4 * pr, t + 4 * pr + 1, t + 4 * pr + 2, t + 4 * pr + 3
        seq = ['v_lshlrev_b32 v%d, 16, v%d' % (a0, r0), 'v_and_b32 v%d, s%d, v%d' % (a1, sMASK, r0),
               'v_lshlrev_b32 v%d, 16, v%d' % (b0, r1), 'v_and_b32 v%d, s%d, v%d' % (b1, sMASK, r1),
               'v_fma_f32 v%d, v%d, v%d, v%d' % (a0, a0, vRS, vNM), 'v_fma_f32 v%d, v%d, v%d, v%d' % (a1, a1, vRS, vNM),
               'v_fma_f32 v%d, v%d, v%d, v%d' % (b0, b0, vRS, vNM), 'v_fma_f32 v%d, v%d, v%d, v%d' % (b1, b1, vRS, vNM),
               'v_cvt_pk_bf16_f32 v%d, v%d, v%d' % (r0, a0, a1), 'v_cvt_pk_bf16_f32 v%d, v%d, v%d' % (r1, b0, b1)]
        it += [lambda x=x: p(x) for x in seq]
    return it

def T(p, s): return lambda: p(s)

def mlp_epi_items(p, acc, in_agpr, t, soff, off, stflags=''):
    it = []
    if in_agpr:
        for half in range(2):
            rr = range(4 * half, 4 * half + 4)
            for r in rr: it.append(T(p, 'v_accvgpr_read_b32 v%d, a%d' % (t + (r & 3), acc + r)))
            for r in rr: it.append(T(p, 'v_accvgpr_read_b32 v%d, a%d' % (t + 4 + (r & 3), acc + 8 + r)))
            for r in rr: it.append(T(p, 'v_max_f32 v%d, 0, v%d' % (t + (r & 3), t + (r & 3))))
            for r in rr: it.append(T(p, 'v_mul_f32 v%d, v%d, v%d' % (t + (r & 3), t + (r & 3), t + 4 + (r & 3))))
            for q in range(2): it.append(T(p, 'v_cvt_pk_bf16_f32 v%d, v%d, v%d' % (t + 8 + 2 * half + q, t + 2 * q, t + 2 * q + 1)))
    else:
        for r in range(8): it.append(T(p, 'v_max_f32 v%d, 0, v%d' % (acc + r, acc + r)))
        for r in range(8): it.append(T(p, 'v_mul_f32 v%d, v%d, v%d' % (acc + r, acc + r, acc + 8 + r)))
        for q in range(4): it.append(T(p, 'v_cvt_pk_bf16_f32 v%d, v%d, v%d' % (t + 8 + q, acc + 2 * q, acc + 2 * q + 1)))
    it.append(lambda: p.vm('buffer_store_dwordx4 v[%d:%d], v%d, %s, s%d offen %s%s' % (t + 8, t + 11, vST, srd(S_WS), soff, ('offset:%d' % off) if off else '', stflags)))
    return it

def phi_items(p, acc, t, dst):
    it = []
    for half in range(2):
        rr = list(range(4 * half, 4 * half + 4))
        for r in rr: it.append(T(p, 'v_accvgpr_read_b32 v%d, a%d' % (t + (r & 3), acc + r)))
        for r in rr: it.append(T(p, 'v_mul_f32 v%d, s%d, v%d' % (t + 4 + (r & 3), sLOG2E, t + (r & 3))))
        for r in rr: it.append(T(p, 'v_exp_f32 v%d, v%d clamp' % (t + 4 + (r & 3), t + 4 + (r & 3))))
        for r in rr: it.append(T(p, 'v_max_f32 v%d, s%d, v%d' % (t + (r & 3), sEPS, t + (r & 3))))
        for r in rr: it.append(T(p, 'v_add_f32 v%d, v%d, v%d' % (t + (r & 3), t + (r & 3), t + 4 + (r & 3))))
        for q in range(2): it.append(T(p, 'v_cvt_pk_bf16_f32 v%d, v%d, v%d' % (dst + 2 * half + q, t + 2 * q, t + 2 * q + 1)))
    return it

def pack_items(p, acc, t, dst):
    it = []
    for half in range(2):
        rr = list(range(4 * half, 4 * half + 4))
        for r in rr: it.append(T(p, 'v_accvgpr_read_b32 v%d, a%d' % (t + (r & 3), acc + r)))
        for q in range(2): it.append(T(p, 'v_cvt_pk_bf16_f32 v%d, v%d, v%d' % (dst + 2 * half + q, t + 2 * q, t + 2 * q + 1)))
    return it

def epilogue1_items(p, role, stflags=''):
    t = vT + 8
    pre, post = [], []
    if role == 'CD':
        for j in range(6):
            soff, off = (sHST1, 1024 * j) if j < 4 else (sHST1b, 1024 * (j - 4))
            tt = t + (j & 1) * 12
            pre += mlp_epi_items(p, ACC1 + 16 * j, True, tt, soff, off, stflags)
        return pre, post
    PK = vT + 16; VV = vT + 24; BS = vT + 32
    KVD = ACC1
    for pr in range(2):
        pre += phi_items(p, ACC1 + 16 * pr, t, PK) + phi_items(p, ACC1 + 16 * pr + 8, t, PK + 4)
        pre += pack_items(p, ACC1 + 32 + 16 * pr, t, VV) + pack_items(p, ACC1 + 32 + 16 * pr + 8, t, VV + 4)
        da = ACC1 + 16 * pr
        db = ACC1 + 32 + 16 * pr
        for hb, (d, msk) in enumerate(((da, sMLO), (db, sMHI))):
            for r in range(8):
                pre.append(T(p, 'v_cndmask_b32 v%d, v%d, v%d, s[%d:%d]' % (BS + r, vT + 7, VV + r, msk, msk + 1)))
            pre.append(T(p, 's_nop 1'))
            pre.append(T(p, 'v_mfma_f32_32x32x16_bf16 a[%d:%d], v[%d:%d], v[%d:%d], 0' % (d, d + 15, PK, PK + 3, BS, BS + 3)))
            pre.append(T(p, 'v_mfma_f32_32x32x16_bf16 a[%d:%d], v[%d:%d], v[%d:%d], a[%d:%d]' % (d, d + 15, PK + 4, PK + 7, BS + 4, BS + 7, d, d + 15)))
    for pr in range(2):
        for hb in range(2):
            dst = PK + 4 * ((2 * pr + hb) & 1)
            pre += phi_items(p, ACC1 + 64 + 16 * pr + 8 * hb, t, dst)
            pre.append(lambda dst=dst, o=1024 * (2 * pr + hb): p.vm('buffer_store_dwordx4 v[%d:%d], v%d, %s, s%d offen %s%s' % (dst, dst + 3, vST, srd(S_WS), sPQ, ('offset:%d' % o) if o else '', stflags)))
    KA = vT + 6
    pre.append(T(p, 's_lshl_b32 s%d, s%d, 13' % (sT0, sW)))
    pre.append(T(p, 's_add_u32 s%d, s%d, %d' % (sT0, sT0, SPARE)))
    pre.append(T(p, 'v_add_u32 v%d, s%d, v%d' % (KA, sT0, vST)))
    for hd in range(4):
        pr, hb = hd >> 1, hd & 1
        src = (ACC1 + 16 * pr) if hb == 0 else (ACC1 + 32 + 16 * pr + 8)
        for q in range(2):
            pre.append(lambda src=src, q=q, hd=hd: p.lg('ds_write_b128 v%d, a[%d:%d] offset:%d' % (KA, src + 4 * q, src + 4 * q + 3, hd * 2048 + q * 1024)))
    RA = vT + 6
    rtok = []
    post.append(T(p, 's_lshl_b32 s%d, s%d, 11' % (sT0, sW)))
    post.append(T(p, 's_add_u32 s%d, s%d, %d' % (sT0, sT0, SPARE)))
    post.append(T(p, 'v_add_u32 v%d, s%d, v%d' % (RA, sT0, vST)))
    R = vT + 8
    for wv in range(4):
        for q in range(2):
            post.append(lambda wv=wv, q=q: rtok.append(p.lg('ds_read_b128 v[%d:%d], v%d offset:%d' % (R + 8 * wv + 4 * q, R + 8 * wv + 4 * q + 3, RA, wv * 8192 + q * 1024))))
    post.append(lambda: p.wait(rtok))
    for wv in (1, 2, 3):
        for r in range(8): post.append(T(p, 'v_add_f32 v%d, v%d, v%d' % (R + r, R + r, R + 8 * wv + r)))
    for q in range(2):
        post.append(lambda q=q: p.vm('buffer_store_dwordx4 v[%d:%d], v%d, %s, s%d offen %s%s' % (R + 4 * q, R + 4 * q + 3, vST, srd(S_WS), sKVP, 'offset:1024 ' if q else '', stflags)))
    return pre, post

def spread(p, mf, items):
    n = len(mf); k = 0
    for j, m in enumerate(mf):
        m()
        upto = (len(items) * (j + 1) + n - 1) // n
        while k < min(upto, len(items)):
            items[k](); k += 1

def spread2(p, mf, items):
    n = len(mf); k = 0
    for j, m in enumerate(mf):
        upto = (len(items) * (j + 1) + n - 1) // n
        while k < min(upto, len(items)):
            items[k](); k += 1
        m()

def phase1(p, role, stflags=''):
    lane_w_voffs(p, role)
    role_setup(p, role)
    variants = lane_tr_addrs(p, role, ACC2)
    xa = vT + 8
    p('v_and_b32 v%d, 31, v%d' % (vT, vL)); p('v_lshrrev_b32 v%d, 5, v%d' % (vT + 1, vL)); p('v_bfe_u32 v%d, v%d, 1, 3' % (vT + 2, vL))
    p('v_xor_b32 v%d, v%d, v%d' % (vT + 1, vT + 1, vT + 2))
    p('v_lshlrev_b32 v%d, 7, v%d' % (vT, vT)); p('v_add_u32 v%d, s%d, v%d' % (vT, sWB, vT))
    for ss in range(4):
        p('v_xor_b32 v%d, %d, v%d' % (vT + 2, 2 * ss, vT + 1)); p('v_lshl_add_u32 v%d, v%d, 4, v%d' % (xa + ss, vT + 2, vT))
    xt = issue_x(p)
    p('s_mul_i32 s%d, s%d, 6144' % (sT0, sW)); p('s_add_u32 s%d, s%d, %d' % (sT0, sT0, SPARE))
    stok = {}
    it, stok[0] = dma_stage_items(p, role, 0)
    for f in it: f()
    if role == 'AB':
        for r in range(16): p('v_mov_b32 v%d, s%d' % (vT + 3, sEPS)) if r == 0 else None
        for r in range(16): p('v_accvgpr_write_b32 a%d, v%d' % (EPSB + r, vT + 3))
    vS, vQ = vT + 12, vT + 13
    p('v_mov_b32 v%d, 0' % vS); p('v_mov_b32 v%d, 0' % vQ); p('v_mov_b32 v%d, 0' % (vS + 2)); p('v_mov_b32 v%d, 0' % (vQ + 2))
    free_after = {1: 1, 2: 2, 4: 3, 5: 4, 7: 5}
    rt = {}
    def stats(c):
        p.wait(rt[c])
        for r in range(16):
            reg = XF + 16 * c + r
            o = 2 * (r & 1)
            p('v_dot2_f32_bf16 v%d, v%d, s%d, v%d' % (vS + o, reg, sONES, vS + o))
            p('v_dot2_f32_bf16 v%d, v%d, v%d, v%d' % (vQ + o, reg, reg, vQ + o))
    for c in range(8):
        p.wait(xt[c])
        rt[c] = [p.lg('ds_read_b128 %s, v%d offset:%d' % (xf(4 * c + ss), xa + ss, 4096 * c)) for ss in range(4)]
        if c > 0:
            stats(c - 1)
            if (c - 1) in free_after:
                it, stok[free_after[c - 1]] = dma_stage_items(p, role, free_after[c - 1])
                for f in it: f()
    stats(7)
    it, stok[5] = dma_stage_items(p, role, 5)
    for f in it: f()
    p('v_add_f32 v%d, v%d, v%d' % (vS, vS, vS + 2)); p('v_add_f32 v%d, v%d, v%d' % (vQ, vQ, vQ + 2))
    p('v_mov_b32 v%d, v%d' % (vS + 2, vS)); p('v_mov_b32 v%d, v%d' % (vQ + 2, vQ))
    p('s_nop 1')
    p('v_permlane32_swap_b32 v%d, v%d' % (vS, vS + 2)); p('v_permlane32_swap_b32 v%d, v%d' % (vQ, vQ + 2))
    p('s_nop 1')
    p('v_add_f32 v%d, v%d, v%d' % (vS, vS, vS + 2)); p('v_add_f32 v%d, v%d, v%d' % (vQ, vQ, vQ + 2))
    p('v_mul_f32 v%d, 0x3b000000, v%d' % (vS, vS))
    p('v_mul_f32 v%d, 0x3b000000, v%d' % (vQ, vQ))
    p('v_fma_f32 v%d, -v%d, v%d, v%d' % (vQ, vS, vS, vQ))
    p('v_max_f32 v%d, 0, v%d' % (vQ, vQ))
    p('v_add_f32 v%d, 0x3727c5ac, v%d' % (vQ, vQ))
    p('v_rsq_f32 v%d, v%d' % (vRS, vQ))
    p('s_nop 0')
    p('v_mul_f32 v%d, v%d, v%d' % (vNM, vS, vRS)); p('v_sub_f32 v%d, 0, v%d' % (vNM, vNM))
    for f in norm_items(p, 0, vT): f()
    p('v_mov_b32 v%d, s%d' % (vT + 7, sONES)) if False else None
    p.wait(stok[0]); p('s_barrier')
    ftok = {}
    for f in tr_items(p, role, 0, variants, ftok): f()
    pre, post = epilogue1_items(p, role, stflags)
    for S in range(64):
        grp = 1 if S < 32 else 2
        tl = tiles_of(role, grp); G = len(tl)
        s = S & 31
        def mk(j, S=S, s=s, tl=tl, G=G, grp=grp):
            var, lo, rds, sw = tl[j]
            b = wf(S, j, G); W = 'a[%d:%d]' % (b, b + 3)
            if grp == 1:
                d = 'a[%d:%d]' % (ACC1 + 16 * j, ACC1 + 16 * j + 15)
                c0 = '0'
                if role == 'AB' and j in (0, 1, 4, 5): c0 = 'a[%d:%d]' % (EPSB, EPSB + 15)
            else:
                d = 'v[%d:%d]' % (ACC2 + 16 * j, ACC2 + 16 * j + 15); c0 = '0'
            c = c0 if s == 0 else d
            A, B = (xf(s), W) if sw else (W, xf(s))
            def f():
                p.wait(ftok[(S, j)])
                p('v_mfma_f32_32x32x16_bf16 %s, %s, %s, %s' % (d, A, B, c))
            return f
        mf = [mk(j) for j in range(G)]
        items = []
        head = []
        if S + 1 < 64:
            if (S + 1) % 4 == 0:
                Tn = (S + 1) >> 2
                def bar(Tn=Tn):
                    w = p.need(stok[Tn]);
                    p('s_waitcnt lgkmcnt(0)' + ((' ' + w.split(' ', 1)[1]) if w else '')); p.lg_done = p.lg_issued
                    p('s_barrier')
                head.append(bar)
            head += tr_items(p, role, S + 1, variants, ftok)
            if (S + 1) % 4 == 0 and (S >> 2) + 5 <= 15:
                Td = (S >> 2) + 5
                if Td >= 6:
                    it, stok[Td] = dma_stage_items(p, role, Td)
                    items += it
        if grp == 1 and s + 1 < 32: items = norm_items(p, s + 1, vT) + items
        if S == 31 and role == 'AB': items.append(T(p, 'v_mov_b32 v%d, s%d' % (vT + 7, sONES)))
        if grp == 2:
            last = 54 if role == 'AB' else 61
            if pre:
                left = max(1, last - S + 1)
                n = (len(pre) + left - 1) // left
                items += pre[:n]; del pre[:n]
            elif post and S >= 55:
                left = 64 - S
                n = (len(post) + left - 1) // left
                items += post[:n]; del post[:n]
        mf[0]()
        for f in head[:1]: f()
        rest = head[1:] + items
        spread2(p, mf[1:], rest)
    assert not pre and not post, (len(pre), len(post))
    p('s_nop 7'); p('s_nop 3')
    for j in range(4):
        for f in mlp_epi_items(p, ACC2 + 16 * j, False, vT + 12 * (j & 1), sHST2, 1024 * j, stflags): f()
```

```python
from fw import *
from k1 import H_OFF, PQ_OFF, KVP_OFF, KVZ_OFF, WS_BYTES, srd, T

def kr_kernel():
    p = Prog()
    p('s_cmp_ge_u32 s2, 32'); p('s_cbranch_scc1 L_kr_end')
    p('s_load_dwordx2 s[4:5], s[0:1], 72')
    p('v_lshlrev_b32 v1, 4, v0')
    p('s_lshl_b32 s12, s2, 15'); p('s_add_u32 s12, s12, 0x%x' % KVP_OFF)
    p('s_lshl_b32 s13, s2, 10'); p('s_add_u32 s13, s13, 0x%x' % KVZ_OFF)
    p('s_waitcnt lgkmcnt(0)')
    p('s_mov_b32 s8, s4'); p('s_mov_b32 s9, s5'); p('s_mov_b32 s10, 0x%x' % WS_BYTES); p('s_mov_b32 s11, 0x00020000')
    toks = []
    for i in range(16):
        for q in range(2):
            r = 8 + 8 * i + 4 * q
            toks.append(p.vm('buffer_load_dwordx4 v[%d:%d], v1, s[8:11], s12 offen offset:%d' % (r, r + 3, 1024 * q)))
        p('s_add_u32 s12, s12, 2048')
    for i in range(1, 16):
        p.wait(toks[2 * i:2 * i + 2])
        if i == 1: p.wait(toks[0:2])
        for r in range(8): p('v_add_f32 v%d, v%d, v%d' % (8 + r, 8 + r, 8 + 8 * i + r))
    for q in range(4): p('v_cvt_pk_bf16_f32 v%d, v%d, v%d' % (4 + q, 8 + 2 * q, 9 + 2 * q))
    p.vm('buffer_store_dwordx4 v[4:7], v1, s[8:11], s13 offen')
    p.label('L_kr_end')
    return p

S_X, S_WD, S_WO, S_WS, S_OUT = 4, 8, 12, 16, 20
sW, sRT, sCT, sWB = 24, 25, 26, 27
sT0, sT1, sT2, sEPS = 28, 29, 30, 31
sWD0, sWD1, sH0, sH1, sPQ0, sPQ1, sKZ, sWO0, sWO1 = 32, 33, 34, 35, 36, 37, 38, 39, 40
vL, vST, vDM, vTR0, vTR1, vT = 1, 2, 3, 4, 5, 8
ACC = 64
HB = 128
ND = 224

def k2_prologue(p):
    p('s_load_dwordx2 s[60:61], s[0:1], 0')
    p('s_load_dwordx2 s[62:63], s[0:1], 16')
    p('s_load_dwordx4 s[64:67], s[0:1], 48')
    p('s_load_dwordx2 s[68:69], s[0:1], 72')
    p('v_and_b32 v%d, 63, v0' % vL); p('v_lshrrev_b32 v%d, 6, v0' % vT)
    p('s_and_b32 s%d, s2, 7' % sT0); p('s_lshr_b32 s%d, s2, 3' % sT1)
    p('v_readfirstlane_b32 s%d, v%d' % (sW, vT))
    p('s_lshl_b32 s%d, s%d, 2' % (sRT, sT0)); p('s_and_b32 s%d, s%d, 3' % (sT2, sT1)); p('s_add_u32 s%d, s%d, s%d' % (sRT, sRT, sT2))
    p('s_lshr_b32 s%d, s%d, 2' % (sCT, sT1))
    p('s_mov_b32 s%d, 0x358637bd' % sEPS)
    p('s_mul_i32 s%d, s%d, 40960' % (sWB, sW))
    p('v_lshlrev_b32 v%d, 4, v%d' % (vST, vL))
    a, b, c = vT, vT + 1, vT + 2
    p('v_lshrrev_b32 v%d, 3, v%d' % (a, vL)); p('v_lshrrev_b32 v%d, 2, v%d' % (c, vL)); p('v_and_b32 v%d, 4, v%d' % (c, c))
    p('v_and_b32 v%d, 7, v%d' % (b, vL)); p('v_xor_b32 v%d, v%d, v%d' % (b, b, c)); p('v_lshlrev_b32 v%d, 4, v%d' % (b, b))
    p('v_lshl_add_u32 v%d, v%d, 10, v%d' % (vDM, a, b))
    t0, t1, t2, t3, t4, u0, u1 = [vT + i for i in range(7)]
    p('v_lshrrev_b32 v%d, 5, v%d' % (t0, vL)); p('v_lshlrev_b32 v%d, 2, v%d' % (t0, t0))
    p('v_bfe_u32 v%d, v%d, 2, 2' % (t1, vL)); p('v_add_u32 v%d, v%d, v%d' % (t0, t0, t1))
    p('v_bfe_u32 v%d, v%d, 4, 1' % (t1, vL)); p('v_bfe_u32 v%d, v%d, 1, 1' % (t2, vL)); p('v_bfe_u32 v%d, v%d, 3, 1' % (t3, vL))
    p('v_and_b32 v%d, 1, v%d' % (t4, vL)); p('v_lshlrev_b32 v%d, 3, v%d' % (t4, t4))
    for nt, r0 in enumerate((vTR0, vTR1)):
        p('v_lshl_add_u32 v%d, v%d, 1, v%d' % (u0, t1, t2))
        p('v_lshlrev_b32 v%d, 2, v%d' % (u1, t3)); p('v_xor_b32 v%d, %d, v%d' % (u1, 4 * nt, u1)); p('v_add_u32 v%d, v%d, v%d' % (u0, u0, u1))
        p('v_lshl_add_u32 v%d, v%d, 4, v%d' % (u0, u0, t4))
        p('v_lshl_add_u32 v%d, v%d, 7, v%d' % (u0, t0, u0))
        p('v_add_u32 v%d, s%d, v%d' % (r0, sWB, u0))
    p('s_mul_i32 s%d, s%d, %d' % (sWD0, sW, 448 * 1024)); p('s_lshl_b32 s%d, s%d, 7' % (sT0, sCT)); p('s_add_u32 s%d, s%d, s%d' % (sWD0, sWD0, sT0))
    p('s_add_u32 s%d, s%d, %d' % (sWD1, sWD0, 8192 - 1024))
    p('s_lshl_b32 s%d, s%d, 17' % (sWO0, sW)); p('s_add_u32 s%d, s%d, s%d' % (sWO0, sWO0, sT0)); p('s_add_u32 s%d, s%d, %d' % (sWO1, sWO0, 8192 - 1024))
    p('s_mul_i32 s%d, s%d, %d' % (sH0, sRT, 2 * 112 * 1024)); p('s_mul_i32 s%d, s%d, %d' % (sT0, sW, 28 * 1024)); p('s_add_u32 s%d, s%d, s%d' % (sH0, sH0, sT0))
    p('s_add_u32 s%d, s%d, %d' % (sH1, sH0, 112 * 1024))
    p('s_lshl_b32 s%d, s%d, 16' % (sPQ0, sRT)); p('s_lshl_b32 s%d, s%d, 13' % (sT0, sW)); p('s_add_u32 s%d, s%d, s%d' % (sPQ0, sPQ0, sT0)); p('s_add_u32 s%d, s%d, 0x%x' % (sPQ0, sPQ0, PQ_OFF))
    p('s_add_u32 s%d, s%d, 32768' % (sPQ1, sPQ0))
    p('s_add_u32 s%d, s%d, 0x%x' % (sKZ, sT0, KVZ_OFF))
    p('s_waitcnt lgkmcnt(0)')
    for base, src, n in ((S_X, 60, 2048 * 1024), (S_WO, 62, 512 * 1024), (S_WD, 64, 1792 * 1024), (S_OUT, 66, 2048 * 1024), (S_WS, 68, WS_BYTES)):
        p('s_mov_b32 s%d, s%d' % (base, src)); p('s_mov_b32 s%d, s%d' % (base + 1, src + 1))
        p('s_mov_b32 s%d, 0x%x' % (base + 2, n)); p('s_mov_b32 s%d, 0x00020000' % (base + 3))

def final_reduce(p, acc, sRT, sCT, sW, srdX, srdOUT, vL, vT, sT0, sT1):
    p.wait_all(vm=False); p('s_barrier')
    wa = vT
    p('v_and_b32 v%d, 31, v%d' % (wa, vL)); p('v_mul_u32_u24 v%d, 272, v%d' % (wa, wa))
    p('v_lshrrev_b32 v%d, 5, v%d' % (wa + 1, vL)); p('v_lshl_add_u32 v%d, v%d, 4, v%d' % (wa, wa + 1, wa))
    p('s_mul_i32 s%d, s%d, 17408' % (sT0, sW)); p('v_add_u32 v%d, s%d, v%d' % (wa, sT0, wa))
    ga = vT + 1
    p('v_lshrrev_b32 v%d, 3, v0' % ga); p('v_lshlrev_b32 v%d, 10, v%d' % (ga, ga))
    p('v_and_b32 v%d, 7, v0' % (vT + 2)); p('v_lshl_add_u32 v%d, v%d, 4, v%d' % (ga, vT + 2, ga))
    p('s_lshl_b32 s%d, s%d, 16' % (sT0, sRT)); p('s_lshl_b32 s%d, s%d, 7' % (sT1, sCT)); p('s_add_u32 s%d, s%d, s%d' % (sT0, sT0, sT1))
    p('s_add_u32 s%d, s%d, 32768' % (sT1, sT0))
    XR = vT + 8
    xt = [p.vm('buffer_load_dwordx4 v[%d:%d], v%d, %s, s%d offen' % (XR + 4 * j, XR + 4 * j + 3, ga, srdX, (sT0, sT1)[j])) for j in range(2)]
    p('s_nop 7')
    for nt in range(2):
        for mt in range(2):
            for q in range(4):
                r = acc + 16 * (2 * nt + mt) + 4 * q
                p.lg('ds_write_b128 v%d, v[%d:%d] offset:%d' % (wa, r, r + 3, mt * 8704 + nt * 128 + q * 32))
    p.wait_all(vm=False); p('s_barrier')
    ra = vT + 2
    p('v_lshrrev_b32 v%d, 3, v0' % ra); p('v_mul_u32_u24 v%d, 272, v%d' % (ra, ra))
    p('v_and_b32 v%d, 7, v0' % (vT + 3)); p('v_lshl_add_u32 v%d, v%d, 5, v%d' % (ra, vT + 3, ra))
    R = acc
    rt = {}
    for j in range(2):
        for wv in range(4):
            for hh in range(2):
                r = R + 32 * j + 8 * wv + 4 * hh
                off = wv * 17408 + j * 8704 + hh * 16
                if off < 65536:
                    rt[(j, wv, hh)] = p.lg('ds_read_b128 v[%d:%d], v%d offset:%d' % (r, r + 3, ra, off))
    for j in range(2):
        p.wait([rt[(j, wv, hh)] for wv in range(4) for hh in range(2)])
        b = R + 32 * j
        for wv in (1, 2, 3):
            for r in range(8): p('v_add_f32 v%d, v%d, v%d' % (b + r, b + r, b + 8 * wv + r))
        p.wait(xt[j])
        t = vT + 16
        for q in range(4):
            x = XR + 4 * j + q
            p('v_lshlrev_b32 v%d, 16, v%d' % (t, x)); p('v_and_b32 v%d, 0xffff0000, v%d' % (t + 1, x))
            p('v_add_f32 v%d, v%d, v%d' % (b + 2 * q, b + 2 * q, t)); p('v_add_f32 v%d, v%d, v%d' % (b + 2 * q + 1, b + 2 * q + 1, t + 1))
            p('v_cvt_pk_bf16_f32 v%d, v%d, v%d' % (XR + 4 * j + q, b + 2 * q, b + 2 * q + 1))
        p.vm('buffer_store_dwordx4 v[%d:%d], v%d, %s, s%d offen' % (XR + 4 * j, XR + 4 * j + 3, ga, srdOUT, (sT0, sT1)[j]))

def k2_kernel():
    p = Prog()
    p('s_cmp_ge_u32 s2, 256'); p('s_cbranch_scc1 L_k2_end')
    k2_prologue(p)
    NR = 12
    wot = []
    for hh in range(8):
        p('s_add_u32 m0, s%d, %d' % (sWB, 2048 * hh)); p('s_nop 0')
        wot.append([p.vm('buffer_load_dwordx4 v%d, %s, s%d offen lds' % (vDM, srd(S_WO), sWO0)),
                    p.vm('buffer_load_dwordx4 v%d, %s, s%d offen offset:1024 lds' % (vDM, srd(S_WO), sWO1))])
        p('s_add_u32 s%d, s%d, 16384' % (sWO0, sWO0)); p('s_add_u32 s%d, s%d, 16384' % (sWO1, sWO1))
    wt, ht = {}, {}
    def dma_wd(fs):
        p('s_add_u32 m0, s%d, %d' % (sWB, 16384 + 2048 * (fs % NR))); p('s_nop 0')
        wt[fs] = [p.vm('buffer_load_dwordx4 v%d, %s, s%d offen lds' % (vDM, srd(S_WD), sWD0)),
                  p.vm('buffer_load_dwordx4 v%d, %s, s%d offen offset:1024 lds' % (vDM, srd(S_WD), sWD1))]
        p('s_add_u32 s%d, s%d, 16384' % (sWD0, sWD0)); p('s_add_u32 s%d, s%d, 16384' % (sWD1, sWD1))
    def ld_h(fs):
        ht[fs] = []
        for mt, so in enumerate((sH0, sH1)):
            r = HB + 8 * (fs % NR) + 4 * mt
            ht[fs].append(p.vm('buffer_load_dwordx4 v[%d:%d], v%d, %s, s%d offen' % (r, r + 3, vST, srd(S_WS), so)))
            p('s_add_u32 s%d, s%d, 1024' % (so, so))
    for fs in range(NR):
        dma_wd(fs); ld_h(fs)
    def tr4(off, fb):
        t = []
        for nt, reg in enumerate((vTR0, vTR1)):
            for rd in range(2):
                b = fb + 4 * nt + 2 * rd
                t.append(p.lg('ds_read_b64_tr_b16 a[%d:%d], v%d offset:%d' % (b, b + 1, reg, off + 1024 * rd)))
        return t
    ft = {}
    p.wait(wt[0]); ft[0] = tr4(16384, 0)
    for fs in range(28):
        if fs + 1 < 28:
            p.wait(wt[fs + 1]); ft[fs + 1] = tr4(16384 + 2048 * ((fs + 1) % NR), 8 * ((fs + 1) & 1))
        p.wait(ft[fs])
        if fs + NR < 28: dma_wd(fs + NR)
        p.wait(ht[fs])
        fb = 8 * (fs & 1)
        for nt in range(2):
            for mt in range(2):
                d = ACC + 16 * (2 * nt + mt); r = HB + 8 * (fs % NR) + 4 * mt
                p('v_mfma_f32_32x32x16_bf16 v[%d:%d], a[%d:%d], v[%d:%d], %s' % (d, d + 15, fb + 4 * nt, fb + 4 * nt + 3, r, r + 3, '0' if fs == 0 else 'v[%d:%d]' % (d, d + 15)))
        if fs + NR < 28: ld_h(fs + NR)
    PQR, KZR = HB, HB + 64
    pqt, kzt = {}, {}
    for hh in range(8):
        kzt[hh] = p.vm('buffer_load_dwordx4 v[%d:%d], v%d, %s, s%d offen' % (KZR + 4 * hh, KZR + 4 * hh + 3, vST, srd(S_WS), sKZ)); p('s_add_u32 s%d, s%d, 1024' % (sKZ, sKZ))
        for mt, so in enumerate((sPQ0, sPQ1)):
            r = PQR + 8 * hh + 4 * mt
            pqt[(hh, mt)] = p.vm('buffer_load_dwordx4 v[%d:%d], v%d, %s, s%d offen' % (r, r + 3, vST, srd(S_WS), so)); p('s_add_u32 s%d, s%d, 1024' % (so, so))
    for hh in range(8):
        p.wait(wot[hh]); f = tr4(2048 * hh, 8 * (hh & 1))
        p.wait([kzt[hh], pqt[(hh, 0)], pqt[(hh, 1)]])
        for mt in range(2):
            d = ND + 16 * mt
            p('v_mfma_f32_32x32x16_bf16 v[%d:%d], v[%d:%d], v[%d:%d], 0' % (d, d + 15, KZR + 4 * hh, KZR + 4 * hh + 3, PQR + 8 * hh + 4 * mt, PQR + 8 * hh + 4 * mt + 3))
        p('s_nop 7'); p('s_nop 3')
        for mt in range(2):
            d = ND + 16 * mt
            num, den = (d, d + 8) if hh % 2 == 0 else (d + 8, d)
            t = vT + 8 * mt
            p('v_add_f32 v%d, s%d, v%d' % (t + 4, sEPS, den)); p('v_rcp_f32 v%d, v%d' % (t + 4, t + 4)); p('s_nop 0')
            for r in range(8): p('v_mul_f32 v%d, v%d, v%d' % (num + r, num + r, t + 4))
            for q in range(4): p('v_cvt_pk_bf16_f32 v%d, v%d, v%d' % (t + q, num + 2 * q, num + 2 * q + 1))
        p.wait(f)
        p('s_nop 1')
        fb = 8 * (hh & 1)
        for nt in range(2):
            for mt in range(2):
                d = ACC + 16 * (2 * nt + mt); t = vT + 8 * mt
                p('v_mfma_f32_32x32x16_bf16 v[%d:%d], a[%d:%d], v[%d:%d], v[%d:%d]' % (d, d + 15, fb + 4 * nt, fb + 4 * nt + 3, t, t + 3, d, d + 15))
    p('s_nop 7'); p('s_nop 3')
    final_reduce(p, ACC, sRT, sCT, sW, srd(S_X), srd(S_OUT), vL, vT, sT0, sT1)
    p.label('L_k2_end')
    return p
```

```python
import sys
sys.path.insert(0, 'dev')
from asmlib import make_file
from fw import *
import k1, k2

def k1_kernel():
    p = Prog()
    p('s_cmp_ge_u32 s2, 256'); p('s_cbranch_scc1 L_k1_end')
    k1.prologue(p)
    pro = list(p.ins)
    p('s_cmp_ge_u32 s%d, 2' % k1.sMEM); p('s_cbranch_scc1 L_k1_cd')
    st = (p.vm_issued, p.vm_done, p.lg_issued, p.lg_done)
    n0 = len(p.ins)
    k1.phase1(p, 'AB'); ab = p.ins[n0:]
    p('s_branch L_k1_end')
    p.label('L_k1_cd')
    p.vm_issued, p.vm_done, p.lg_issued, p.lg_done = st
    n1 = len(p.ins)
    k1.phase1(p, 'CD'); cd = p.ins[n1:]
    p.label('L_k1_end')
    probs = check_hazards(pro + ab, 'k1AB') + check_hazards(pro + cd, 'k1CD')
    global p1_pro, p1_ab, p1_cd
    p1_pro, p1_ab, p1_cd = pro, ab, cd
    return p, probs

p1, probs = k1_kernel()
pr = k2.kr_kernel(); probs += check_hazards(pr.ins, 'kr')
p2 = k2.k2_kernel(); probs += check_hazards(p2.ins, 'k2')
probs += check_waits(p1_pro + p1_ab, 'wAB') + check_waits(p1_pro + p1_cd, 'wCD') + check_waits(pr.ins, 'wkr') + check_waits(p2.ins, 'wk2')
for x in probs[:40]: print(x)
print('hazard problems:', len(probs))
print('k1 regs', maxregs(p1.ins), 'n', len(p1.ins), 'k2 regs', maxregs(p2.ins), 'n', len(p2.ins))
ks = [dict(name='k1_kernel', body=p1.text(), grid=(256,1,1), block=(256,1,1), lds=163840, vgpr=512, accum=256, sgpr=80),
      dict(name='kr_kernel', body=pr.text(), grid=(32,1,1), block=(64,1,1), lds=0, vgpr=144, accum=144, sgpr=24),
      dict(name='k2_kernel', body=p2.text(), grid=(256,1,1), block=(256,1,1), lds=163840, vgpr=512, accum=256, sgpr=80)]
open(sys.argv[1] if len(sys.argv) > 1 else 'v1.s', 'w').write(make_file(ks))
```

```python
import sys
from fw import *

NAME = 'parallel_sum__linear_attn_block__glu_gated_reglu__prompt_kernel'
H_OFF, PQ_OFF, KVP_OFF, KVZ_OFF = 0x0, 0x800000, 0xA00000, 0xB00000
FLG_H, FLG_KVP, FLG_KVZ, NONCE_OFF = 0xC00000, 0xC10000, 0xC20000, 0xC30000
WS_BYTES = 268435456
SPARE = 131072
ST = 'sc1'
LD = 'sc1'

S_X, S_WQ, S_WG, S_WU, S_WS, S_WD, S_WO, S_OUT, S_DBG = 4, 8, 12, 16, 20, 24, 28, 32, 36
sW, sI, sMEM, sQD, sWB = 40, 41, 42, 43, 44
sMASK, sLOG2E, sEPS, sONES = 45, 46, 47, 48
sX = [49, 50, 51, 52]
sL = [53, 54, 55, 56, 57, 58]
sG2 = [59, 60]
sHST1, sHST1b, sHST2, sPQ, sKVP = 61, 62, 63, 64, 65
sT0, sT1, sT2 = 66, 67, 68
sNONCE, sSPIN = 69, 3
sMLO, sMHI = 90, 92
sRT, sCT = 94, 95
sWD0, sWD1, sWO0, sWO1 = 96, 97, 98, 99
sU = 100
sS2 = 101
def srd(b): return 's[%d:%d]' % (b, b + 3)

vL = 1
vX0, vX1 = 2, 3
vWA, vWB, vWC, vWD = 4, 5, 6, 7
vST = 8
vRS, vNM = 9, 10
vD2 = 11
vTR = 12
vT = 24
vT2A, vT2B = vT + 20, vT + 21
ACC2 = 64
XF = 128
def xf(s): return 'v[%d:%d]' % (XF + 4 * s, XF + 4 * s + 3)
ACC1, WF, EPSB = 0, 96, 144

def T(p, s): return lambda: p(s)

def slot_base_const(S):
    Tg = S >> 2; r = S & 3
    if Tg == 0: return SPARE + 6144 * r
    return 32768 * r + 6144 * ((Tg - 1) % 5)

def prologue(p):
    if p.stamps_on: p('s_memrealtime s[88:89]'); p('s_memtime s[90:91]')
    p('s_load_dwordx2 s[70:71], s[0:1], 0')
    p('s_load_dwordx4 s[72:75], s[0:1], 8')
    p('s_load_dwordx4 s[76:79], s[0:1], 32')
    p('s_load_dwordx8 s[80:87], s[0:1], 48')
    p('v_and_b32 v%d, 63, v0' % vL)
    p('v_lshrrev_b32 v%d, 6, v0' % vT)
    p('s_and_b32 s%d, s2, 7' % sT0)
    p('s_lshr_b32 s%d, s2, 3' % sT1)
    p('v_readfirstlane_b32 s%d, v%d' % (sW, vT))
    p('s_lshr_b32 s%d, s%d, 1' % (sQD, sT0))
    p('s_lshl_b32 s%d, s%d, 2' % (sRT, sT0)); p('s_and_b32 s%d, s%d, 3' % (sT2, sT1)); p('s_add_u32 s%d, s%d, s%d' % (sRT, sRT, sT2))
    p('s_lshr_b32 s%d, s%d, 2' % (sCT, sT1))
    p('s_and_b32 s%d, s%d, 1' % (sT0, sT0)); p('s_lshl_b32 s%d, s%d, 3' % (sT0, sT0))
    p('s_and_b32 s%d, s%d, 7' % (sI, sT1)); p('s_add_u32 s%d, s%d, s%d' % (sI, sI, sT0))
    p('s_lshr_b32 s%d, s%d, 3' % (sMEM, sT1))
    p('s_lshl_b32 s%d, s%d, 15' % (sWB, sW))
    a, b, c = vT, vT + 1, vT + 2
    p('v_lshrrev_b32 v%d, 3, v%d' % (a, vL)); p('v_lshlrev_b32 v%d, 10, v%d' % (a, a))
    p('v_and_b32 v%d, 7, v%d' % (b, vL)); p('v_lshrrev_b32 v%d, 4, v%d' % (c, vL)); p('v_xor_b32 v%d, v%d, v%d' % (b, b, c))
    p('v_lshl_add_u32 v%d, v%d, 4, v%d' % (vX0, b, a))
    p('v_xor_b32 v%d, 64, v%d' % (vX1, vX0))
    p('s_lshl_b32 s%d, s%d, 2' % (sT0, sI)); p('s_add_u32 s%d, s%d, s%d' % (sT0, sT0, sW))
    p('s_lshl_b32 s%d, s%d, 15' % (sX[0], sT0))
    for q in range(1, 4): p('s_add_u32 s%d, s%d, %d' % (sX[q], sX[0], 7168 * q))
    p('s_mul_i32 s%d, s%d, %d' % (sHST1, sT0, 112 * 1024))
    p('s_lshl_b32 s%d, s%d, 15' % (sPQ, sT0)); p('s_add_u32 s%d, s%d, 0x%x' % (sPQ, sPQ, PQ_OFF))
    p('s_waitcnt lgkmcnt(0)')
    def mk(base, src, n):
        p('s_mov_b32 s%d, s%d' % (base, src)); p('s_mov_b32 s%d, s%d' % (base + 1, src + 1))
        p('s_mov_b32 s%d, 0x%x' % (base + 2, n)); p('s_mov_b32 s%d, 0x00020000' % (base + 3))
    mk(S_X, 70, 2048 * 1024)
    later = []
    for base, src, n in ((S_WQ, 72, 512 * 3072), (S_WO, 74, 512 * 1024), (S_WG, 76, 512 * 3584), (S_WU, 78, 512 * 3584),
                         (S_WD, 80, 1792 * 1024), (S_OUT, 82, 2048 * 1024), (S_DBG, 84, 256), (S_WS, 86, WS_BYTES)):
        later += [T(p, 's_mov_b32 s%d, s%d' % (base, src)), T(p, 's_mov_b32 s%d, s%d' % (base + 1, src + 1)),
                  T(p, 's_mov_b32 s%d, 0x%x' % (base + 2, n)), T(p, 's_mov_b32 s%d, 0x00020000' % (base + 3))]
    for s, v in ((sMASK, 0xffff0000), (sLOG2E, 0x3fb8aa3b), (sEPS, 0x358637bd), (sONES, 0x3f803f80), (sMLO, 0xffff), (sMLO + 1, 0xffff), (sMHI, 0xffff0000), (sMHI + 1, 0xffff0000)):
        later.append(T(p, 's_mov_b32 s%d, 0x%x' % (s, v)))
    if p.stamps_on:
        pre = [T(p, 's_mov_b32 s70, s88'), T(p, 's_mov_b32 s72, s90')]
        k = [i for i, f in enumerate(later)][32]
        later = later[:32] + pre + later[32:]
    later.append(T(p, 'v_lshlrev_b32 v%d, 4, v%d' % (vST, vL)))
    return later

def x_dma_items(p):
    toks = [[] for _ in range(8)]
    items = []
    for c in range(8):
        for q in range(4):
            def f(c=c, q=q):
                if q == 0:
                    p('s_add_u32 m0, s%d, %d' % (sWB, 4096 * c)); p('s_nop 0')
                toks[c].append(p.vm('buffer_load_dwordx4 v%d, %s, s%d offen offset:%d lds' % ((vX0, vX1)[q & 1], srd(S_X), sX[q], 1024 * q)))
                if q == 3 and c < 7:
                    p('v_add_u32 v%d, 128, v%d' % (vX0, vX0)); p('v_add_u32 v%d, 128, v%d' % (vX1, vX1))
            items.append(f)
    return items, toks

def setup_items(p, role):
    q = Prog()
    a, b, c = vT, vT + 1, vT + 2
    q('v_lshrrev_b32 v%d, 3, v%d' % (a, vL))
    q('v_lshrrev_b32 v%d, 2, v%d' % (c, vL)); q('v_and_b32 v%d, 4, v%d' % (c, c))
    q('v_and_b32 v%d, 7, v%d' % (b, vL)); q('v_xor_b32 v%d, v%d, v%d' % (b, b, c)); q('v_lshlrev_b32 v%d, 4, v%d' % (b, b))
    q('v_lshl_add_u32 v%d, v%d, 10, v%d' % (vD2, a, b))
    q('s_movk_i32 s%d, 3072' % sT1); q('s_movk_i32 s%d, 3584' % sT2)
    if role == 'AB':
        q('v_mad_u32_u24 v%d, v%d, s%d, v%d' % (vWA, a, sT1, b))
        q('v_mad_u32_u24 v%d, v%d, s%d, v%d' % (vWB, a, sT2, b))
        q('v_xor_b32 v%d, 32, v%d' % (vWC, vWB))
    else:
        q('v_mad_u32_u24 v%d, v%d, s%d, v%d' % (vWA, a, sT2, b))
        q('v_xor_b32 v%d, 32, v%d' % (vWB, vWA))
        q('v_lshrrev_b32 v%d, 2, v%d' % (a, vL)); q('v_and_b32 v%d, 3, v%d' % (b, vL)); q('v_lshlrev_b32 v%d, 4, v%d' % (b, b))
        q('v_mad_u32_u24 v%d, v%d, s%d, v%d' % (vWC, a, sT2, b))
        q('v_xor_b32 v%d, 32, v%d' % (vWD, vWC))
    q('s_mul_i32 s%d, s%d, %d' % (sT1, sW, 16 * 3072)); q('s_mul_i32 s%d, s%d, %d' % (sT2, sW, 16 * 3584))
    if role == 'AB':
        q('s_lshl_b32 s%d, s%d, 1' % (sU, sQD)); q('s_add_u32 s%d, s%d, s%d' % (sU, sU, sMEM))
        q('s_lshl_b32 s%d, s%d, 12' % (sKVP, sU)); q('s_add_u32 s%d, s%d, s%d' % (sPQ, sPQ, sKVP))
        q('s_lshl_b32 s%d, s%d, 2' % (sKVP, sU)); q('s_add_u32 s%d, s%d, s%d' % (sKVP, sKVP, sW)); q('s_lshl_b32 s%d, s%d, 15' % (sKVP, sKVP))
        q('s_lshl_b32 s%d, s%d, 11' % (sHST2, sI)); q('s_add_u32 s%d, s%d, s%d' % (sKVP, sKVP, sHST2)); q('s_add_u32 s%d, s%d, 0x%x' % (sKVP, sKVP, KVP_OFF))
        q('s_lshl_b32 s%d, s%d, 7' % (sT0, sU)); q('s_add_u32 s%d, s%d, s%d' % (sT0, sT0, sT1))
        for li, col in enumerate((1024, 2048, 0)):
            q('s_add_u32 s%d, s%d, %d' % (sL[2 * li], sT0, col)); q('s_add_u32 s%d, s%d, %d' % (sL[2 * li + 1], sT0, col + 8 * 3072 - 1024))
        q('s_mul_i32 s%d, s%d, 7' % (sT0, sQD)); q('s_add_u32 s%d, s%d, s%d' % (sT0, sT0, sMEM))
        q('s_lshl_b32 s%d, s%d, 12' % (sHST2, sT0)); q('s_add_u32 s%d, s%d, s%d' % (sHST2, sHST2, sHST1))
        q('s_lshl_b32 s%d, s%d, 7' % (sT0, sT0)); q('s_add_u32 s%d, s%d, s%d' % (sG2[0], sT0, sT2)); q('s_add_u32 s%d, s%d, %d' % (sG2[1], sG2[0], 8 * 3584 - 1024))
    else:
        q('s_mul_i32 s%d, s%d, 7' % (sT0, sQD))
        q('s_sub_u32 s%d, s%d, 2' % (sT1, sMEM))
        q('s_mul_i32 s%d, s%d, 3' % (sL[5], sT1)); q('s_add_u32 s%d, s%d, s%d' % (sL[5], sL[5], sT0)); q('s_add_u32 s%d, s%d, 2' % (sL[5], sL[5]))
        q('s_add_u32 s%d, s%d, 4' % (sL[4], sT0))
        q('s_lshl_b32 s%d, s%d, 12' % (sHST1b, sL[4])); q('s_lshl_b32 s%d, s%d, 11' % (sL[3], sT1)); q('s_add_u32 s%d, s%d, s%d' % (sHST1b, sHST1b, sL[3]))
        q('s_add_u32 s%d, s%d, s%d' % (sHST1b, sHST1b, sHST1))
        q('s_lshl_b32 s%d, s%d, 12' % (sL[3], sL[5])); q('s_add_u32 s%d, s%d, 4096' % (sHST2, sL[3])); q('s_add_u32 s%d, s%d, s%d' % (sHST2, sHST2, sHST1))
        q('s_add_u32 s%d, s%d, s%d' % (sHST1, sHST1, sL[3]))
        q('s_lshl_b32 s%d, s%d, 7' % (sL[2], sL[4])); q('s_lshl_b32 s%d, s%d, 6' % (sT1, sT1)); q('s_add_u32 s%d, s%d, s%d' % (sL[2], sL[2], sT1))
        q('s_add_u32 s%d, s%d, s%d' % (sL[2], sL[2], sT2))
        q('s_lshl_b32 s%d, s%d, 7' % (sL[0], sL[5])); q('s_add_u32 s%d, s%d, s%d' % (sL[0], sL[0], sT2)); q('s_add_u32 s%d, s%d, %d' % (sL[1], sL[0], 8 * 3584 - 1024))
        q('s_add_u32 s%d, s%d, 128' % (sG2[0], sL[0])); q('s_add_u32 s%d, s%d, 128' % (sG2[1], sL[1]))
    q('s_mul_i32 s%d, s%d, %d' % (sWD0, sW, 448 * 1024)); q('s_lshl_b32 s%d, s%d, 7' % (sT0, sCT)); q('s_add_u32 s%d, s%d, s%d' % (sWD0, sWD0, sT0))
    q('s_add_u32 s%d, s%d, %d' % (sWD1, sWD0, 8192 - 1024))
    q('s_lshl_b32 s%d, s%d, 17' % (sWO0, sW)); q('s_add_u32 s%d, s%d, s%d' % (sWO0, sWO0, sT0)); q('s_add_u32 s%d, s%d, %d' % (sWO1, sWO0, 8192 - 1024))
    q('s_lshl_b32 s%d, s%d, 13' % (sS2, sW)); q('s_add_u32 s%d, s%d, %d' % (sS2, sS2, SPARE))
    t0, t1, t2, t3, t4, u0, u1, t5 = [vT + i for i in range(8)]
    q('v_lshrrev_b32 v%d, 5, v%d' % (t5, vL))
    q('v_lshlrev_b32 v%d, 3, v%d' % (t0, t5))
    q('v_bfe_u32 v%d, v%d, 2, 2' % (t1, vL)); q('v_add_u32 v%d, v%d, v%d' % (t0, t0, t1))
    q('v_lshl_add_u32 v%d, v%d, 2, v%d' % (t5, t5, t1))
    q('v_bfe_u32 v%d, v%d, 4, 1' % (t1, vL)); q('v_bfe_u32 v%d, v%d, 1, 1' % (t2, vL)); q('v_bfe_u32 v%d, v%d, 3, 1' % (t3, vL))
    q('v_and_b32 v%d, 1, v%d' % (t4, vL)); q('v_lshlrev_b32 v%d, 3, v%d' % (t4, t4))
    variants = {}
    names = (['q0', 'q1', 'm0', 'm1', 'm2', 'm3'] if role == 'AB' else ['m0', 'm1', 'm2', 'm3', 'h0', 'h1'])
    def qvar(dst, th, rowreg):
        q('v_lshl_add_u32 v%d, v%d, 1, v%d' % (u0, t1, t2))
        q('v_lshlrev_b32 v%d, 2, v%d' % (u1, t3)); q('v_xor_b32 v%d, %d, v%d' % (u1, 4 * th, u1)); q('v_add_u32 v%d, v%d, v%d' % (u0, u0, u1))
        q('v_lshl_add_u32 v%d, v%d, 4, v%d' % (u0, u0, t4))
        q('v_lshl_add_u32 v%d, v%d, 7, v%d' % (dst, rowreg, u0))
    for vi, nm in enumerate(names):
        r0 = vTR + 2 * vi
        if nm[0] == 'q': qvar(r0, int(nm[1]), t0)
        elif nm[0] == 'm':
            tt = int(nm[1])
            q('v_add_u32 v%d, %d, v%d' % (u0, 2 * tt, t2))
            q('v_lshlrev_b32 v%d, 2, v%d' % (u1, t3)); q('v_xor_b32 v%d, v%d, v%d' % (u0, u0, u1))
            q('v_lshlrev_b32 v%d, 1, v%d' % (u1, t1)); q('v_xor_b32 v%d, v%d, v%d' % (u0, u0, u1))
            q('v_lshl_add_u32 v%d, v%d, 4, v%d' % (u0, u0, t4))
            q('v_lshl_add_u32 v%d, v%d, 7, v%d' % (u0, t0, u0))
            q('v_lshl_add_u32 v%d, v%d, 11, v%d' % (r0, t1, u0))
        else:
            tt = int(nm[1])
            q('v_add_u32 v%d, %d, v%d' % (u0, 2 * tt, t2))
            q('v_lshlrev_b32 v%d, 1, v%d' % (u1, t1)); q('v_xor_b32 v%d, v%d, v%d' % (u0, u0, u1))
            q('v_lshl_add_u32 v%d, v%d, 4, v%d' % (u0, u0, t4))
            q('v_lshl_add_u32 v%d, v%d, 6, v%d' % (u0, t0, u0))
            q('v_lshl_add_u32 v%d, v%d, 10, v%d' % (r0, t1, u0))
        q('v_add_u32 v%d, 0x10000, v%d' % (r0 + 1, r0))
        q('v_add_u32 v%d, 0x20000, v%d' % (ACC2 + vi, r0))
        variants[nm] = {0: r0, 1: r0 + 1, 2: ACC2 + vi}
    qvar(vT2A, 0, t5); qvar(vT2B, 1, t5)
    xa = vT + 8
    q('v_and_b32 v%d, 31, v%d' % (vT, vL)); q('v_lshrrev_b32 v%d, 5, v%d' % (vT + 1, vL)); q('v_bfe_u32 v%d, v%d, 1, 3' % (vT + 2, vL))
    q('v_xor_b32 v%d, v%d, v%d' % (vT + 1, vT + 1, vT + 2))
    q('v_lshlrev_b32 v%d, 7, v%d' % (vT, vT)); q('v_add_u32 v%d, s%d, v%d' % (vT, sWB, vT))
    for ss in range(4):
        q('v_xor_b32 v%d, %d, v%d' % (vT + 2, 2 * ss, vT + 1)); q('v_lshl_add_u32 v%d, v%d, 4, v%d' % (xa + ss, vT + 2, vT))
    if role == 'AB':
        q('v_mov_b32 v%d, s%d' % (vT + 3, sEPS))
        for r in range(16): q('v_accvgpr_write_b32 a%d, v%d' % (EPSB + r, vT + 3))
    return [T(p, x) for x in q.ins], variants

def dma_stage_items(p, role, Tg):
    toks = []; items = []
    base = 6144 * ((Tg - 1) % 5)
    def ld(first_m0, v, s, so, off, post=None):
        def f():
            if first_m0 is not None:
                if Tg == 0: p('s_add_u32 m0, s%d, %d' % (sT0, first_m0))
                else: p('s_add_u32 m0, s%d, %d' % (sWB, base + first_m0))
                p('s_nop 0')
            toks.append(p.vm('buffer_load_dwordx4 v%d, %s, s%d offen %slds' % (v, srd(s), so, ('offset:%d ' % off) if off else '')))
            if post:
                for x in post: p(x)
        f.cont = first_m0 is None
        return f
    adv = lambda v, d: 'v_add_u32 v%d, 0x%x, v%d' % (v, d & 0xffffffff, v)
    if Tg < 8:
        if role == 'AB':
            for li in range(3):
                items += [ld(2048 * li, vWA, S_WQ, sL[2 * li], 0), ld(None, vWA, S_WQ, sL[2 * li + 1], 1024, [adv(vWA, 64 * 3072)] if li == 2 and Tg < 7 else None)]
        else:
            d = 64 * 3584 if Tg < 7 else -7 * 64 * 3584
            items += [ld(0, vWA, S_WG, sL[0], 0), ld(None, vWA, S_WG, sL[1], 1024, [adv(vWA, d)])]
            items += [ld(2048, vWB, S_WU, sL[0], 0), ld(None, vWB, S_WU, sL[1], 1024, [adv(vWB, d)])]
            items += [ld(4096, vWC, S_WG, sL[2], 0, [adv(vWC, 64 * 3584)] if Tg < 7 else None)]
            items += [ld(5120, vWD, S_WU, sL[2], 0, [adv(vWD, 64 * 3584)] if Tg < 7 else None)]
    else:
        g, u = (vWB, vWC) if role == 'AB' else (vWA, vWB)
        a1 = lambda v: [adv(v, 64 * 3584)] if Tg < 15 else None
        items += [ld(0, g, S_WG, sG2[0], 0), ld(None, g, S_WG, sG2[1], 1024, a1(g))]
        items += [ld(2048, u, S_WU, sG2[0], 0), ld(None, u, S_WU, sG2[1], 1024, a1(u))]
    out = []; k = 0
    while k < len(items):
        f = items[k]
        if k + 1 < len(items) and getattr(items[k + 1], 'cont', False):
            g = items[k + 1]; out.append(lambda f=f, g=g: (f(), g())); k += 2
        else:
            out.append(f); k += 1
    return out, toks

def tiles_of(role, grp):
    if grp == 2: return [('m%d' % t, 0, 512, False) for t in range(4)]
    if role == 'AB':
        return [('q0', 0, 512, True), ('q1', 0, 512, True), ('q0', 2048, 512, True), ('q1', 2048, 512, True), ('q0', 4096, 512, False), ('q1', 4096, 512, False)]
    return [('m%d' % t, 0, 512, False) for t in range(4)] + [('h0', 4096, 256, False), ('h1', 4096, 256, False)]

def wf(S, j, G): return WF + (S & 1) * 4 * G + 4 * j

def tr_items(p, role, S, variants, ftok):
    grp = 1 if S < 32 else 2
    tl = tiles_of(role, grp); G = len(tl)
    items = []; blk = slot_base_const(S)
    for j, (var, lo, rds, sw) in enumerate(tl):
        ftok[(S, j)] = []
        for rd in range(2):
            const = blk + lo + rd * rds
            win, off = const >> 16, const & 0xffff
            b = wf(S, j, G) + 2 * rd
            def f(b=b, reg=variants[var][win], off=off, key=(S, j)):
                ftok[key].append(p.lg('ds_read_b64_tr_b16 a[%d:%d], v%d offset:%d' % (b, b + 1, reg, off)))
            items.append(f)
    return items

def norm_items(p, s, t):
    it = []
    for pr in range(2):
        r0, r1 = XF + 4 * s + 2 * pr, XF + 4 * s + 2 * pr + 1
        a0, a1, b0, b1 = t + 4 * pr, t + 4 * pr + 1, t + 4 * pr + 2, t + 4 * pr + 3
        seq = ['v_lshlrev_b32 v%d, 16, v%d' % (a0, r0), 'v_and_b32 v%d, s%d, v%d' % (a1, sMASK, r0),
               'v_lshlrev_b32 v%d, 16, v%d' % (b0, r1), 'v_and_b32 v%d, s%d, v%d' % (b1, sMASK, r1),
               'v_fma_f32 v%d, v%d, v%d, v%d' % (a0, a0, vRS, vNM), 'v_fma_f32 v%d, v%d, v%d, v%d' % (a1, a1, vRS, vNM),
               'v_fma_f32 v%d, v%d, v%d, v%d' % (b0, b0, vRS, vNM), 'v_fma_f32 v%d, v%d, v%d, v%d' % (b1, b1, vRS, vNM),
               'v_cvt_pk_bf16_f32 v%d, v%d, v%d' % (r0, a0, a1), 'v_cvt_pk_bf16_f32 v%d, v%d, v%d' % (r1, b0, b1)]
        it += [T(p, x) for x in seq]
    return it

def store_item(p, reg, soff, off, keep=None):
    def f():
        t = p.vm('buffer_store_dwordx4 v[%d:%d], v%d, %s, s%d offen %s%s' % (reg, reg + 3, vST, srd(S_WS), soff, ('offset:%d ' % off) if off else '', ST))
        if keep is not None: keep.append(t)
    f.is_vm = True
    return f

def mlp_epi_items(p, acc, in_agpr, t, soff, off, keep=None):
    it = []
    if in_agpr:
        for half in range(2):
            rr = range(4 * half, 4 * half + 4)
            for r in rr: it.append(T(p, 'v_accvgpr_read_b32 v%d, a%d' % (t + (r & 3), acc + r)))
            for r in rr: it.append(T(p, 'v_accvgpr_read_b32 v%d, a%d' % (t + 4 + (r & 3), acc + 8 + r)))
            for r in rr: it.append(T(p, 'v_max_f32 v%d, 0, v%d' % (t + (r & 3), t + (r & 3))))
            for r in rr: it.append(T(p, 'v_mul_f32 v%d, v%d, v%d' % (t + (r & 3), t + (r & 3), t + 4 + (r & 3))))
            for q in range(2): it.append(T(p, 'v_cvt_pk_bf16_f32 v%d, v%d, v%d' % (t + 8 + 2 * half + q, t + 2 * q, t + 2 * q + 1)))
    else:
        for r in range(8): it.append(T(p, 'v_max_f32 v%d, 0, v%d' % (acc + r, acc + r)))
        for r in range(8): it.append(T(p, 'v_mul_f32 v%d, v%d, v%d' % (acc + r, acc + r, acc + 8 + r)))
        for q in range(4): it.append(T(p, 'v_cvt_pk_bf16_f32 v%d, v%d, v%d' % (t + 8 + q, acc + 2 * q, acc + 2 * q + 1)))
    it.append(store_item(p, t + 8, soff, off, keep))
    return it

def phi_items(p, acc, t, dst):
    it = []
    for half in range(2):
        rr = list(range(4 * half, 4 * half + 4))
        for r in rr: it.append(T(p, 'v_accvgpr_read_b32 v%d, a%d' % (t + (r & 3), acc + r)))
        for r in rr: it.append(T(p, 'v_mul_f32 v%d, s%d, v%d' % (t + 4 + (r & 3), sLOG2E, t + (r & 3))))
        for r in rr: it.append(T(p, 'v_exp_f32 v%d, v%d clamp' % (t + 4 + (r & 3), t + 4 + (r & 3))))
        for r in rr: it.append(T(p, 'v_max_f32 v%d, s%d, v%d' % (t + (r & 3), sEPS, t + (r & 3))))
        for r in rr: it.append(T(p, 'v_add_f32 v%d, v%d, v%d' % (t + (r & 3), t + (r & 3), t + 4 + (r & 3))))
        for q in range(2): it.append(T(p, 'v_cvt_pk_bf16_f32 v%d, v%d, v%d' % (dst + 2 * half + q, t + 2 * q, t + 2 * q + 1)))
    return it

def pack_items(p, acc, t, dst):
    it = []
    for half in range(2):
        rr = list(range(4 * half, 4 * half + 4))
        for r in rr: it.append(T(p, 'v_accvgpr_read_b32 v%d, a%d' % (t + (r & 3), acc + r)))
        for q in range(2): it.append(T(p, 'v_cvt_pk_bf16_f32 v%d, v%d, v%d' % (dst + 2 * half + q, t + 2 * q, t + 2 * q + 1)))
    return it

class Mark:
    def __init__(self, fn): self.fn = fn
    def __call__(self): self.fn()

KVS = [4096, 10240, 16384, 22528]

def emit_flag(p, base, idx_sgpr):
    p('s_lshl_b32 s%d, s%d, 7' % (sT0, idx_sgpr)); p('s_add_u32 s%d, s%d, 0x%x' % (sT0, sT0, base))
    p('v_mov_b32 v%d, s%d' % (vT + 4, sNONCE)); p('v_mov_b32 v%d, 0' % (vT + 5))
    p('s_mov_b64 s[88:89], exec'); p('s_mov_b64 exec, 1')
    p('buffer_store_dword v%d, v%d, %s, s%d offen %s' % (vT + 4, vT + 5, srd(S_WS), sT0, ST))
    p('s_mov_b64 exec, s[88:89]')

def emit_poll(p, vaddr, soff, name):
    l0, l1 = p.newlabel('L_poll'), p.newlabel('L_pollok')
    p('s_mov_b32 s%d, 0' % sSPIN)
    p.label(l0)
    p('buffer_load_dword v%d, v%d, %s, s%d offen %s' % (vT + 4, vaddr, srd(S_WS), soff, LD))
    p('s_waitcnt vmcnt(0)')
    p('v_cmp_eq_u32 vcc, s%d, v%d' % (sNONCE, vT + 4))
    p('s_nop 1')
    p('s_cmp_eq_u64 vcc, -1')
    p('s_cbranch_scc1 %s' % l1)
    p('s_sleep 2')
    p('s_add_u32 s%d, s%d, 1' % (sSPIN, sSPIN)); p('s_cmp_lt_u32 s%d, 20000' % sSPIN)
    p('s_cbranch_scc1 %s' % l0)
    p.label(l1)
    p.vm_issued += 1; p.vm_done = p.vm_issued

def epilogue1_items(p, role, free_oct, kvp_toks):
    t = vT + 8
    if role == 'CD':
        pre = []
        for j in range(6):
            soff, off = (sHST1, 1024 * j) if j < 4 else (sHST1b, 1024 * (j - 4))
            tt = t + (j & 1) * 12
            pre += mlp_epi_items(p, ACC1 + 16 * j, True, tt, soff, off)
            pre.append(Mark(lambda j=j: free_oct.extend([ACC1 + 16 * j, ACC1 + 16 * j + 8])))
        return [pre]
    PK = vT + 16; VV = vT + 24 + 2; BS = vT + 32
    pre = []
    for pr in range(2):
        pre += phi_items(p, ACC1 + 16 * pr, t, PK) + phi_items(p, ACC1 + 16 * pr + 8, t, PK + 4)
        pre += pack_items(p, ACC1 + 32 + 16 * pr, t, VV - 2) + pack_items(p, ACC1 + 32 + 16 * pr + 8, t, VV + 2)
        da = ACC1 + 16 * pr; db = ACC1 + 32 + 16 * pr
        for hb, (d, msk) in enumerate(((da, sMLO), (db, sMHI))):
            for r in range(8):
                pre.append(T(p, 'v_cndmask_b32 v%d, v%d, v%d, s[%d:%d]' % (BS + r, vT + 7, VV - 2 + r, msk, msk + 1)))
            pre.append(T(p, 's_nop 1'))
            pre.append(T(p, 'v_mfma_f32_32x32x16_bf16 a[%d:%d], v[%d:%d], v[%d:%d], 0' % (d, d + 15, PK, PK + 3, BS, BS + 3)))
            pre.append(T(p, 'v_mfma_f32_32x32x16_bf16 a[%d:%d], v[%d:%d], v[%d:%d], a[%d:%d]' % (d, d + 15, PK + 4, PK + 7, BS + 4, BS + 7, d, d + 15)))
    def qhead(pr, hb):
        dst = PK + 4 * hb
        return phi_items(p, ACC1 + 64 + 16 * pr + 8 * hb, t, dst) + [store_item(p, dst, sPQ, 1024 * (2 * pr + hb)), Mark(lambda: free_oct.append(ACC1 + 64 + 16 * pr + 8 * hb))]
    pre += qhead(0, 0)
    KA = vT + 6
    pre.append(T(p, 'v_add_u32 v%d, s%d, v%d' % (KA, sWB, vST)))
    for hd in range(4):
        pr, hb = hd >> 1, hd & 1
        src = (ACC1 + 16 * pr) if hb == 0 else (ACC1 + 32 + 16 * pr + 8)
        for q in range(2):
            pre.append(lambda src=src, q=q, hd=hd: p.lg('ds_write_b128 v%d, a[%d:%d] offset:%d' % (KA, src + 4 * q, src + 4 * q + 3, KVS[hd] + q * 1024)))
    pre.append(Mark(lambda: free_oct.extend([ACC1 + 8 * k for k in range(8)])))
    post = []
    RA = vT + 6; RB = vT + 5
    rtok = []
    post.append(T(p, 's_mul_i32 s%d, s%d, 6144' % (sT0, sW)))
    post.append(T(p, 's_add_u32 s%d, s%d, 4096' % (sT0, sT0)))
    post.append(T(p, 'v_add_u32 v%d, s%d, v%d' % (RA, sT0, vST)))
    post.append(T(p, 'v_add_u32 v%d, 0x10000, v%d' % (RB, RA)))
    R = vT + 8
    def rd(wv, q, dst): return lambda: rtok.append(p.lg('ds_read_b128 v[%d:%d], v%d offset:%d' % (dst, dst + 3, RA if wv < 2 else RB, (wv & 1) * 32768 + q * 1024)))
    for q in range(2): post.append(rd(0, q, R + 4 * q))
    for q in range(2): post.append(rd(1, q, R + 8 + 4 * q))
    for q in range(2): post.append(rd(2, q, R + 16 + 4 * q))
    post.append(lambda: p.wait(rtok))
    for r in range(8): post.append(T(p, 'v_add_f32 v%d, v%d, v%d' % (R + r, R + r, R + 8 + r)))
    for q in range(2): post.append(rd(3, q, R + 8 + 4 * q))
    for r in range(8): post.append(T(p, 'v_add_f32 v%d, v%d, v%d' % (R + r, R + r, R + 16 + r)))
    post.append(lambda: p.wait(rtok))
    for r in range(8): post.append(T(p, 'v_add_f32 v%d, v%d, v%d' % (R + r, R + r, R + 8 + r)))
    for q in range(2): post.append(store_item(p, R + 4 * q, sKVP, 1024 * q, kvp_toks))
    post.append(T(p, 's_nop 1'))
    t2 = vT + 8
    rest = []
    for (pr, hb) in ((0, 1), (1, 0), (1, 1)): rest += qhead(pr, hb)
    return [pre, post + rest]

def interleave(p, mf, lists):
    n = len(mf); idx = [0] * len(lists)
    for j, m in enumerate(mf):
        for k, L in enumerate(lists):
            upto = (len(L) * (j + 1) + n - 1) // n
            while idx[k] < min(upto, len(L)):
                L[idx[k]](); idx[k] += 1
        m()

def build_role(p, role):
    later = p.later
    xit, xt = x_dma_items(p)
    su, variants = setup_items(p, role)
    su = later + su
    k = 0
    for n, f in enumerate(xit):
        f()
        upto = (len(su) * (n + 1) + len(xit) - 1) // len(xit)
        while k < min(upto, len(su)): su[k](); k += 1
    p.stamp(2)
    p('v_add_u32 v%d, s%d, v%d' % (vX0, sS2, vT2A)); p('v_add_u32 v%d, s%d, v%d' % (vX1, sS2, vT2B))
    ln1 = p.newlabel('L_n1')
    p('v_mov_b32 v%d, 0' % (vT + 16))
    p('s_or_b32 s%d, s2, s%d' % (sT1, sW)); p('s_cmp_lg_u32 s%d, 0' % sT1); p('s_cbranch_scc1 %s' % ln1)
    p('s_mov_b32 s%d, 0x%x' % (sT1, NONCE_OFF)); p('v_mov_b32 v%d, 0' % (vT + 16))
    p('buffer_load_dword v%d, v%d, %s, s%d offen %s' % (vT + 17, vT + 16, srd(S_WS), sT1, LD))
    p.label(ln1)
    n_at = p.vm_issued
    p('s_mul_i32 s%d, s%d, 6144' % (sT0, sW)); p('s_add_u32 s%d, s%d, %d' % (sT0, sT0, SPARE))
    stok = {}
    it, stok[0] = dma_stage_items(p, role, 0)
    for f in it: f()
    xa = vT + 8
    vS, vQ = vT + 12, vT + 13
    for r in (vS, vQ, vS + 2, vQ + 2): p('v_mov_b32 v%d, 0' % r)
    free_after = {1: 1, 2: 2, 4: 3, 5: 4, 7: 5}
    rt = {}
    dq = []
    def stats(c):
        p.wait(rt[c])
        if c in free_after:
            it, stok[free_after[c]] = dma_stage_items(p, role, free_after[c]); dq.extend(it)
        for r in range(16):
            reg = XF + 16 * c + r; o = 2 * (r & 1)
            p('v_dot2_f32_bf16 v%d, v%d, s%d, v%d' % (vS + o, reg, sONES, vS + o))
            p('v_dot2_f32_bf16 v%d, v%d, v%d, v%d' % (vQ + o, reg, reg, vQ + o))
            if r % 8 == 7 and dq: dq.pop(0)()
    for c in range(8):
        p.wait(xt[c])
        rt[c] = [p.lg('ds_read_b128 %s, v%d offset:%d' % (xf(4 * c + ss), xa + ss, 4096 * c)) for ss in range(4)]
        if c > 0: stats(c - 1)
    stats(7)
    p.stamp(3)
    ln2 = p.newlabel('L_n2')
    p('s_or_b32 s%d, s2, s%d' % (sT1, sW)); p('s_cmp_lg_u32 s%d, 0' % sT1); p('s_cbranch_scc1 %s' % ln2)
    p('s_waitcnt vmcnt(%d)' % min(63, p.vm_issued - n_at))
    p('v_add_u32 v%d, 64, v%d' % (vT + 18, vT + 17)); p('v_or_b32 v%d, 1, v%d' % (vT + 18, vT + 18))
    p('s_mov_b32 s%d, 0x%x' % (sT1, NONCE_OFF))
    p('s_mov_b64 s[88:89], exec'); p('s_mov_b64 exec, 1')
    p('buffer_store_dword v%d, v%d, %s, 0 offen %s' % (vT + 18, vT + 16, srd(S_DBG), ST))
    p('buffer_store_dword v%d, v%d, %s, s%d offen %s' % (vT + 18, vT + 16, srd(S_WS), sT1, ST))
    p('s_mov_b64 exec, s[88:89]')
    p.label(ln2)
    p('v_add_f32 v%d, v%d, v%d' % (vS, vS, vS + 2)); p('v_add_f32 v%d, v%d, v%d' % (vQ, vQ, vQ + 2))
    p('v_mov_b32 v%d, v%d' % (vS + 2, vS)); p('v_mov_b32 v%d, v%d' % (vQ + 2, vQ))
    p('s_nop 1')
    p('v_permlane32_swap_b32 v%d, v%d' % (vS, vS + 2)); p('v_permlane32_swap_b32 v%d, v%d' % (vQ, vQ + 2))
    p('s_nop 1')
    p('v_add_f32 v%d, v%d, v%d' % (vS, vS, vS + 2)); p('v_add_f32 v%d, v%d, v%d' % (vQ, vQ, vQ + 2))
    p('v_mul_f32 v%d, 0x3b000000, v%d' % (vS, vS)); p('v_mul_f32 v%d, 0x3b000000, v%d' % (vQ, vQ))
    p('v_fma_f32 v%d, -v%d, v%d, v%d' % (vQ, vS, vS, vQ))
    p('v_max_f32 v%d, 0, v%d' % (vQ, vQ))
    p('v_add_f32 v%d, 0x3727c5ac, v%d' % (vQ, vQ))
    p('v_rsq_f32 v%d, v%d' % (vRS, vQ))
    p('s_nop 0')
    p('v_mul_f32 v%d, v%d, v%d' % (vNM, vS, vRS)); p('v_sub_f32 v%d, 0, v%d' % (vNM, vNM))
    for f in norm_items(p, 0, vT): f()
    p.wait(stok[0]); p('s_barrier')
    p.stamp(4)
    ftok = {}
    for f in tr_items(p, role, 0, variants, ftok): f()

    free_oct = [160 + 8 * k for k in range(12)]
    w2_oct = {}
    w2 = dict(next_dma=0, next_tr=0, dtok={}, dS={}, slot_free_at=[4, 4, 4, 4])
    w2_lds = {}
    wo_tok = {}
    def w2_dma_items(step, slot):
        toks = w2['dtok'].setdefault(step, [])
        def f0():
            p('s_add_u32 m0, s%d, %d' % (sS2, 2048 * slot)); p('s_nop 0')
            toks.append(p.vm('buffer_load_dwordx4 v%d, %s, s%d offen lds' % (vD2, srd(S_WD), sWD0)))
        def f1():
            toks.append(p.vm('buffer_load_dwordx4 v%d, %s, s%d offen offset:1024 lds' % (vD2, srd(S_WD), sWD1)))
            p('s_add_u32 s%d, s%d, 16384' % (sWD0, sWD0)); p('s_add_u32 s%d, s%d, 16384' % (sWD1, sWD1))
        return [lambda: (f0(), f1())]
    def w2_tr_items(step, slot, octb):
        it = []
        for nt, reg in enumerate((vX0, vX1)):
            for rd in range(2):
                b = octb + 4 * nt + 2 * rd
                def f(b=b, reg=reg, off=2048 * slot + 1024 * rd, first=(nt == 0 and rd == 0)):
                    if first: p.wait(w2['dtok'][step])
                    w2.setdefault('ttok', {}).setdefault(step, []).append(p.lg('ds_read_b64_tr_b16 a[%d:%d], v%d offset:%d' % (b, b + 1, reg, off)))
                it.append(f)
        return it
    WO_SLOT = [0, 2048, 6144, 8192, 12288, 14336, 18432, 20480]
    WO_AT = [52, 52, 52, 52, 56, 56, 60, 60]
    def wo_dma_items(hh):
        toks = wo_tok.setdefault(hh, [])
        def f0():
            p('s_add_u32 m0, s%d, %d' % (sWB, WO_SLOT[hh])); p('s_nop 0')
            toks.append(p.vm('buffer_load_dwordx4 v%d, %s, s%d offen lds' % (vD2, srd(S_WO), sWO0)))
        def f1():
            toks.append(p.vm('buffer_load_dwordx4 v%d, %s, s%d offen offset:1024 lds' % (vD2, srd(S_WO), sWO1)))
            p('s_add_u32 s%d, s%d, 16384' % (sWO0, sWO0)); p('s_add_u32 s%d, s%d, 16384' % (sWO1, sWO1))
        return [lambda: (f0(), f1())]

    kvp_toks = []
    phases = epilogue1_items(p, role, free_oct, kvp_toks)
    cur_phase = 0; phase_ready = True; phase_done_S = -1
    dmaq = dq
    w2q = []
    wo_next = 0
    kvp_flagged = False
    nonce_done = False
    for S in range(64):
        grp = 1 if S < 32 else 2
        tl = tiles_of(role, grp); G = len(tl); s = S & 31
        def mk(j, S=S, s=s, tl=tl, G=G, grp=grp):
            var, lo, rds, sw = tl[j]
            b = wf(S, j, G); W = 'a[%d:%d]' % (b, b + 3)
            if grp == 1:
                d = 'a[%d:%d]' % (ACC1 + 16 * j, ACC1 + 16 * j + 15); c0 = '0'
                if role == 'AB' and j in (0, 1, 4, 5): c0 = 'a[%d:%d]' % (EPSB, EPSB + 15)
            else:
                d = 'v[%d:%d]' % (ACC2 + 16 * j, ACC2 + 16 * j + 15); c0 = '0'
            c = c0 if s == 0 else d
            A, B = (xf(s), W) if sw else (W, xf(s))
            def f():
                h = G // 2
                if j % h == 0: p.wait([t for jj in range(j, j + h) for t in ftok[(S, jj)]])
                p('v_mfma_f32_32x32x16_bf16 %s, %s, %s, %s' % (d, A, B, c))
            return f
        mf = [mk(j) for j in range(G)]
        if S == 32: p.stamp(5)
        p.stamp(100 + S)
        if S == 1: free_oct.extend([EPSB, EPSB + 8])
        if S == 33: free_oct.extend([WF + 32, WF + 40])
        mf[0]()
        barrier_here = (S + 1 < 64 and (S + 1) % 4 == 0)
        if barrier_here:
            Tn = (S + 1) >> 2
            toks = list(stok[Tn])
            flag_kvp = (role == 'AB' and kvp_toks and len(kvp_toks) == 2 and not kvp_flagged and S >= kvp_S + 4)
            if flag_kvp: toks += kvp_toks
            w = p.need(toks)
            p('s_waitcnt lgkmcnt(0)' + ((' ' + w.split(' ', 1)[1]) if w else '')); p.lg_done = p.lg_issued
            p('s_barrier')
            if phase_done_S >= 0 and phase_done_S < S and cur_phase + 1 < len(phases):
                cur_phase += 1; phase_done_S = -1
            if flag_kvp:
                p('s_lshl_b32 s%d, s%d, 4' % (sT1, sU)); p('s_add_u32 s%d, s%d, s%d' % (sT1, sT1, sI))
                uniform_flag(p, FLG_KVP, sT1)
                kvp_flagged = True
            if S == 3:
                la = p.newlabel('L_nw')
                p('s_cmp_lg_u32 s%d, 0' % sW); p('s_cbranch_scc1 %s' % la)
                p('v_mov_b32 v%d, 0' % (vT + 16))
                p('buffer_load_dword v%d, v%d, %s, 0 offen %s' % (vT + 19, vT + 16, srd(S_DBG), LD))
                p.label(la)
                n_at2 = p.vm_issued
            if S == 7:
                la, lp, lok = p.newlabel('L_nw'), p.newlabel('L_np'), p.newlabel('L_nok')
                p('s_cmp_lg_u32 s%d, 0' % sW); p('s_cbranch_scc1 %s' % la)
                p('s_waitcnt vmcnt(%d)' % min(63, p.vm_issued - n_at2))
                p('s_mov_b32 s%d, 0' % sSPIN)
                p.label(lp)
                p('v_readfirstlane_b32 s%d, v%d' % (sT1, vT + 19))
                p('s_nop 1')
                p('s_cmp_lg_u32 s%d, 0' % sT1); p('s_cbranch_scc1 %s' % lok)
                p('s_sleep 2')
                p('buffer_load_dword v%d, v%d, %s, 0 offen %s' % (vT + 19, vT + 16, srd(S_DBG), LD))
                p('s_waitcnt vmcnt(0)')
                p('s_add_u32 s%d, s%d, 1' % (sSPIN, sSPIN)); p('s_cmp_lt_u32 s%d, 20000' % sSPIN); p('s_cbranch_scc1 %s' % lp)
                p.label(lok)
                p('v_mov_b32 v%d, 30720' % (vT + 16))
                p('ds_write_b32 v%d, v%d' % (vT + 16, vT + 19))
                p.label(la)
                p('s_waitcnt lgkmcnt(0)'); p.lg_done = p.lg_issued
            if S == 11:
                p('v_mov_b32 v%d, 30720' % (vT + 16))
                tk = p.lg('ds_read_b32 v%d, v%d' % (vT + 17, vT + 16)); p.wait(tk)
                p('v_readfirstlane_b32 s%d, v%d' % (sNONCE, vT + 17))
            if (S >> 2) + 5 <= 15 and (S >> 2) + 5 >= 6:
                it, stok[(S >> 2) + 5] = dma_stage_items(p, role, (S >> 2) + 5); dmaq.extend(it)
        L_tr = tr_items(p, role, S + 1, variants, ftok) if S + 1 < 64 else []
        L_norm = norm_items(p, s + 1, vT) if (grp == 1 and s + 1 < 32) else []
        if S == 31 and role == 'AB': L_norm = [T(p, 'v_mov_b32 v%d, s%d' % (vT + 7, sONES))]
        budget = 2 if grp == 1 else 1
        L_dma = []
        while dmaq and len(L_dma) < 1 + (1 if len(dmaq) > 4 else 0): L_dma.append(dmaq.pop(0))
        if S >= 4 and w2['next_dma'] < 28 and not w2q:
            step = w2['next_dma']; slot = step % 4
            prev = step - 4
            if (prev < 0 or (prev in w2_oct and prev in w2.get('ttok', {}) and len(w2['ttok'][prev]) == 4)):
                if prev >= 0:
                    w2q.append(lambda prev=prev: p.wait(w2['ttok'][prev]))
                w2q += w2_dma_items(step, slot); w2['dS'][step] = S; w2['next_dma'] += 1
        while w2q and len(L_dma) < budget: L_dma.append(w2q.pop(0))
        if wo_next < 8 and S >= WO_AT[wo_next]:
            L_dma += wo_dma_items(wo_next); wo_next += 1
        L_w2tr = []
        st = w2['next_tr']
        if st < w2['next_dma'] and len(w2['dtok'].get(st, [])) == 2 and S >= w2['dS'][st] + 5 and free_oct:
            ob = free_oct.pop(0); w2_oct[st] = ob
            L_w2tr = w2_tr_items(st, st % 4, ob); w2['next_tr'] += 1
        L_epi = []
        if grp == 2 and cur_phase < len(phases) and phases[cur_phase]:
            ph = phases[cur_phase]
            if role == 'AB': last = 46 if cur_phase == 0 else 62
            else: last = 56
            left = max(1, last - S + 1)
            n = (len(ph) + left - 1) // left
            L_epi = ph[:n]; del ph[:n]
            if not ph: phase_done_S = S
            if role == 'AB' and cur_phase == 1 and len(kvp_toks) < 2: kvp_S = S
        interleave(p, mf[1:], [L_tr, L_norm, L_epi, L_w2tr, L_dma])
    for ph in phases: assert not ph, len(ph)
    assert not dmaq and not w2q, (len(dmaq), len(w2q))
    assert wo_next == 8
    if role == 'AB': assert kvp_flagged
    p.stamp(6)
    p('s_nop 7'); p('s_nop 3')
    hst = []
    for j in range(4):
        for f in mlp_epi_items(p, ACC2 + 16 * j, False, vT + 12 * (j & 1), sHST2, 1024 * j, hst): f()
    p.stamp(7)
    info = dict(w2=w2, w2_oct=w2_oct, free_oct=free_oct, wo_tok=wo_tok, WO_SLOT=WO_SLOT, hst=hst, w2_dma_items=w2_dma_items, w2_tr_items=w2_tr_items)
    return info


def uniform_flag(p, base, idx_sgpr):
    la = p.newlabel('L_fa')
    p('s_cmp_lg_u32 s%d, 0' % sW); p('s_cbranch_scc1 %s' % la)
    emit_flag(p, base, idx_sgpr)
    p.label(la)

def phase2(p, role, info):
    from k2 import final_reduce
    w2, w2_oct, free_oct = info['w2'], info['w2_oct'], info['free_oct']
    sH0, sH1, sPQ0, sPQ1, sKZ, sF = sL[0], sL[1], sL[2], sL[3], sL[4], sL[5]
    p.wait(info['hst'][-1]); p('s_barrier')
    p('s_lshl_b32 s%d, s%d, 2' % (sT1, sQD)); p('s_add_u32 s%d, s%d, s%d' % (sT1, sT1, sMEM))
    p('s_lshl_b32 s%d, s%d, 4' % (sT2, sI)); p('s_add_u32 s%d, s%d, s%d' % (sT1, sT1, sT2))
    uniform_flag(p, FLG_H, sT1)
    p.stamp(8)
    p('s_mul_i32 s%d, s%d, %d' % (sH0, sRT, 2 * 112 * 1024)); p('s_mul_i32 s%d, s%d, %d' % (sT0, sW, 28 * 1024)); p('s_add_u32 s%d, s%d, s%d' % (sH0, sH0, sT0))
    p('s_add_u32 s%d, s%d, %d' % (sH1, sH0, 112 * 1024))
    p('s_lshl_b32 s%d, s%d, 16' % (sPQ0, sRT)); p('s_lshl_b32 s%d, s%d, 13' % (sT0, sW)); p('s_add_u32 s%d, s%d, s%d' % (sPQ0, sPQ0, sT0)); p('s_add_u32 s%d, s%d, 0x%x' % (sPQ0, sPQ0, PQ_OFF))
    p('s_add_u32 s%d, s%d, 32768' % (sPQ1, sPQ0))
    p('s_add_u32 s%d, s%d, 0x%x' % (sKZ, sT0, KVZ_OFF))
    def pump(final=False):
        st = w2['next_tr']
        if st < w2['next_dma'] and len(w2['dtok'].get(st, [])) == 2:
            ob = free_oct.pop(0); w2_oct[st] = ob
            for f in info['w2_tr_items'](st, st % 4, ob): f()
            w2['next_tr'] += 1
            return True
        return False
    def pump_dma():
        step = w2['next_dma']
        if step < 28 and (step - 4 < w2['next_tr']):
            if step >= 4: p.wait(w2['ttok'][step - 4])
            for f in info['w2_dma_items'](step, step % 4): f()
            w2['next_dma'] += 1
            return True
        return False
    while pump_dma(): pass
    KR = vT + 8
    if role == 'AB':
        p('v_and_b32 v%d, 15, v%d' % (vT + 6, vL)); p('v_lshlrev_b32 v%d, 7, v%d' % (vT + 6, vT + 6))
        p('s_lshl_b32 s%d, s%d, 11' % (sF, sU)); p('s_add_u32 s%d, s%d, 0x%x' % (sF, sF, FLG_KVP))
        emit_poll(p, vT + 6, sF, 'kvp')
        p('v_lshrrev_b32 v%d, 3, v%d' % (vT + 6, vL)); p('v_lshlrev_b32 v%d, 12, v%d' % (vT + 6, vT + 6))
        p('v_bfe_u32 v%d, v%d, 2, 1' % (vT + 7, vL)); p('v_lshl_add_u32 v%d, v%d, 10, v%d' % (vT + 6, vT + 7, vT + 6))
        p('v_and_b32 v%d, 3, v%d' % (vT + 7, vL)); p('v_lshl_add_u32 v%d, v%d, 4, v%d' % (vT + 6, vT + 7, vT + 6))
        p('s_lshl_b32 s%d, s%d, 2' % (sF, sU)); p('s_add_u32 s%d, s%d, s%d' % (sF, sF, sW))
        p('s_lshl_b32 s%d, s%d, 15' % (sT0, sF)); p('s_lshl_b32 s%d, s%d, 6' % (sT1, sI)); p('s_add_u32 s%d, s%d, s%d' % (sT0, sT0, sT1)); p('s_add_u32 s%d, s%d, 0x%x' % (sT0, sT0, KVP_OFF))
        krt = [p.vm('buffer_load_dwordx4 v[%d:%d], v%d, %s, s%d offen %s%s' % (KR + 4 * k, KR + 4 * k + 3, vT + 6, srd(S_WS), sT0, 'offset:2048 ' if k else '', LD)) for k in range(2)]
    while pump(): pump_dma()
    p('v_and_b32 v%d, 3, v%d' % (vT + 16, vL)); p('v_lshlrev_b32 v%d, 7, v%d' % (vT + 16, vT + 16))
    p('s_lshr_b32 s%d, s%d, 1' % (sT0, sRT)); p('s_lshl_b32 s%d, s%d, 4' % (sT0, sT0)); p('s_lshl_b32 s%d, s%d, 2' % (sT1, sW)); p('s_add_u32 s%d, s%d, s%d' % (sT0, sT0, sT1))
    p('s_lshl_b32 s%d, s%d, 7' % (sT0, sT0)); p('s_add_u32 s%d, s%d, 0x%x' % (sT2, sT0, FLG_H))
    if role == 'AB':
        p.wait(krt)
        for r in range(4): p('v_add_f32 v%d, v%d, v%d' % (KR + r, KR + r, KR + 4 + r))
        for r in range(4): p('v_mov_b32 v%d, v%d' % (KR + 4 + r, KR + r))
        p('s_nop 1')
        for r in range(4): p('v_permlane32_swap_b32 v%d, v%d' % (KR + r, KR + 4 + r))
        p('s_nop 1')
        for r in range(4): p('v_add_f32 v%d, v%d, v%d' % (KR + r, KR + r, KR + 4 + r))
        for r in range(4): p('v_mov_b32 v%d, v%d' % (KR + 4 + r, KR + r))
        p('s_nop 1')
        for r in range(4): p('v_permlane16_swap_b32 v%d, v%d' % (KR + r, KR + 4 + r))
        p('s_nop 1')
        for r in range(4): p('v_add_f32 v%d, v%d, v%d' % (KR + r, KR + r, KR + 4 + r))
        p('s_nop 1')
        for r in range(4): p('v_add_f32_dpp v%d, v%d, v%d row_ror:8 row_mask:0xf bank_mask:0xf' % (KR + 4 + r, KR + r, KR + r))
        p('v_cvt_pk_bf16_f32 v%d, v%d, v%d' % (KR, KR + 4, KR + 5)); p('v_cvt_pk_bf16_f32 v%d, v%d, v%d' % (KR + 1, KR + 6, KR + 7))
        p('v_and_b32 v%d, 3, v%d' % (vT + 7, vL)); p('v_lshlrev_b32 v%d, 4, v%d' % (vT + 6, vT + 7))
        p('v_bfe_u32 v%d, v%d, 2, 1' % (vT + 7, vL)); p('v_lshl_add_u32 v%d, v%d, 3, v%d' % (vT + 6, vT + 7, vT + 6))
        p('s_lshl_b32 s%d, s%d, 10' % (sT0, sF)); p('s_lshl_b32 s%d, s%d, 6' % (sT1, sI)); p('s_add_u32 s%d, s%d, s%d' % (sT0, sT0, sT1)); p('s_add_u32 s%d, s%d, 0x%x' % (sT0, sT0, KVZ_OFF))
        p('s_mov_b64 s[88:89], exec'); p('s_mov_b64 exec, 0xff')
        kzs = p.vm('buffer_store_dwordx2 v[%d:%d], v%d, %s, s%d offen %s' % (KR, KR + 1, vT + 6, srd(S_WS), sT0, ST))
        p('s_mov_b64 exec, s[88:89]')
    emit_poll(p, vT + 16, sT2, 'h')
    p.stamp(9)
    if role == 'AB':
        p('s_barrier')
        p('s_lshl_b32 s%d, s%d, 4' % (sT1, sU)); p('s_add_u32 s%d, s%d, s%d' % (sT1, sT1, sI))
        uniform_flag(p, FLG_KVZ, sT1)
    while w2['next_tr'] < 28:
        if not pump(): pump_dma()
    NR = 16; HB = XF
    ht = {}
    def ld_h(fs):
        ht[fs] = []
        for mt, so in enumerate((sH0, sH1)):
            r = HB + 8 * (fs % NR) + 4 * mt
            ht[fs].append(p.vm('buffer_load_dwordx4 v[%d:%d], v%d, %s, s%d offen %s' % (r, r + 3, vST, srd(S_WS), so, LD)))
            p('s_add_u32 s%d, s%d, 1024' % (so, so))
    for fs in range(NR): ld_h(fs)
    ACC = ACC2
    PQR, KZR, ND = XF, XF + 64, XF + 96
    pqt, kzt = {}, {}
    for fs in range(28):
        p.wait(ht[fs] + w2['ttok'][fs])
        ob = w2_oct[fs]
        for nt in range(2):
            for mt in range(2):
                d = ACC + 16 * (2 * nt + mt); r = HB + 8 * (fs % NR) + 4 * mt
                p('v_mfma_f32_32x32x16_bf16 v[%d:%d], a[%d:%d], v[%d:%d], %s' % (d, d + 15, ob + 4 * nt, ob + 4 * nt + 3, r, r + 3, '0' if fs == 0 else 'v[%d:%d]' % (d, d + 15)))
        if fs + NR < 28: ld_h(fs + NR)
    p.stamp(10)
    p('v_and_b32 v%d, 31, v%d' % (vT + 16, vL)); p('v_lshlrev_b32 v%d, 7, v%d' % (vT + 16, vT + 16))
    p('s_lshl_b32 s%d, s%d, 12' % (sT2, sW)); p('s_add_u32 s%d, s%d, 0x%x' % (sT2, sT2, FLG_KVZ))
    for hh in range(8):
        for mt, so in enumerate((sPQ0, sPQ1)):
            r = PQR + 8 * hh + 4 * mt
            pqt[(hh, mt)] = p.vm('buffer_load_dwordx4 v[%d:%d], v%d, %s, s%d offen %s' % (r, r + 3, vST, srd(S_WS), so, LD)); p('s_add_u32 s%d, s%d, 1024' % (so, so))
    emit_poll(p, vT + 16, sT2, 'kvz')
    for hh in range(8):
        kzt[hh] = p.vm('buffer_load_dwordx4 v[%d:%d], v%d, %s, s%d offen %s' % (KZR + 4 * hh, KZR + 4 * hh + 3, vST, srd(S_WS), sKZ, LD)); p('s_add_u32 s%d, s%d, 1024' % (sKZ, sKZ))
    p('s_sub_u32 s%d, s%d, s%d' % (sT0, sWB, sS2))
    p('v_add_u32 v%d, s%d, v%d' % (vX0, sT0, vX0)); p('v_add_u32 v%d, s%d, v%d' % (vX1, sT0, vX1))
    FB = 0
    def tr4(off, fb):
        t = []
        for nt, reg in enumerate((vX0, vX1)):
            for rd in range(2):
                b = fb + 4 * nt + 2 * rd
                t.append(p.lg('ds_read_b64_tr_b16 a[%d:%d], v%d offset:%d' % (b, b + 1, reg, off + 1024 * rd)))
        return t
    sEPSr = sEPS
    p('s_nop 7')
    for hh in range(8):
        p.wait(info['wo_tok'][hh]); f = tr4(info['WO_SLOT'][hh], FB + 8 * (hh & 1))
        p.wait([kzt[hh]])
        for mt in range(2):
            d = ND + 16 * mt
            p('v_mfma_f32_32x32x16_bf16 v[%d:%d], v[%d:%d], v[%d:%d], 0' % (d, d + 15, KZR + 4 * hh, KZR + 4 * hh + 3, PQR + 8 * hh + 4 * mt, PQR + 8 * hh + 4 * mt + 3))
        p('s_nop 7'); p('s_nop 3')
        for mt in range(2):
            d = ND + 16 * mt
            num, den = (d, d + 8) if hh % 2 == 0 else (d + 8, d)
            t = vT + 8 * mt
            p('v_add_f32 v%d, s%d, v%d' % (t + 4, sEPSr, den)); p('v_rcp_f32 v%d, v%d' % (t + 4, t + 4)); p('s_nop 0')
            for r in range(8): p('v_mul_f32 v%d, v%d, v%d' % (num + r, num + r, t + 4))
            for q in range(4): p('v_cvt_pk_bf16_f32 v%d, v%d, v%d' % (t + q, num + 2 * q, num + 2 * q + 1))
        p.wait(f)
        p('s_nop 1')
        fb = FB + 8 * (hh & 1)
        for nt in range(2):
            for mt in range(2):
                d = ACC + 16 * (2 * nt + mt); t = vT + 8 * mt
                p('v_mfma_f32_32x32x16_bf16 v[%d:%d], a[%d:%d], v[%d:%d], v[%d:%d]' % (d, d + 15, fb + 4 * nt, fb + 4 * nt + 3, t, t + 3, d, d + 15))
    p.stamp(11)
    p('s_nop 7'); p('s_nop 3')
    final_reduce(p, ACC, sRT, sCT, sW, srd(S_X), srd(S_OUT), vL, vT, sT0, sT1)
    p.stamp(12)
    if p.stamps_on:
        p('s_waitcnt vmcnt(0)'); p.stamp_rt(13)
        p.stamp_dump(srd(S_WS), 0x8000000, 14)

def build(stamps=None):
    p = Prog(); p.stamps_on = stamps is not None
    if stamps: p.stamp_map = {i: k for k, i in enumerate(stamps)}
    p('s_cmp_ge_u32 s2, 256'); p('s_cbranch_scc1 L_end')
    p.later = prologue(p)
    pro = list(p.ins)
    p('s_cmp_ge_u32 s%d, 2' % sMEM); p('s_cbranch_scc1 L_cd')
    st = (p.vm_issued, p.vm_done, p.lg_issued, p.lg_done)
    paths = {}
    for role in ('AB', 'CD'):
        if role == 'CD':
            p.label('L_cd'); p.vm_issued, p.vm_done, p.lg_issued, p.lg_done = st
        n0 = len(p.ins)
        info = build_role(p, role)
        phase2(p, role, info)
        paths[role] = p.ins[n0:]
        if role == 'AB': p('s_branch L_end')
    p.label('L_end')
    probs = []
    for role in paths:
        probs += check_hazards(pro + paths[role], role) + check_waits(pro + paths[role], 'w' + role)
    return p, probs

if __name__ == '__main__':
    sys.path.insert(0, 'dev')
    from asmlib import make_file
    stamps = [int(x) for x in sys.argv[2].split(',')] if len(sys.argv) > 2 else None
    p, probs = build(stamps)
    for x in probs[:30]: print(x)
    print('problems:', len(probs), 'regs', maxregs(p.ins), 'n', len(p.ins))
    ks = [dict(name=NAME, body=p.text(), grid=(256, 1, 1), block=(256, 1, 1), lds=163840, vgpr=512, accum=256, sgpr=102)]
    open(sys.argv[1], 'w').write(make_file(ks, single=True))
```

```python
import re

class Tok:
    __slots__ = ('kind', 'seq', 'done')
    def __init__(self, kind, seq):
        self.kind = kind; self.seq = seq; self.done = False

class Prog:
    def __init__(self):
        self.ins = []
        self.vm_issued = 0
        self.vm_done = 0
        self.lg_issued = 0
        self.lg_done = 0
        self.nlab = 0
    def __call__(self, s):
        for l in s.split('\n'):
            l = l.strip()
            if l: self.ins.append(l)
    def label(self, n): self.ins.append(n + ':')
    def newlabel(self, p='L'):
        self.nlab += 1; return '%s%d' % (p, self.nlab)
    def c(self, s): self.ins.append('; ' + s)
    def vm(self, s):
        self(s); t = Tok('vm', self.vm_issued); self.vm_issued += 1; return t
    def lg(self, s):
        self(s); t = Tok('lg', self.lg_issued); self.lg_issued += 1; return t
    def need(self, toks):
        if isinstance(toks, Tok): toks = [toks]
        vmx = max([t.seq for t in toks if t is not None and t.kind == 'vm'], default=-1)
        lgx = max([t.seq for t in toks if t is not None and t.kind == 'lg'], default=-1)
        parts = []
        if vmx >= self.vm_done:
            n = min(self.vm_issued - 1 - vmx, 63)
            parts.append('vmcnt(%d)' % n); self.vm_done = max(self.vm_done, self.vm_issued - n)
        if lgx >= self.lg_done:
            n = min(self.lg_issued - 1 - lgx, 15)
            parts.append('lgkmcnt(%d)' % n); self.lg_done = max(self.lg_done, self.lg_issued - n)
        return ('s_waitcnt ' + ' '.join(parts)) if parts else None
    def wait(self, toks):
        w = self.need(toks)
        if w: self(w)
    def wait_all(self, vm=True, lg=True):
        parts = []
        if vm: parts.append('vmcnt(0)'); self.vm_done = self.vm_issued
        if lg: parts.append('lgkmcnt(0)'); self.lg_done = self.lg_issued
        self('s_waitcnt ' + ' '.join(parts))
    stamps_on = False
    stamp_map = None
    def _slot(self, i):
        if self.stamp_map is None: return i
        return self.stamp_map.get(i)
    def stamp(self, i):
        k = self._slot(i)
        if self.stamps_on and k is not None: self('s_memtime s[%d:%d]' % (70 + 2 * k, 71 + 2 * k))
    def stamp_rt(self, i):
        k = self._slot(i)
        if self.stamps_on and k is not None: self('s_memrealtime s[%d:%d]' % (70 + 2 * k, 71 + 2 * k))
    def stamp_dump(self, srd, area, n, vtmp=8, nw=4):
        if not self.stamps_on: return
        if self.stamp_map is not None: n = len(self.stamp_map)
        self('s_waitcnt lgkmcnt(0)')
        self('v_lshrrev_b32 v%d, 6, v0' % vtmp)
        self('s_lshl_b32 s3, s2, %d' % (2 if nw == 4 else 3)); self('v_add_u32 v%d, s3, v%d' % (vtmp, vtmp)); self('v_lshlrev_b32 v%d, 6, v%d' % (vtmp, vtmp))
        self('s_mov_b32 s3, 0x%x' % area)
        for i in range(n):
            self('v_mov_b32 v%d, s%d' % (vtmp + 1, 70 + 2 * i))
            self('buffer_store_dword v%d, v%d, %s, s3 offen offset:%d' % (vtmp + 1, vtmp, srd, 4 * i))
        self('s_waitcnt vmcnt(0)')
    def text(self):
        out = []
        for l in self.ins:
            out.append(l if l.endswith(':') else '    ' + l)
        return '\n'.join(out) + '\n'

REG = re.compile(r'^(-|\|)?(abs\()?([vas])(\d+|\[(\d+):(\d+)\])\)?\|?$')
def regs_of(op):
    op = op.strip()
    if op in ('vcc',): return [('s', 106), ('s', 107)]
    if op in ('vcc_lo',): return [('s', 106)]
    if op in ('exec',): return [('s', 126), ('s', 127)]
    if op == 'm0': return [('s', 124)]
    m = REG.match(op)
    if not m: return []
    f = m.group(3)
    if m.group(5) is not None:
        return [(f, i) for i in range(int(m.group(5)), int(m.group(6)) + 1)]
    return [(f, int(m.group(4)))]

TRANS = ('v_exp_f32', 'v_log_f32', 'v_rcp_f32', 'v_rsq_f32', 'v_sqrt_f32', 'v_sin_f32', 'v_cos_f32')
def parse(line):
    line = line.split(';')[0].strip()
    if not line or line.endswith(':') or line.startswith('.'): return None
    sp = line.split(None, 1)
    mn = sp[0]
    rest = sp[1] if len(sp) > 1 else ''
    ops = [o.strip() for o in re.split(r',(?![^\[]*\])', rest)] if rest else []
    mods = ''
    if ops:
        last = ops[-1].split()
        if last:
            ops[-1] = last[0]; mods = ' '.join(last[1:])
    d = dict(mn=mn, ops=ops, mods=mods, w=[], r=[], cls='other', text=line)
    R = lambda i: regs_of(ops[i]) if i < len(ops) else []
    allr = lambda s: [x for i in range(s, len(ops)) for x in R(i)]
    if mn.startswith('v_mfma'):
        d['cls'] = 'mfma'; d['w'] = R(0); d['a'] = R(1); d['b'] = R(2); d['cc'] = R(3); d['r'] = d['a'] + d['b'] + d['cc']
        d['passes'] = 8 if '32x32' in mn else 4
    elif mn.startswith('v_cmp'):
        d['cls'] = 'valu'; d['w'] = R(0); d['r'] = allr(1)
        if mn.startswith('v_cmpx'): d['w'] += regs_of('exec')
    elif mn.startswith('v_readfirstlane') or mn.startswith('v_readlane'):
        d['cls'] = 'valu'; d['w'] = R(0); d['r'] = allr(1); d['rl'] = True
    elif mn.startswith('v_permlane'):
        d['cls'] = 'valu'; d['w'] = R(0) + R(1); d['r'] = R(0) + R(1); d['perm'] = True
    elif mn.startswith('v_'):
        d['cls'] = 'valu'; d['w'] = R(0); d['r'] = allr(1)
        if mn.startswith(('v_add_co', 'v_sub_co', 'v_addc_co', 'v_subb_co', 'v_subrev_co')): d['w'] += R(1); d['r'] = allr(2)
        if mn.startswith(('v_fmac', 'v_dot2c', 'v_mac')): d['r'] += R(0)
        if mn.startswith('v_cndmask') and len(ops) == 3: d['r'] += regs_of('vcc')
        if mn.split('_e')[0] in TRANS or mn in TRANS: d['trans'] = True
        if 'dpp' in mn or 'row_' in mods or 'quad_perm' in mods: d['dpp'] = True
    elif mn.startswith('ds_read') or mn.startswith('ds_bpermute') or mn.startswith('ds_swizzle'):
        d['cls'] = 'ds'; d['w'] = R(0); d['r'] = allr(1)
    elif mn.startswith('ds_'):
        d['cls'] = 'ds'; d['r'] = allr(0)
    elif mn.startswith(('buffer_load', 'global_load')):
        d['cls'] = 'vmem'
        if 'lds' in mods.split() or 'lds' in mn:
            d['r'] = allr(0) + regs_of('m0'); d['ldsdma'] = True
        else:
            d['w'] = R(0); d['r'] = allr(1)
    elif mn.startswith(('buffer_store', 'global_store')):
        d['cls'] = 'vmem'; d['r'] = allr(0); d['store'] = True
        d['wide'] = ('x3' in mn or 'x4' in mn)
        d['data'] = R(0) if mn.startswith('buffer') else R(1)
    elif mn.startswith(('buffer_atomic', 'global_atomic')):
        d['cls'] = 'vmem'; d['r'] = allr(0)
        if 'sc0' in mods: d['w'] = R(0)
    elif mn.startswith(('buffer_', 'global_')):
        d['cls'] = 'vmem'
    elif mn.startswith('s_nop'):
        d['cls'] = 'nop'; d['n'] = int(ops[0], 0) + 1
    elif mn.startswith(('s_load', 's_memtime', 's_memrealtime', 's_getreg', 's_getpc')):
        d['cls'] = 'salu'; d['w'] = R(0); d['r'] = allr(1)
    elif mn.startswith('s_cmp') or mn.startswith('s_cbranch') or mn.startswith('s_branch') or mn in ('s_barrier', 's_waitcnt', 's_endpgm', 's_sleep', 's_setprio'):
        d['cls'] = 'salu'; d['r'] = allr(0)
    elif mn.startswith('s_'):
        d['cls'] = 'salu'; d['w'] = R(0); d['r'] = allr(1)
        if 'saveexec' in mn: d['w'] += regs_of('exec')
    return d

def check_hazards(lines, name=''):
    ins = [p for p in (parse(l) for l in lines) if p]
    probs = []
    pos = 0
    hist = []
    for d in ins:
        for (p, e) in reversed(hist):
            dist = pos - p - e.get('n', 1)
            if dist > 20: break
            ew = set(e['w']); dr = set(d['r']); dw = set(d['w'])
            def bad(need, why):
                if dist < need: probs.append('%s: need %d have %d (%s): [%s] -> [%s]' % (name, need, dist, why, e['text'], d['text']))
            if e['cls'] == 'valu':
                vw = {x for x in ew if x[0] in 'va'}
                sw = {x for x in ew if x[0] == 's'}
                if d['cls'] == 'mfma' and vw & dr: bad(2, 'valu->mfma')
                if d.get('rl') and vw & dr: bad(1, 'valu->readlane')
                if d.get('perm') and vw & dr: bad(2, 'valu->permlane')
                if d.get('dpp') and vw & dr: bad(2, 'valu->dpp')
                if e.get('trans') and d['cls'] in ('valu', 'mfma') and not d.get('trans') and vw & dr: bad(1, 'trans->use')
                if e.get('trans') and d['cls'] in ('vmem', 'ds') and vw & dr: bad(1, 'trans->mem')
                if sw & dr:
                    if d['cls'] == 'valu': bad(4 if d.get('rl') else 2, 'valu sgpr->valu')
                    if d['cls'] == 'vmem': bad(5, 'valu sgpr->vmem')
                    if d['cls'] == 'salu': bad(1, 'valu sgpr->salu (my pad)')
                    if d['cls'] == 'mfma': bad(4, 'valu exec->mfma')
                if (('s', 126) in sw) and d['cls'] == 'mfma': bad(4, 'valu exec->mfma')
            if e['cls'] == 'mfma':
                n = 12 if e['passes'] == 8 else 8
                if d['cls'] == 'mfma':
                    if ew & (set(d['a']) | set(d['b'])): bad(n, 'mfma D->A/B')
                    if ew & set(d['cc']) and d['cc'] != e['w']: bad(n - 2, 'mfma D->C overlap')
                    if ew & dw and d['w'] != e['w']: bad(n, 'mfma D->D overlap')
                elif d['cls'] in ('valu', 'vmem', 'ds'):
                    if ew & (dr | dw): bad(n, 'mfma D->valu/mem')
                    if d['cls'] == 'valu' and set(e['cc']) & dw: bad(7 if e['passes'] == 8 else 3, 'mfma C WAR')
            if e['cls'] == 'salu' and ('s', 124) in ew and d.get('ldsdma'): bad(1, 'm0->ldsdma')
            if e.get('store') and e.get('wide') and d['cls'] == 'valu' and set(e['data']) & dw: bad(2, 'store data WAR')
            if e.get('store') and e.get('wide') and d['cls'] in ('ds', 'vmem') and set(e['data']) & dw: bad(1, 'store data WAR(mem)')
        hist.append((pos, d))
        pos += d.get('n', 1)
        if len(hist) > 64: hist.pop(0)
    return probs

def maxregs(lines):
    mx = {'v': -1, 'a': -1, 's': -1}
    for l in lines:
        p = parse(l)
        if not p: continue
        for o in p['ops']:
            for (f, i) in regs_of(o):
                if f == 's' and i >= 106: continue
                mx[f] = max(mx[f], i)
    return mx


def fix_hazards(lines, name=''):
    out = []
    total = 0
    hist = []; pos = 0
    for l in lines:
        d = parse(l)
        if d is None:
            out.append(l); continue
        need = 0
        for (p, e) in reversed(hist):
            dist = pos - p - e.get('n', 1)
            if dist > 20: break
            pr = check_pair(e, d)
            if pr > dist: need = max(need, pr - dist)
        if need:
            total += need
            k = need
            while k > 0:
                n = min(k, 16); out.append('s_nop %d' % (n - 1)); hist.append((pos, dict(cls='nop', n=n, w=[], r=[], text='s_nop'))); pos += n; k -= n
        out.append(l)
        hist.append((pos, d)); pos += d.get('n', 1)
        if len(hist) > 64: hist = hist[-64:]
    return out, total

def check_pair(e, d):
    need = 0
    ew = set(e['w']); dr = set(d['r']); dw = set(d['w'])
    if e['cls'] == 'valu':
        vw = {x for x in ew if x[0] in 'va'}
        sw = {x for x in ew if x[0] == 's'}
        if e['mn'].startswith('v_dot') and (vw & (dr | dw)) and not (d['mn'] == e['mn'] and vw <= set(regs_of(d['ops'][-1])) and not (vw & set(x for o in d['ops'][1:-1] for x in regs_of(o)))): need = max(need, 3)
        if d['cls'] == 'mfma' and vw & dr: need = max(need, 2)
        if d.get('rl') and vw & dr: need = max(need, 1)
        if d.get('perm') and vw & dr: need = max(need, 2)
        if d.get('dpp') and vw & dr: need = max(need, 2)
        if e.get('trans') and d['cls'] in ('valu', 'mfma', 'vmem', 'ds') and not d.get('trans') and vw & dr: need = max(need, 1)
        if sw & dr:
            if d['cls'] == 'valu': need = max(need, 4 if d.get('rl') else 2)
            if d['cls'] == 'vmem': need = max(need, 5)
            if d['cls'] == 'salu': need = max(need, 1)
            if d['cls'] == 'mfma': need = max(need, 4)
        if (('s', 126) in sw) and d['cls'] == 'mfma': need = max(need, 4)
    if e['cls'] == 'mfma':
        n = 12 if e['passes'] == 8 else 8
        if d['cls'] == 'mfma':
            if ew & (set(d['a']) | set(d['b'])): need = max(need, n)
            if ew & set(d['cc']) and d['cc'] != e['w']: need = max(need, n - 2)
            if ew & dw and d['w'] != e['w']: need = max(need, n)
        elif d['cls'] in ('valu', 'vmem', 'ds'):
            if ew & (dr | dw): need = max(need, n)
            if d['cls'] == 'valu' and set(e['cc']) & dw: need = max(need, 7 if e['passes'] == 8 else 3)
    if e['cls'] == 'salu' and ('s', 124) in ew and d.get('ldsdma'): need = max(need, 1)
    if e.get('store') and e.get('wide') and d['cls'] == 'valu' and set(e['data']) & dw: need = max(need, 2)
    if e.get('store') and e.get('wide') and d['cls'] in ('ds', 'vmem') and set(e['data']) & dw: need = max(need, 1)
    return need

def check_waits(lines, name=''):
    vmq, lgq = [], []
    probs = []
    for l in lines:
        d = parse(l)
        if d is None: continue
        if d['mn'] == 's_waitcnt':
            m = re.search(r'vmcnt\((\d+)\)', d['text'])
            if m:
                n = int(m.group(1)); vmq = vmq[len(vmq) - n:] if n < len(vmq) else vmq
                if n == 0: vmq = []
            m = re.search(r'lgkmcnt\((\d+)\)', d['text'])
            if m:
                n = int(m.group(1))
                if any(x[2] for x in lgq) and n != 0 and any(x[2] and x[0] and not x[1].startswith('s_mem') for x in lgq): pass
                else:
                    lgq = lgq[len(lgq) - n:] if n < len(lgq) else lgq
                    if n == 0: lgq = []
            continue
        use = set(d['r']) | set(d['w'])
        for q in (vmq, lgq):
            for e in q:
                if e[0] & use: probs.append('%s: [%s] touches %s pending from [%s]' % (name, d['text'], sorted(e[0] & use)[:2], e[1]))
        if d['cls'] == 'vmem': vmq.append((set(d['w']), d['text'], False))
        elif d['cls'] == 'ds': lgq.append((set(d['w']), d['text'], False))
        elif d['mn'].startswith(('s_load', 's_memtime', 's_memrealtime')): lgq.append((set(d['w']), d['text'], True))
    return probs
```

```python
from fw import *

H_OFF, PQ_OFF, KVP_OFF, KVZ_OFF = 0x0, 0x800000, 0xA00000, 0xB00000
WS_BYTES = 268435456
SPARE = 131072

S_X, S_WQ, S_WG, S_WU, S_WS = 4, 8, 12, 16, 20
sW, sI, sMEM, sQD, sWB = 24, 25, 26, 27, 28
sMASK, sLOG2E, sEPS, sONES = 29, 30, 31, 32
sX = [33, 34, 35, 36]
sL = [37, 38, 39, 40, 41, 42]
sG2 = [43, 44]
sHST1, sHST1b, sHST2, sPQ, sKVP = 45, 46, 47, 48, 49
sT0, sT1, sT2 = 50, 51, 52
sMLO, sMHI = 54, 56
def srd(b): return 's[%d:%d]' % (b, b + 3)

vL = 1
vX0, vX1 = 2, 3
vWA, vWB, vWC, vWD = 4, 5, 6, 7
vST = 8
vRS, vNM = 9, 10
vTR = 12
vT = 24
ACC2 = 64
XF = 128
def xf(s): return 'v[%d:%d]' % (XF + 4 * s, XF + 4 * s + 3)
ACC1 = 0
WF = 96
EPSB = 144

def slot_base_const(S):
    T = S >> 2; r = S & 3
    if T == 0: return SPARE + 6144 * r
    return 32768 * r + 6144 * ((T - 1) % 5)

def prologue(p):
    p.stamp_rt(0); p.stamp(1)
    p('s_load_dwordx4 s[60:63], s[0:1], 0')
    p('s_load_dwordx4 s[64:67], s[0:1], 32')
    p('s_load_dwordx2 s[68:69], s[0:1], 72')
    p('v_and_b32 v%d, 63, v0' % vL)
    p('v_lshrrev_b32 v%d, 6, v0' % vT)
    p('s_and_b32 s%d, s2, 7' % sT0)
    p('s_lshr_b32 s%d, s2, 3' % sT1)
    p('v_readfirstlane_b32 s%d, v%d' % (sW, vT))
    p('s_lshr_b32 s%d, s%d, 1' % (sQD, sT0))
    p('s_and_b32 s%d, s%d, 1' % (sT0, sT0)); p('s_lshl_b32 s%d, s%d, 3' % (sT0, sT0))
    p('s_and_b32 s%d, s%d, 7' % (sI, sT1)); p('s_add_u32 s%d, s%d, s%d' % (sI, sI, sT0))
    p('s_lshr_b32 s%d, s%d, 3' % (sMEM, sT1))
    p('s_mov_b32 s%d, 0xffff0000' % sMASK)
    p('s_mov_b32 s%d, 0x3fb8aa3b' % sLOG2E)
    p('s_mov_b32 s%d, 0x358637bd' % sEPS)
    p('s_mov_b32 s%d, 0x3f803f80' % sONES)
    p('s_mov_b32 s%d, 0x0000ffff' % sMLO); p('s_mov_b32 s%d, 0x0000ffff' % (sMLO + 1))
    p('s_mov_b32 s%d, 0xffff0000' % sMHI); p('s_mov_b32 s%d, 0xffff0000' % (sMHI + 1))
    p('s_lshl_b32 s%d, s%d, 15' % (sWB, sW))
    a, b, c = vT, vT + 1, vT + 2
    p('v_lshrrev_b32 v%d, 3, v%d' % (a, vL)); p('v_lshlrev_b32 v%d, 10, v%d' % (a, a))
    p('v_and_b32 v%d, 7, v%d' % (b, vL)); p('v_lshrrev_b32 v%d, 4, v%d' % (c, vL)); p('v_xor_b32 v%d, v%d, v%d' % (b, b, c))
    p('v_lshl_add_u32 v%d, v%d, 4, v%d' % (vX0, b, a))
    p('v_xor_b32 v%d, 64, v%d' % (vX1, vX0))
    p('v_lshlrev_b32 v%d, 4, v%d' % (vST, vL))
    p('s_lshl_b32 s%d, s%d, 2' % (sT0, sI)); p('s_add_u32 s%d, s%d, s%d' % (sT0, sT0, sW))
    p('s_lshl_b32 s%d, s%d, 15' % (sX[0], sT0))
    for q in range(1, 4): p('s_add_u32 s%d, s%d, %d' % (sX[q], sX[0], 7168 * q))
    p('s_mul_i32 s%d, s%d, %d' % (sHST1, sT0, 112 * 1024))
    p('s_lshl_b32 s%d, s%d, 15' % (sPQ, sT0)); p('s_add_u32 s%d, s%d, 0x%x' % (sPQ, sPQ, PQ_OFF))
    p('s_waitcnt lgkmcnt(0)')
    for base, src, n in ((S_X, 60, 2048 * 1024), (S_WQ, 62, 512 * 3072), (S_WG, 64, 512 * 3584), (S_WU, 66, 512 * 3584), (S_WS, 68, WS_BYTES)):
        p('s_mov_b32 s%d, s%d' % (base, src)); p('s_mov_b32 s%d, s%d' % (base + 1, src + 1))
        p('s_mov_b32 s%d, 0x%x' % (base + 2, n)); p('s_mov_b32 s%d, 0x00020000' % (base + 3))

def issue_x(p):
    toks = []
    for c in range(8):
        p('s_add_u32 m0, s%d, %d' % (sWB, 4096 * c))
        t = []
        for q in range(4):
            if q == 0: p('s_nop 0')
            t.append(p.vm('buffer_load_dwordx4 v%d, %s, s%d offen offset:%d lds' % ((vX0, vX1)[q & 1], srd(S_X), sX[q], 1024 * q)))
        toks.append(t)
        if c < 7:
            p('v_add_u32 v%d, 128, v%d' % (vX0, vX0)); p('v_add_u32 v%d, 128, v%d' % (vX1, vX1))
    return toks

def lane_w_voffs(p, role):
    a, b, c = vT, vT + 1, vT + 2
    p('v_lshrrev_b32 v%d, 3, v%d' % (a, vL))
    p('v_lshrrev_b32 v%d, 2, v%d' % (c, vL)); p('v_and_b32 v%d, 4, v%d' % (c, c))
    p('v_and_b32 v%d, 7, v%d' % (b, vL)); p('v_xor_b32 v%d, v%d, v%d' % (b, b, c)); p('v_lshlrev_b32 v%d, 4, v%d' % (b, b))
    p('s_movk_i32 s%d, 3072' % sT1); p('s_movk_i32 s%d, 3584' % sT2)
    if role == 'AB':
        p('v_mad_u32_u24 v%d, v%d, s%d, v%d' % (vWA, a, sT1, b))
        p('v_mad_u32_u24 v%d, v%d, s%d, v%d' % (vWB, a, sT2, b))
        p('v_xor_b32 v%d, 32, v%d' % (vWC, vWB))
    else:
        p('v_mad_u32_u24 v%d, v%d, s%d, v%d' % (vWA, a, sT2, b))
        p('v_xor_b32 v%d, 32, v%d' % (vWB, vWA))
        p('v_lshrrev_b32 v%d, 2, v%d' % (a, vL)); p('v_and_b32 v%d, 3, v%d' % (b, vL)); p('v_lshlrev_b32 v%d, 4, v%d' % (b, b))
        p('v_mad_u32_u24 v%d, v%d, s%d, v%d' % (vWC, a, sT2, b))
        p('v_xor_b32 v%d, 32, v%d' % (vWD, vWC))

def lane_tr_addrs(p, role, tmpbase):
    t0, t1, t2, t3, t4 = vT, vT + 1, vT + 2, vT + 3, vT + 4
    p('v_lshrrev_b32 v%d, 5, v%d' % (t0, vL)); p('v_lshlrev_b32 v%d, 3, v%d' % (t0, t0))
    p('v_bfe_u32 v%d, v%d, 2, 2' % (t1, vL)); p('v_add_u32 v%d, v%d, v%d' % (t0, t0, t1))
    p('v_bfe_u32 v%d, v%d, 4, 1' % (t1, vL))
    p('v_bfe_u32 v%d, v%d, 1, 1' % (t2, vL))
    p('v_bfe_u32 v%d, v%d, 3, 1' % (t3, vL))
    p('v_and_b32 v%d, 1, v%d' % (t4, vL)); p('v_lshlrev_b32 v%d, 3, v%d' % (t4, t4))
    variants = {}
    names = (['q0', 'q1', 'm0', 'm1', 'm2', 'm3'] if role == 'AB' else ['m0', 'm1', 'm2', 'm3', 'h0', 'h1'])
    u0, u1 = vT + 5, vT + 6
    for vi, nm in enumerate(names):
        r0 = vTR + 2 * vi
        if nm[0] == 'q':
            th = int(nm[1])
            p('v_lshl_add_u32 v%d, v%d, 1, v%d' % (u0, t1, t2))
            p('v_lshlrev_b32 v%d, 2, v%d' % (u1, t3)); p('v_xor_b32 v%d, %d, v%d' % (u1, 4 * th, u1)); p('v_add_u32 v%d, v%d, v%d' % (u0, u0, u1))
            p('v_lshl_add_u32 v%d, v%d, 4, v%d' % (u0, u0, t4))
            p('v_lshl_add_u32 v%d, v%d, 7, v%d' % (r0, t0, u0))
        elif nm[0] == 'm':
            tt = int(nm[1])
            p('v_add_u32 v%d, %d, v%d' % (u0, 2 * tt, t2))
            p('v_lshlrev_b32 v%d, 2, v%d' % (u1, t3)); p('v_xor_b32 v%d, v%d, v%d' % (u0, u0, u1))
            p('v_lshlrev_b32 v%d, 1, v%d' % (u1, t1)); p('v_xor_b32 v%d, v%d, v%d' % (u0, u0, u1))
            p('v_lshl_add_u32 v%d, v%d, 4, v%d' % (u0, u0, t4))
            p('v_lshl_add_u32 v%d, v%d, 7, v%d' % (u0, t0, u0))
            p('v_lshl_add_u32 v%d, v%d, 11, v%d' % (r0, t1, u0))
        else:
            tt = int(nm[1])
            p('v_add_u32 v%d, %d, v%d' % (u0, 2 * tt, t2))
            p('v_lshlrev_b32 v%d, 1, v%d' % (u1, t1)); p('v_xor_b32 v%d, v%d, v%d' % (u0, u0, u1))
            p('v_lshl_add_u32 v%d, v%d, 4, v%d' % (u0, u0, t4))
            p('v_lshl_add_u32 v%d, v%d, 6, v%d' % (u0, t0, u0))
            p('v_lshl_add_u32 v%d, v%d, 10, v%d' % (r0, t1, u0))
        p('v_add_u32 v%d, 0x10000, v%d' % (r0 + 1, r0))
        p('v_add_u32 v%d, 0x20000, v%d' % (tmpbase + vi, r0))
        variants[nm] = {0: r0, 1: r0 + 1, 2: tmpbase + vi}
    return variants

def role_setup(p, role):
    p('s_mul_i32 s%d, s%d, %d' % (sT1, sW, 16 * 3072)); p('s_mul_i32 s%d, s%d, %d' % (sT2, sW, 16 * 3584))
    if role == 'AB':
        p('s_lshl_b32 s%d, s%d, 1' % (sT0, sQD)); p('s_add_u32 s%d, s%d, s%d' % (sT0, sT0, sMEM))
        p('s_lshl_b32 s%d, s%d, 12' % (sKVP, sT0)); p('s_add_u32 s%d, s%d, s%d' % (sPQ, sPQ, sKVP))
        p('s_lshl_b32 s%d, s%d, 2' % (sKVP, sT0)); p('s_add_u32 s%d, s%d, s%d' % (sKVP, sKVP, sW)); p('s_lshl_b32 s%d, s%d, 15' % (sKVP, sKVP))
        p('s_lshl_b32 s%d, s%d, 11' % (sHST2, sI)); p('s_add_u32 s%d, s%d, s%d' % (sKVP, sKVP, sHST2)); p('s_add_u32 s%d, s%d, 0x%x' % (sKVP, sKVP, KVP_OFF))
        p('s_lshl_b32 s%d, s%d, 7' % (sT0, sT0)); p('s_add_u32 s%d, s%d, s%d' % (sT0, sT0, sT1))
        for li, col in enumerate((1024, 2048, 0)):
            p('s_add_u32 s%d, s%d, %d' % (sL[2 * li], sT0, col)); p('s_add_u32 s%d, s%d, %d' % (sL[2 * li + 1], sT0, col + 8 * 3072 - 1024))
        p('s_mul_i32 s%d, s%d, 7' % (sT0, sQD)); p('s_add_u32 s%d, s%d, s%d' % (sT0, sT0, sMEM))
        p('s_lshl_b32 s%d, s%d, 12' % (sHST2, sT0)); p('s_add_u32 s%d, s%d, s%d' % (sHST2, sHST2, sHST1))
        p('s_lshl_b32 s%d, s%d, 7' % (sT0, sT0)); p('s_add_u32 s%d, s%d, s%d' % (sG2[0], sT0, sT2)); p('s_add_u32 s%d, s%d, %d' % (sG2[1], sG2[0], 8 * 3584 - 1024))
    else:
        p('s_mul_i32 s%d, s%d, 7' % (sT0, sQD))
        p('s_sub_u32 s%d, s%d, 2' % (sT1, sMEM))
        p('s_mul_i32 s%d, s%d, 3' % (sL[5], sT1)); p('s_add_u32 s%d, s%d, s%d' % (sL[5], sL[5], sT0)); p('s_add_u32 s%d, s%d, 2' % (sL[5], sL[5]))
        p('s_add_u32 s%d, s%d, 4' % (sL[4], sT0))
        p('s_lshl_b32 s%d, s%d, 12' % (sHST1b, sL[4])); p('s_lshl_b32 s%d, s%d, 11' % (sL[3], sT1)); p('s_add_u32 s%d, s%d, s%d' % (sHST1b, sHST1b, sL[3]))
        p('s_add_u32 s%d, s%d, s%d' % (sHST1b, sHST1b, sHST1))
        p('s_lshl_b32 s%d, s%d, 12' % (sL[3], sL[5])); p('s_add_u32 s%d, s%d, 4096' % (sHST2, sL[3])); p('s_add_u32 s%d, s%d, s%d' % (sHST2, sHST2, sHST1))
        p('s_add_u32 s%d, s%d, s%d' % (sHST1, sHST1, sL[3]))
        p('s_lshl_b32 s%d, s%d, 7' % (sL[2], sL[4])); p('s_lshl_b32 s%d, s%d, 6' % (sT1, sT1)); p('s_add_u32 s%d, s%d, s%d' % (sL[2], sL[2], sT1))
        p('s_add_u32 s%d, s%d, s%d' % (sL[2], sL[2], sT2))
        p('s_lshl_b32 s%d, s%d, 7' % (sL[0], sL[5])); p('s_add_u32 s%d, s%d, s%d' % (sL[0], sL[0], sT2)); p('s_add_u32 s%d, s%d, %d' % (sL[1], sL[0], 8 * 3584 - 1024))
        p('s_add_u32 s%d, s%d, 128' % (sG2[0], sL[0])); p('s_add_u32 s%d, s%d, 128' % (sG2[1], sL[1]))

def dma_stage_items(p, role, T):
    toks = []
    items = []
    base = (SPARE if T == 0 else 6144 * ((T - 1) % 5))
    def setm0(off):
        if T == 0: return lambda: p('s_add_u32 m0, s%d, %d' % (sT0, off))
        return lambda: p('s_add_u32 m0, s%d, %d' % (sWB, base + off))
    def ld(v, s, so, off):
        return lambda: toks.append(p.vm('buffer_load_dwordx4 v%d, %s, s%d offen %slds' % (v, srd(s), so, ('offset:%d ' % off) if off else '')))
    def pair2(f, g):
        return lambda: (f(), p('s_nop 0'), g())
    if T < 8:
        if role == 'AB':
            for li in range(3):
                items += [pair2(setm0(2048 * li), ld(vWA, S_WQ, sL[2 * li], 0)), ld(vWA, S_WQ, sL[2 * li + 1], 1024)]
            items.append(lambda: p('v_add_u32 v%d, %d, v%d' % (vWA, 64 * 3072, vWA)))
        else:
            items += [pair2(setm0(0), ld(vWA, S_WG, sL[0], 0)), ld(vWA, S_WG, sL[1], 1024)]
            items += [pair2(setm0(2048), ld(vWB, S_WU, sL[0], 0)), ld(vWB, S_WU, sL[1], 1024)]
            items += [pair2(setm0(4096), ld(vWC, S_WG, sL[2], 0))]
            items += [pair2(setm0(5120), ld(vWD, S_WU, sL[2], 0))]
            d = 64 * 3584 if T < 7 else -7 * 64 * 3584
            for v in (vWA, vWB): items.append(lambda v=v, d=d: p('v_add_u32 v%d, 0x%x, v%d' % (v, d & 0xffffffff, v)))
            if T < 7:
                for v in (vWC, vWD): items.append(lambda v=v: p('v_add_u32 v%d, %d, v%d' % (v, 64 * 3584, v)))
    else:
        g, u = (vWB, vWC) if role == 'AB' else (vWA, vWB)
        items += [pair2(setm0(0), ld(g, S_WG, sG2[0], 0)), ld(g, S_WG, sG2[1], 1024)]
        items += [pair2(setm0(2048), ld(u, S_WU, sG2[0], 0)), ld(u, S_WU, sG2[1], 1024)]
        if T < 15:
            for v in (g, u): items.append(lambda v=v: p('v_add_u32 v%d, %d, v%d' % (v, 64 * 3584, v)))
    return items, toks

def tiles_of(role, grp):
    if grp == 2: return [('m%d' % t, 0, 512, False) for t in range(4)]
    if role == 'AB':
        return [('q0', 0, 512, True), ('q1', 0, 512, True), ('q0', 2048, 512, True), ('q1', 2048, 512, True), ('q0', 4096, 512, False), ('q1', 4096, 512, False)]
    return [('m%d' % t, 0, 512, False) for t in range(4)] + [('h0', 4096, 256, False), ('h1', 4096, 256, False)]

def wf(S, j, G):
    b = WF + (S & 1) * 4 * G + 4 * j
    return b

def tr_items(p, role, S, variants, ftok):
    grp = 1 if S < 32 else 2
    tl = tiles_of(role, grp); G = len(tl)
    items = []
    blk = slot_base_const(S)
    for j, (var, lo, rds, sw) in enumerate(tl):
        ftok[(S, j)] = []
        for rd in range(2):
            const = blk + lo + rd * rds
            win, off = const >> 16, const & 0xffff
            b = wf(S, j, G) + 2 * rd
            def f(b=b, reg=variants[var][win], off=off, key=(S, j)):
                ftok[key].append(p.lg('ds_read_b64_tr_b16 a[%d:%d], v%d offset:%d' % (b, b + 1, reg, off)))
            items.append(f)
    return items

def norm_items(p, s, t):
    it = []
    for pr in range(2):
        r0, r1 = XF + 4 * s + 2 * pr, XF + 4 * s + 2 * pr + 1
        a0, a1, b0, b1 = t + 4 * pr, t + 4 * pr + 1, t + 4 * pr + 2, t + 4 * pr + 3
        seq = ['v_lshlrev_b32 v%d, 16, v%d' % (a0, r0), 'v_and_b32 v%d, s%d, v%d' % (a1, sMASK, r0),
               'v_lshlrev_b32 v%d, 16, v%d' % (b0, r1), 'v_and_b32 v%d, s%d, v%d' % (b1, sMASK, r1),
               'v_fma_f32 v%d, v%d, v%d, v%d' % (a0, a0, vRS, vNM), 'v_fma_f32 v%d, v%d, v%d, v%d' % (a1, a1, vRS, vNM),
               'v_fma_f32 v%d, v%d, v%d, v%d' % (b0, b0, vRS, vNM), 'v_fma_f32 v%d, v%d, v%d, v%d' % (b1, b1, vRS, vNM),
               'v_cvt_pk_bf16_f32 v%d, v%d, v%d' % (r0, a0, a1), 'v_cvt_pk_bf16_f32 v%d, v%d, v%d' % (r1, b0, b1)]
        it += [lambda x=x: p(x) for x in seq]
    return it

def T(p, s): return lambda: p(s)

def mlp_epi_items(p, acc, in_agpr, t, soff, off, stflags=''):
    it = []
    if in_agpr:
        for half in range(2):
            rr = range(4 * half, 4 * half + 4)
            for r in rr: it.append(T(p, 'v_accvgpr_read_b32 v%d, a%d' % (t + (r & 3), acc + r)))
            for r in rr: it.append(T(p, 'v_accvgpr_read_b32 v%d, a%d' % (t + 4 + (r & 3), acc + 8 + r)))
            for r in rr: it.append(T(p, 'v_max_f32 v%d, 0, v%d' % (t + (r & 3), t + (r & 3))))
            for r in rr: it.append(T(p, 'v_mul_f32 v%d, v%d, v%d' % (t + (r & 3), t + (r & 3), t + 4 + (r & 3))))
            for q in range(2): it.append(T(p, 'v_cvt_pk_bf16_f32 v%d, v%d, v%d' % (t + 8 + 2 * half + q, t + 2 * q, t + 2 * q + 1)))
    else:
        for r in range(8): it.append(T(p, 'v_max_f32 v%d, 0, v%d' % (acc + r, acc + r)))
        for r in range(8): it.append(T(p, 'v_mul_f32 v%d, v%d, v%d' % (acc + r, acc + r, acc + 8 + r)))
        for q in range(4): it.append(T(p, 'v_cvt_pk_bf16_f32 v%d, v%d, v%d' % (t + 8 + q, acc + 2 * q, acc + 2 * q + 1)))
    it.append(lambda: p.vm('buffer_store_dwordx4 v[%d:%d], v%d, %s, s%d offen %s%s' % (t + 8, t + 11, vST, srd(S_WS), soff, ('offset:%d' % off) if off else '', stflags)))
    return it

def phi_items(p, acc, t, dst):
    it = []
    for half in range(2):
        rr = list(range(4 * half, 4 * half + 4))
        for r in rr: it.append(T(p, 'v_accvgpr_read_b32 v%d, a%d' % (t + (r & 3), acc + r)))
        for r in rr: it.append(T(p, 'v_mul_f32 v%d, s%d, v%d' % (t + 4 + (r & 3), sLOG2E, t + (r & 3))))
        for r in rr: it.append(T(p, 'v_exp_f32 v%d, v%d clamp' % (t + 4 + (r & 3), t + 4 + (r & 3))))
        for r in rr: it.append(T(p, 'v_max_f32 v%d, s%d, v%d' % (t + (r & 3), sEPS, t + (r & 3))))
        for r in rr: it.append(T(p, 'v_add_f32 v%d, v%d, v%d' % (t + (r & 3), t + (r & 3), t + 4 + (r & 3))))
        for q in range(2): it.append(T(p, 'v_cvt_pk_bf16_f32 v%d, v%d, v%d' % (dst + 2 * half + q, t + 2 * q, t + 2 * q + 1)))
    return it

def pack_items(p, acc, t, dst):
    it = []
    for half in range(2):
        rr = list(range(4 * half, 4 * half + 4))
        for r in rr: it.append(T(p, 'v_accvgpr_read_b32 v%d, a%d' % (t + (r & 3), acc + r)))
        for q in range(2): it.append(T(p, 'v_cvt_pk_bf16_f32 v%d, v%d, v%d' % (dst + 2 * half + q, t + 2 * q, t + 2 * q + 1)))
    return it

def epilogue1_items(p, role, stflags=''):
    t = vT + 8
    pre, post = [], []
    if role == 'CD':
        for j in range(6):
            soff, off = (sHST1, 1024 * j) if j < 4 else (sHST1b, 1024 * (j - 4))
            tt = t + (j & 1) * 12
            pre += mlp_epi_items(p, ACC1 + 16 * j, True, tt, soff, off, stflags)
        return pre, post
    PK = vT + 16; VV = vT + 24; BS = vT + 32
    KVD = ACC1
    for pr in range(2):
        pre += phi_items(p, ACC1 + 16 * pr, t, PK) + phi_items(p, ACC1 + 16 * pr + 8, t, PK + 4)
        pre += pack_items(p, ACC1 + 32 + 16 * pr, t, VV) + pack_items(p, ACC1 + 32 + 16 * pr + 8, t, VV + 4)
        da = ACC1 + 16 * pr
        db = ACC1 + 32 + 16 * pr
        for hb, (d, msk) in enumerate(((da, sMLO), (db, sMHI))):
            for r in range(8):
                pre.append(T(p, 'v_cndmask_b32 v%d, v%d, v%d, s[%d:%d]' % (BS + r, vT + 7, VV + r, msk, msk + 1)))
            pre.append(T(p, 's_nop 1'))
            pre.append(T(p, 'v_mfma_f32_32x32x16_bf16 a[%d:%d], v[%d:%d], v[%d:%d], 0' % (d, d + 15, PK, PK + 3, BS, BS + 3)))
            pre.append(T(p, 'v_mfma_f32_32x32x16_bf16 a[%d:%d], v[%d:%d], v[%d:%d], a[%d:%d]' % (d, d + 15, PK + 4, PK + 7, BS + 4, BS + 7, d, d + 15)))
    for pr in range(2):
        for hb in range(2):
            dst = PK + 4 * ((2 * pr + hb) & 1)
            pre += phi_items(p, ACC1 + 64 + 16 * pr + 8 * hb, t, dst)
            pre.append(lambda dst=dst, o=1024 * (2 * pr + hb): p.vm('buffer_store_dwordx4 v[%d:%d], v%d, %s, s%d offen %s%s' % (dst, dst + 3, vST, srd(S_WS), sPQ, ('offset:%d' % o) if o else '', stflags)))
    KA = vT + 6
    pre.append(T(p, 's_lshl_b32 s%d, s%d, 13' % (sT0, sW)))
    pre.append(T(p, 's_add_u32 s%d, s%d, %d' % (sT0, sT0, SPARE)))
    pre.append(T(p, 'v_add_u32 v%d, s%d, v%d' % (KA, sT0, vST)))
    for hd in range(4):
        pr, hb = hd >> 1, hd & 1
        src = (ACC1 + 16 * pr) if hb == 0 else (ACC1 + 32 + 16 * pr + 8)
        for q in range(2):
            pre.append(lambda src=src, q=q, hd=hd: p.lg('ds_write_b128 v%d, a[%d:%d] offset:%d' % (KA, src + 4 * q, src + 4 * q + 3, hd * 2048 + q * 1024)))
    RA = vT + 6
    rtok = []
    post.append(T(p, 's_lshl_b32 s%d, s%d, 11' % (sT0, sW)))
    post.append(T(p, 's_add_u32 s%d, s%d, %d' % (sT0, sT0, SPARE)))
    post.append(T(p, 'v_add_u32 v%d, s%d, v%d' % (RA, sT0, vST)))
    R = vT + 8
    for wv in range(4):
        for q in range(2):
            post.append(lambda wv=wv, q=q: rtok.append(p.lg('ds_read_b128 v[%d:%d], v%d offset:%d' % (R + 8 * wv + 4 * q, R + 8 * wv + 4 * q + 3, RA, wv * 8192 + q * 1024))))
    post.append(lambda: p.wait(rtok))
    for wv in (1, 2, 3):
        for r in range(8): post.append(T(p, 'v_add_f32 v%d, v%d, v%d' % (R + r, R + r, R + 8 * wv + r)))
    for q in range(2):
        post.append(lambda q=q: p.vm('buffer_store_dwordx4 v[%d:%d], v%d, %s, s%d offen %s%s' % (R + 4 * q, R + 4 * q + 3, vST, srd(S_WS), sKVP, 'offset:1024 ' if q else '', stflags)))
    return pre, post

def spread(p, mf, items):
    n = len(mf); k = 0
    for j, m in enumerate(mf):
        m()
        upto = (len(items) * (j + 1) + n - 1) // n
        while k < min(upto, len(items)):
            items[k](); k += 1

def spread2(p, mf, items):
    n = len(mf); k = 0
    for j, m in enumerate(mf):
        upto = (len(items) * (j + 1) + n - 1) // n
        while k < min(upto, len(items)):
            items[k](); k += 1
        m()

def phase1(p, role, stflags=''):
    lane_w_voffs(p, role)
    role_setup(p, role)
    variants = lane_tr_addrs(p, role, ACC2)
    xa = vT + 8
    p('v_and_b32 v%d, 31, v%d' % (vT, vL)); p('v_lshrrev_b32 v%d, 5, v%d' % (vT + 1, vL)); p('v_bfe_u32 v%d, v%d, 1, 3' % (vT + 2, vL))
    p('v_xor_b32 v%d, v%d, v%d' % (vT + 1, vT + 1, vT + 2))
    p('v_lshlrev_b32 v%d, 7, v%d' % (vT, vT)); p('v_add_u32 v%d, s%d, v%d' % (vT, sWB, vT))
    for ss in range(4):
        p('v_xor_b32 v%d, %d, v%d' % (vT + 2, 2 * ss, vT + 1)); p('v_lshl_add_u32 v%d, v%d, 4, v%d' % (xa + ss, vT + 2, vT))
    xt = issue_x(p)
    p.stamp(2)
    p('s_mul_i32 s%d, s%d, 6144' % (sT0, sW)); p('s_add_u32 s%d, s%d, %d' % (sT0, sT0, SPARE))
    stok = {}
    it, stok[0] = dma_stage_items(p, role, 0)
    for f in it: f()
    if role == 'AB':
        for r in range(16): p('v_mov_b32 v%d, s%d' % (vT + 3, sEPS)) if r == 0 else None
        for r in range(16): p('v_accvgpr_write_b32 a%d, v%d' % (EPSB + r, vT + 3))
    vS, vQ = vT + 12, vT + 13
    p('v_mov_b32 v%d, 0' % vS); p('v_mov_b32 v%d, 0' % vQ); p('v_mov_b32 v%d, 0' % (vS + 2)); p('v_mov_b32 v%d, 0' % (vQ + 2))
    free_after = {1: 1, 2: 2, 4: 3, 5: 4, 7: 5}
    rt = {}
    def stats(c):
        p.wait(rt[c])
        for r in range(16):
            reg = XF + 16 * c + r
            o = 2 * (r & 1)
            p('v_dot2_f32_bf16 v%d, v%d, s%d, v%d' % (vS + o, reg, sONES, vS + o))
            p('v_dot2_f32_bf16 v%d, v%d, v%d, v%d' % (vQ + o, reg, reg, vQ + o))
    for c in range(8):
        p.wait(xt[c])
        rt[c] = [p.lg('ds_read_b128 %s, v%d offset:%d' % (xf(4 * c + ss), xa + ss, 4096 * c)) for ss in range(4)]
        if c > 0:
            stats(c - 1)
            if (c - 1) in free_after:
                it, stok[free_after[c - 1]] = dma_stage_items(p, role, free_after[c - 1])
                for f in it: f()
    stats(7)
    p.stamp(3)
    it, stok[5] = dma_stage_items(p, role, 5)
    for f in it: f()
    p('v_add_f32 v%d, v%d, v%d' % (vS, vS, vS + 2)); p('v_add_f32 v%d, v%d, v%d' % (vQ, vQ, vQ + 2))
    p('v_mov_b32 v%d, v%d' % (vS + 2, vS)); p('v_mov_b32 v%d, v%d' % (vQ + 2, vQ))
    p('s_nop 1')
    p('v_permlane32_swap_b32 v%d, v%d' % (vS, vS + 2)); p('v_permlane32_swap_b32 v%d, v%d' % (vQ, vQ + 2))
    p('s_nop 1')
    p('v_add_f32 v%d, v%d, v%d' % (vS, vS, vS + 2)); p('v_add_f32 v%d, v%d, v%d' % (vQ, vQ, vQ + 2))
    p('v_mul_f32 v%d, 0x3b000000, v%d' % (vS, vS))
    p('v_mul_f32 v%d, 0x3b000000, v%d' % (vQ, vQ))
    p('v_fma_f32 v%d, -v%d, v%d, v%d' % (vQ, vS, vS, vQ))
    p('v_max_f32 v%d, 0, v%d' % (vQ, vQ))
    p('v_add_f32 v%d, 0x3727c5ac, v%d' % (vQ, vQ))
    p('v_rsq_f32 v%d, v%d' % (vRS, vQ))
    p('s_nop 0')
    p('v_mul_f32 v%d, v%d, v%d' % (vNM, vS, vRS)); p('v_sub_f32 v%d, 0, v%d' % (vNM, vNM))
    for f in norm_items(p, 0, vT): f()
    p('v_mov_b32 v%d, s%d' % (vT + 7, sONES)) if False else None
    p.wait(stok[0]); p('s_barrier')
    p.stamp(4)
    ftok = {}
    for f in tr_items(p, role, 0, variants, ftok): f()
    pre, post = epilogue1_items(p, role, stflags)
    for S in range(64):
        grp = 1 if S < 32 else 2
        tl = tiles_of(role, grp); G = len(tl)
        s = S & 31
        def mk(j, S=S, s=s, tl=tl, G=G, grp=grp):
            var, lo, rds, sw = tl[j]
            b = wf(S, j, G); W = 'a[%d:%d]' % (b, b + 3)
            if grp == 1:
                d = 'a[%d:%d]' % (ACC1 + 16 * j, ACC1 + 16 * j + 15)
                c0 = '0'
                if role == 'AB' and j in (0, 1, 4, 5): c0 = 'a[%d:%d]' % (EPSB, EPSB + 15)
            else:
                d = 'v[%d:%d]' % (ACC2 + 16 * j, ACC2 + 16 * j + 15); c0 = '0'
            c = c0 if s == 0 else d
            A, B = (xf(s), W) if sw else (W, xf(s))
            def f():
                p.wait(ftok[(S, j)])
                p('v_mfma_f32_32x32x16_bf16 %s, %s, %s, %s' % (d, A, B, c))
            return f
        mf = [mk(j) for j in range(G)]
        if S == 32: p.stamp(5)
        if S == 16: p.stamp(9)
        items = []
        head = []
        if S + 1 < 64:
            if (S + 1) % 4 == 0:
                Tn = (S + 1) >> 2
                def bar(Tn=Tn):
                    w = p.need(stok[Tn]);
                    p('s_waitcnt lgkmcnt(0)' + ((' ' + w.split(' ', 1)[1]) if w else '')); p.lg_done = p.lg_issued
                    p('s_barrier')
                head.append(bar)
            head += tr_items(p, role, S + 1, variants, ftok)
            if (S + 1) % 4 == 0 and (S >> 2) + 5 <= 15:
                Td = (S >> 2) + 5
                if Td >= 6:
                    it, stok[Td] = dma_stage_items(p, role, Td)
                    items += it
        if grp == 1 and s + 1 < 32: items = norm_items(p, s + 1, vT) + items
        if S == 31 and role == 'AB': items.append(T(p, 'v_mov_b32 v%d, s%d' % (vT + 7, sONES)))
        if grp == 2:
            last = 54 if role == 'AB' else 61
            if pre:
                left = max(1, last - S + 1)
                n = (len(pre) + left - 1) // left
                items += pre[:n]; del pre[:n]
            elif post and S >= 55:
                left = 64 - S
                n = (len(post) + left - 1) // left
                items += post[:n]; del post[:n]
        mf[0]()
        for f in head[:1]: f()
        rest = head[1:] + items
        spread2(p, mf[1:], rest)
    assert not pre and not post, (len(pre), len(post))
    p.stamp(6)
    p('s_nop 7'); p('s_nop 3')
    for j in range(4):
        for f in mlp_epi_items(p, ACC2 + 16 * j, False, vT + 12 * (j & 1), sHST2, 1024 * j, stflags): f()
    p.stamp(7)
    if p.stamps_on:
        p('s_waitcnt vmcnt(0)'); p.stamp_rt(8)
        p.stamp_dump(srd(S_WS), 0x8000000, 10)
```

```python
from fw import *
from k1 import H_OFF, PQ_OFF, KVP_OFF, KVZ_OFF, WS_BYTES, srd, T

STAMPS = False
def kr_kernel():
    p = Prog()
    p('s_cmp_ge_u32 s2, 32'); p('s_cbranch_scc1 L_kr_end')
    p('s_load_dwordx2 s[4:5], s[0:1], 72')
    p('v_lshlrev_b32 v1, 4, v0')
    p('s_lshl_b32 s12, s2, 15'); p('s_add_u32 s12, s12, 0x%x' % KVP_OFF)
    p('s_lshl_b32 s13, s2, 10'); p('s_add_u32 s13, s13, 0x%x' % KVZ_OFF)
    p('s_waitcnt lgkmcnt(0)')
    p('s_mov_b32 s8, s4'); p('s_mov_b32 s9, s5'); p('s_mov_b32 s10, 0x%x' % WS_BYTES); p('s_mov_b32 s11, 0x00020000')
    toks = []
    for i in range(16):
        for q in range(2):
            r = 8 + 8 * i + 4 * q
            toks.append(p.vm('buffer_load_dwordx4 v[%d:%d], v1, s[8:11], s12 offen offset:%d' % (r, r + 3, 1024 * q)))
        p('s_add_u32 s12, s12, 2048')
    for i in range(1, 16):
        p.wait(toks[2 * i:2 * i + 2])
        if i == 1: p.wait(toks[0:2])
        for r in range(8): p('v_add_f32 v%d, v%d, v%d' % (8 + r, 8 + r, 8 + 8 * i + r))
    for q in range(4): p('v_cvt_pk_bf16_f32 v%d, v%d, v%d' % (4 + q, 8 + 2 * q, 9 + 2 * q))
    p.vm('buffer_store_dwordx4 v[4:7], v1, s[8:11], s13 offen')
    p.label('L_kr_end')
    return p

S_X, S_WD, S_WO, S_WS, S_OUT = 4, 8, 12, 16, 20
sW, sRT, sCT, sWB = 24, 25, 26, 27
sT0, sT1, sT2, sEPS = 28, 29, 30, 31
sWD0, sWD1, sH0, sH1, sPQ0, sPQ1, sKZ, sWO0, sWO1 = 32, 33, 34, 35, 36, 37, 38, 39, 40
vL, vST, vDM, vTR0, vTR1, vT = 1, 2, 3, 4, 5, 8
ACC = 64
HB = 128
ND = 224

def k2_prologue(p):
    p('s_load_dwordx2 s[60:61], s[0:1], 0')
    p('s_load_dwordx2 s[62:63], s[0:1], 16')
    p('s_load_dwordx4 s[64:67], s[0:1], 48')
    p('s_load_dwordx2 s[68:69], s[0:1], 72')
    p('v_and_b32 v%d, 63, v0' % vL); p('v_lshrrev_b32 v%d, 6, v0' % vT)
    p('s_and_b32 s%d, s2, 7' % sT0); p('s_lshr_b32 s%d, s2, 3' % sT1)
    p('v_readfirstlane_b32 s%d, v%d' % (sW, vT))
    p('s_lshl_b32 s%d, s%d, 2' % (sRT, sT0)); p('s_and_b32 s%d, s%d, 3' % (sT2, sT1)); p('s_add_u32 s%d, s%d, s%d' % (sRT, sRT, sT2))
    p('s_lshr_b32 s%d, s%d, 2' % (sCT, sT1))
    p('s_mov_b32 s%d, 0x358637bd' % sEPS)
    p('s_mul_i32 s%d, s%d, 40960' % (sWB, sW))
    p('v_lshlrev_b32 v%d, 4, v%d' % (vST, vL))
    a, b, c = vT, vT + 1, vT + 2
    p('v_lshrrev_b32 v%d, 3, v%d' % (a, vL)); p('v_lshrrev_b32 v%d, 2, v%d' % (c, vL)); p('v_and_b32 v%d, 4, v%d' % (c, c))
    p('v_and_b32 v%d, 7, v%d' % (b, vL)); p('v_xor_b32 v%d, v%d, v%d' % (b, b, c)); p('v_lshlrev_b32 v%d, 4, v%d' % (b, b))
    p('v_lshl_add_u32 v%d, v%d, 10, v%d' % (vDM, a, b))
    t0, t1, t2, t3, t4, u0, u1 = [vT + i for i in range(7)]
    p('v_lshrrev_b32 v%d, 5, v%d' % (t0, vL)); p('v_lshlrev_b32 v%d, 2, v%d' % (t0, t0))
    p('v_bfe_u32 v%d, v%d, 2, 2' % (t1, vL)); p('v_add_u32 v%d, v%d, v%d' % (t0, t0, t1))
    p('v_bfe_u32 v%d, v%d, 4, 1' % (t1, vL)); p('v_bfe_u32 v%d, v%d, 1, 1' % (t2, vL)); p('v_bfe_u32 v%d, v%d, 3, 1' % (t3, vL))
    p('v_and_b32 v%d, 1, v%d' % (t4, vL)); p('v_lshlrev_b32 v%d, 3, v%d' % (t4, t4))
    for nt, r0 in enumerate((vTR0, vTR1)):
        p('v_lshl_add_u32 v%d, v%d, 1, v%d' % (u0, t1, t2))
        p('v_lshlrev_b32 v%d, 2, v%d' % (u1, t3)); p('v_xor_b32 v%d, %d, v%d' % (u1, 4 * nt, u1)); p('v_add_u32 v%d, v%d, v%d' % (u0, u0, u1))
        p('v_lshl_add_u32 v%d, v%d, 4, v%d' % (u0, u0, t4))
        p('v_lshl_add_u32 v%d, v%d, 7, v%d' % (u0, t0, u0))
        p('v_add_u32 v%d, s%d, v%d' % (r0, sWB, u0))
    p('s_mul_i32 s%d, s%d, %d' % (sWD0, sW, 448 * 1024)); p('s_lshl_b32 s%d, s%d, 7' % (sT0, sCT)); p('s_add_u32 s%d, s%d, s%d' % (sWD0, sWD0, sT0))
    p('s_add_u32 s%d, s%d, %d' % (sWD1, sWD0, 8192 - 1024))
    p('s_lshl_b32 s%d, s%d, 17' % (sWO0, sW)); p('s_add_u32 s%d, s%d, s%d' % (sWO0, sWO0, sT0)); p('s_add_u32 s%d, s%d, %d' % (sWO1, sWO0, 8192 - 1024))
    p('s_mul_i32 s%d, s%d, %d' % (sH0, sRT, 2 * 112 * 1024)); p('s_mul_i32 s%d, s%d, %d' % (sT0, sW, 28 * 1024)); p('s_add_u32 s%d, s%d, s%d' % (sH0, sH0, sT0))
    p('s_add_u32 s%d, s%d, %d' % (sH1, sH0, 112 * 1024))
    p('s_lshl_b32 s%d, s%d, 16' % (sPQ0, sRT)); p('s_lshl_b32 s%d, s%d, 13' % (sT0, sW)); p('s_add_u32 s%d, s%d, s%d' % (sPQ0, sPQ0, sT0)); p('s_add_u32 s%d, s%d, 0x%x' % (sPQ0, sPQ0, PQ_OFF))
    p('s_add_u32 s%d, s%d, 32768' % (sPQ1, sPQ0))
    p('s_add_u32 s%d, s%d, 0x%x' % (sKZ, sT0, KVZ_OFF))
    p('s_waitcnt lgkmcnt(0)')
    for base, src, n in ((S_X, 60, 2048 * 1024), (S_WO, 62, 512 * 1024), (S_WD, 64, 1792 * 1024), (S_OUT, 66, 2048 * 1024), (S_WS, 68, WS_BYTES)):
        p('s_mov_b32 s%d, s%d' % (base, src)); p('s_mov_b32 s%d, s%d' % (base + 1, src + 1))
        p('s_mov_b32 s%d, 0x%x' % (base + 2, n)); p('s_mov_b32 s%d, 0x00020000' % (base + 3))

def final_reduce(p, acc, sRT, sCT, sW, srdX, srdOUT, vL, vT, sT0, sT1):
    p.wait_all(vm=False); p('s_barrier')
    wa = vT
    p('v_and_b32 v%d, 31, v%d' % (wa, vL)); p('v_mul_u32_u24 v%d, 272, v%d' % (wa, wa))
    p('v_lshrrev_b32 v%d, 5, v%d' % (wa + 1, vL)); p('v_lshl_add_u32 v%d, v%d, 4, v%d' % (wa, wa + 1, wa))
    p('s_mul_i32 s%d, s%d, 17408' % (sT0, sW)); p('v_add_u32 v%d, s%d, v%d' % (wa, sT0, wa))
    ga = vT + 1
    p('v_lshrrev_b32 v%d, 3, v0' % ga); p('v_lshlrev_b32 v%d, 10, v%d' % (ga, ga))
    p('v_and_b32 v%d, 7, v0' % (vT + 2)); p('v_lshl_add_u32 v%d, v%d, 4, v%d' % (ga, vT + 2, ga))
    p('s_lshl_b32 s%d, s%d, 16' % (sT0, sRT)); p('s_lshl_b32 s%d, s%d, 7' % (sT1, sCT)); p('s_add_u32 s%d, s%d, s%d' % (sT0, sT0, sT1))
    p('s_add_u32 s%d, s%d, 32768' % (sT1, sT0))
    XR = vT + 8
    xt = [p.vm('buffer_load_dwordx4 v[%d:%d], v%d, %s, s%d offen' % (XR + 4 * j, XR + 4 * j + 3, ga, srdX, (sT0, sT1)[j])) for j in range(2)]
    p('s_nop 7')
    for nt in range(2):
        for mt in range(2):
            for q in range(4):
                r = acc + 16 * (2 * nt + mt) + 4 * q
                p.lg('ds_write_b128 v%d, v[%d:%d] offset:%d' % (wa, r, r + 3, mt * 8704 + nt * 128 + q * 32))
    p.wait_all(vm=False); p('s_barrier')
    ra = vT + 2
    p('v_lshrrev_b32 v%d, 3, v0' % ra); p('v_mul_u32_u24 v%d, 272, v%d' % (ra, ra))
    p('v_and_b32 v%d, 7, v0' % (vT + 3)); p('v_lshl_add_u32 v%d, v%d, 5, v%d' % (ra, vT + 3, ra))
    R = acc
    rt = {}
    for j in range(2):
        for wv in range(4):
            for hh in range(2):
                r = R + 32 * j + 8 * wv + 4 * hh
                off = wv * 17408 + j * 8704 + hh * 16
                if off < 65536:
                    rt[(j, wv, hh)] = p.lg('ds_read_b128 v[%d:%d], v%d offset:%d' % (r, r + 3, ra, off))
    for j in range(2):
        p.wait([rt[(j, wv, hh)] for wv in range(4) for hh in range(2)])
        b = R + 32 * j
        for wv in (1, 2, 3):
            for r in range(8): p('v_add_f32 v%d, v%d, v%d' % (b + r, b + r, b + 8 * wv + r))
        p.wait(xt[j])
        t = vT + 16
        for q in range(4):
            x = XR + 4 * j + q
            p('v_lshlrev_b32 v%d, 16, v%d' % (t, x)); p('v_and_b32 v%d, 0xffff0000, v%d' % (t + 1, x))
            p('v_add_f32 v%d, v%d, v%d' % (b + 2 * q, b + 2 * q, t)); p('v_add_f32 v%d, v%d, v%d' % (b + 2 * q + 1, b + 2 * q + 1, t + 1))
            p('v_cvt_pk_bf16_f32 v%d, v%d, v%d' % (XR + 4 * j + q, b + 2 * q, b + 2 * q + 1))
        p.vm('buffer_store_dwordx4 v[%d:%d], v%d, %s, s%d offen' % (XR + 4 * j, XR + 4 * j + 3, ga, srdOUT, (sT0, sT1)[j]))

def k2_kernel():
    p = Prog()
    p('s_cmp_ge_u32 s2, 256'); p('s_cbranch_scc1 L_k2_end')
    p.stamps_on = STAMPS
    p.stamp_rt(0); p.stamp(1)
    k2_prologue(p)
    p.stamp(2)
    NR = 12
    wot = []
    for hh in range(8):
        p('s_add_u32 m0, s%d, %d' % (sWB, 2048 * hh)); p('s_nop 0')
        wot.append([p.vm('buffer_load_dwordx4 v%d, %s, s%d offen lds' % (vDM, srd(S_WO), sWO0)),
                    p.vm('buffer_load_dwordx4 v%d, %s, s%d offen offset:1024 lds' % (vDM, srd(S_WO), sWO1))])
        p('s_add_u32 s%d, s%d, 16384' % (sWO0, sWO0)); p('s_add_u32 s%d, s%d, 16384' % (sWO1, sWO1))
    wt, ht = {}, {}
    def dma_wd(fs):
        p('s_add_u32 m0, s%d, %d' % (sWB, 16384 + 2048 * (fs % NR))); p('s_nop 0')
        wt[fs] = [p.vm('buffer_load_dwordx4 v%d, %s, s%d offen lds' % (vDM, srd(S_WD), sWD0)),
                  p.vm('buffer_load_dwordx4 v%d, %s, s%d offen offset:1024 lds' % (vDM, srd(S_WD), sWD1))]
        p('s_add_u32 s%d, s%d, 16384' % (sWD0, sWD0)); p('s_add_u32 s%d, s%d, 16384' % (sWD1, sWD1))
    def ld_h(fs):
        ht[fs] = []
        for mt, so in enumerate((sH0, sH1)):
            r = HB + 8 * (fs % NR) + 4 * mt
            ht[fs].append(p.vm('buffer_load_dwordx4 v[%d:%d], v%d, %s, s%d offen' % (r, r + 3, vST, srd(S_WS), so)))
            p('s_add_u32 s%d, s%d, 1024' % (so, so))
    for fs in range(NR):
        dma_wd(fs); ld_h(fs)
    def tr4(off, fb):
        t = []
        for nt, reg in enumerate((vTR0, vTR1)):
            for rd in range(2):
                b = fb + 4 * nt + 2 * rd
                t.append(p.lg('ds_read_b64_tr_b16 a[%d:%d], v%d offset:%d' % (b, b + 1, reg, off + 1024 * rd)))
        return t
    ft = {}
    p.wait(wt[0]); ft[0] = tr4(16384, 0)
    for fs in range(28):
        if fs + 1 < 28:
            p.wait(wt[fs + 1]); ft[fs + 1] = tr4(16384 + 2048 * ((fs + 1) % NR), 8 * ((fs + 1) & 1))
        p.wait(ft[fs])
        if fs + NR < 28: dma_wd(fs + NR)
        p.wait(ht[fs])
        fb = 8 * (fs & 1)
        for nt in range(2):
            for mt in range(2):
                d = ACC + 16 * (2 * nt + mt); r = HB + 8 * (fs % NR) + 4 * mt
                p('v_mfma_f32_32x32x16_bf16 v[%d:%d], a[%d:%d], v[%d:%d], %s' % (d, d + 15, fb + 4 * nt, fb + 4 * nt + 3, r, r + 3, '0' if fs == 0 else 'v[%d:%d]' % (d, d + 15)))
        if fs + NR < 28: ld_h(fs + NR)
    p.stamp(3)
    PQR, KZR = HB, HB + 64
    pqt, kzt = {}, {}
    for hh in range(8):
        kzt[hh] = p.vm('buffer_load_dwordx4 v[%d:%d], v%d, %s, s%d offen' % (KZR + 4 * hh, KZR + 4 * hh + 3, vST, srd(S_WS), sKZ)); p('s_add_u32 s%d, s%d, 1024' % (sKZ, sKZ))
        for mt, so in enumerate((sPQ0, sPQ1)):
            r = PQR + 8 * hh + 4 * mt
            pqt[(hh, mt)] = p.vm('buffer_load_dwordx4 v[%d:%d], v%d, %s, s%d offen' % (r, r + 3, vST, srd(S_WS), so)); p('s_add_u32 s%d, s%d, 1024' % (so, so))
    for hh in range(8):
        p.wait(wot[hh]); f = tr4(2048 * hh, 8 * (hh & 1))
        p.wait([kzt[hh], pqt[(hh, 0)], pqt[(hh, 1)]])
        for mt in range(2):
            d = ND + 16 * mt
            p('v_mfma_f32_32x32x16_bf16 v[%d:%d], v[%d:%d], v[%d:%d], 0' % (d, d + 15, KZR + 4 * hh, KZR + 4 * hh + 3, PQR + 8 * hh + 4 * mt, PQR + 8 * hh + 4 * mt + 3))
        p('s_nop 7'); p('s_nop 3')
        for mt in range(2):
            d = ND + 16 * mt
            num, den = (d, d + 8) if hh % 2 == 0 else (d + 8, d)
            t = vT + 8 * mt
            p('v_add_f32 v%d, s%d, v%d' % (t + 4, sEPS, den)); p('v_rcp_f32 v%d, v%d' % (t + 4, t + 4)); p('s_nop 0')
            for r in range(8): p('v_mul_f32 v%d, v%d, v%d' % (num + r, num + r, t + 4))
            for q in range(4): p('v_cvt_pk_bf16_f32 v%d, v%d, v%d' % (t + q, num + 2 * q, num + 2 * q + 1))
        p.wait(f)
        p('s_nop 1')
        fb = 8 * (hh & 1)
        for nt in range(2):
            for mt in range(2):
                d = ACC + 16 * (2 * nt + mt); t = vT + 8 * mt
                p('v_mfma_f32_32x32x16_bf16 v[%d:%d], a[%d:%d], v[%d:%d], v[%d:%d]' % (d, d + 15, fb + 4 * nt, fb + 4 * nt + 3, t, t + 3, d, d + 15))
    p.stamp(4)
    p('s_nop 7'); p('s_nop 3')
    final_reduce(p, ACC, sRT, sCT, sW, srd(S_X), srd(S_OUT), vL, vT, sT0, sT1)
    p.stamp(5)
    if p.stamps_on:
        p('s_waitcnt vmcnt(0)'); p.stamp(6); p.stamp_rt(7)
        p.stamp_dump(srd(S_WS), 0x8100000, 8)
    p.label('L_k2_end')
    return p
```

```python
import sys
from fw import *
import fused as F
from fused import (NAME, H_OFF, PQ_OFF, KVP_OFF, KVZ_OFF, FLG_H, FLG_KVP, FLG_KVZ, NONCE_OFF, WS_BYTES, SPARE, ST, LD,
                   S_X, S_WQ, S_WG, S_WU, S_WS, S_WD, S_WO, S_OUT, S_DBG, sW, sI, sMEM, sQD, sWB, sMASK, sLOG2E, sEPS, sONES,
                   sX, sL, sG2, sHST1, sHST1b, sHST2, sPQ, sKVP, sT0, sT1, sT2, sNONCE, sSPIN, sRT, sCT, sWD0, sWD1, sWO0, sWO1, sU, sS2,
                   srd, vL, vX0, vX1, vWA, vWB, vWC, vWD, vST, vRS, vNM, vD2, vTR, vT, vT2A, vT2B, ACC2, XF, xf, ACC1, WF, EPSB, T,
                   tiles_of, wf, norm_items, store_item, mlp_epi_items, phi_items, pack_items, Mark,
                   emit_flag, uniform_flag, interleave, KVS)
sROT, sKW, sIncQ, sIncG = 90, 91, 92, 93
sKX, sIncX = 88, 89
sK2, sInc2 = 49, 50
LAT = 2200

NRING = 4
def slot_base_const(S):
    Tg = S >> 2; r = S & 3
    if Tg == 0: return SPARE + 6144 * r
    return 32768 * r + 6144 * ((Tg - 1) % NRING)

def tr_items(p, role, S, variants, ftok):
    grp = 1 if S < 32 else 2
    tl = tiles_of(role, grp); G = len(tl)
    items = []; blk = slot_base_const(S)
    for j, (var, lo, rds, sw) in enumerate(tl):
        ftok[(S, j)] = []
        for rd in range(2):
            const = blk + lo + rd * rds
            win, off = const >> 16, const & 0xffff
            b = wf(S, j, G) + 2 * rd
            def f(b=b, reg=variants[var][win], off=off, key=(S, j)):
                ftok[key].append(p.lg('ds_read_b64_tr_b16 a[%d:%d], v%d offset:%d' % (b, b + 1, reg, off)))
            items.append(f)
    return items

def prologue(p):
    if p.stamps_on: p('s_memrealtime s[96:97]'); p('s_memtime s[98:99]')
    p('s_load_dwordx2 s[70:71], s[0:1], 0')
    p('s_load_dwordx4 s[72:75], s[0:1], 8')
    p('s_load_dwordx4 s[76:79], s[0:1], 32')
    p('s_load_dwordx8 s[80:87], s[0:1], 48')
    p('v_and_b32 v%d, 63, v0' % vL)
    p('v_lshrrev_b32 v%d, 6, v0' % vT)
    p('s_and_b32 s%d, s2, 7' % sT0)
    p('s_lshr_b32 s%d, s2, 3' % sT1)
    p('v_readfirstlane_b32 s%d, v%d' % (sW, vT))
    p('s_lshr_b32 s%d, s%d, 1' % (sQD, sT0))
    p('s_lshl_b32 s%d, s%d, 2' % (sRT, sT0)); p('s_and_b32 s%d, s%d, 3' % (sT2, sT1)); p('s_add_u32 s%d, s%d, s%d' % (sRT, sRT, sT2))
    p('s_lshr_b32 s%d, s%d, 2' % (sCT, sT1))
    p('s_and_b32 s%d, s%d, 1' % (sT0, sT0)); p('s_lshl_b32 s%d, s%d, 3' % (sT0, sT0))
    p('s_and_b32 s%d, s%d, 7' % (sI, sT1)); p('s_add_u32 s%d, s%d, s%d' % (sI, sI, sT0))
    p('s_lshr_b32 s%d, s%d, 3' % (sMEM, sT1))
    p('s_lshl_b32 s%d, s%d, 1' % (sROT, sMEM)); p('s_add_u32 s%d, s%d, s%d' % (sROT, sROT, sI)); p('s_and_b32 s%d, s%d, 7' % (sROT, sROT))
    p('s_lshl_b32 s%d, s%d, 15' % (sWB, sW))
    a, b, c = vT, vT + 1, vT + 2
    p('v_lshrrev_b32 v%d, 3, v%d' % (a, vL)); p('v_lshlrev_b32 v%d, 10, v%d' % (a, a))
    p('v_and_b32 v%d, 7, v%d' % (b, vL)); p('v_lshrrev_b32 v%d, 4, v%d' % (c, vL)); p('v_xor_b32 v%d, v%d, v%d' % (b, b, c))
    p('v_lshl_add_u32 v%d, v%d, 4, v%d' % (vX0, b, a))
    p('s_lshl_b32 s%d, s%d, 7' % (sT2, sROT))
    p('v_add_u32 v%d, s%d, v%d' % (vX0, sT2, vX0))
    p('v_xor_b32 v%d, 64, v%d' % (vX1, vX0))
    p('s_mov_b32 s%d, s%d' % (sKX, sROT))
    p('s_lshl_b32 s%d, s%d, 2' % (sT0, sI)); p('s_add_u32 s%d, s%d, s%d' % (sT0, sT0, sW))
    p('s_lshl_b32 s%d, s%d, 15' % (sX[0], sT0))
    for q in range(1, 4): p('s_add_u32 s%d, s%d, %d' % (sX[q], sX[0], 7168 * q))
    p('s_mul_i32 s%d, s%d, %d' % (sHST1, sT0, 112 * 1024))
    p('s_lshl_b32 s%d, s%d, 15' % (sPQ, sT0)); p('s_add_u32 s%d, s%d, 0x%x' % (sPQ, sPQ, PQ_OFF))
    p('s_waitcnt lgkmcnt(0)')
    p('s_mov_b32 s%d, s70' % S_X); p('s_mov_b32 s%d, s71' % (S_X + 1)); p('s_mov_b32 s%d, 0x%x' % (S_X + 2, 2048 * 1024)); p('s_mov_b32 s%d, 0x00020000' % (S_X + 3))
    later = []
    for base, src, n in ((S_WQ, 72, 512 * 3072), (S_WO, 74, 512 * 1024), (S_WG, 76, 512 * 3584), (S_WU, 78, 512 * 3584),
                         (S_WD, 80, 1792 * 1024), (S_OUT, 82, 2048 * 1024), (S_DBG, 84, 256), (S_WS, 86, WS_BYTES)):
        later += [T(p, 's_mov_b32 s%d, s%d' % (base, src)), T(p, 's_mov_b32 s%d, s%d' % (base + 1, src + 1)),
                  T(p, 's_mov_b32 s%d, 0x%x' % (base + 2, n)), T(p, 's_mov_b32 s%d, 0x00020000' % (base + 3))]
    if p.stamps_on: later += [T(p, 's_mov_b32 s70, s96'), T(p, 's_mov_b32 s72, s98')]
    for s, v in ((sMASK, 0xffff0000), (sLOG2E, 0x3fb8aa3b), (sEPS, 0x358637bd), (sONES, 0x3f803f80)):
        later.append(T(p, 's_mov_b32 s%d, 0x%x' % (s, v)))
    later.append(T(p, 'v_lshlrev_b32 v%d, 4, v%d' % (vST, vL)))
    later.append(T(p, 's_mov_b32 s%d, s%d' % (sKW, sROT)))
    return later

def x_dma_items(p):
    toks = [[] for _ in range(8)]; items = []
    for c in range(8):
        for q in range(4):
            def f(c=c, q=q):
                if q == 0:
                    p('s_add_u32 m0, s%d, %d' % (sWB, 4096 * c))
                    p('s_add_u32 s%d, s%d, 1' % (sKX, sKX)); p('s_and_b32 s%d, s%d, 7' % (sKX, sKX))
                    p('s_movk_i32 s%d, 128' % sIncX); p('s_cmp_eq_u32 s%d, 0' % sKX); p('s_cselect_b32 s%d, 0xfffffc80, s%d' % (sIncX, sIncX))
                toks[c].append(p.vm('buffer_load_dwordx4 v%d, %s, s%d offen offset:%d lds' % ((vX0, vX1)[q & 1], srd(S_X), sX[q], 1024 * q)))
                if q == 3 and c < 7:
                    p('v_add_u32 v%d, s%d, v%d' % (vX0, sIncX, vX0)); p('v_add_u32 v%d, s%d, v%d' % (vX1, sIncX, vX1))
            items.append(f)
    return items, toks

def setup_items(p, role):
    its, variants = F.setup_items(p, role)
    q = []
    q.append('s_mul_i32 s%d, s%d, %d' % (sT1, sROT, 64 * 3072)); q.append('s_mul_i32 s%d, s%d, %d' % (sT2, sROT, 64 * 3584))
    if role == 'AB':
        q += ['v_add_u32 v%d, s%d, v%d' % (vWA, sT1, vWA), 'v_add_u32 v%d, s%d, v%d' % (vWB, sT2, vWB), 'v_add_u32 v%d, s%d, v%d' % (vWC, sT2, vWC)]
    else:
        q += ['v_add_u32 v%d, s%d, v%d' % (v, sT2, v) for v in (vWA, vWB, vWC, vWD)]
    return its + [T(p, x) for x in q], variants

def dma_stage_items(p, role, Tg):
    toks = []; items = []
    base = 6144 * ((Tg - 1) % NRING)
    def line(m0off, v, s, so0, so1, adv, first):
        def f():
            if Tg == 0: p('s_add_u32 m0, s%d, %d' % (sT0, m0off))
            else: p('s_add_u32 m0, s%d, %d' % (sWB, base + m0off))
            if first:
                p('s_add_u32 s%d, s%d, 1' % (sKW, sKW)); p('s_and_b32 s%d, s%d, 7' % (sKW, sKW))
                p('s_mov_b32 s%d, %d' % (sIncG, 64 * 3584))
                if role == 'AB' and Tg < 8: p('s_mov_b32 s%d, %d' % (sIncQ, 64 * 3072))
                p('s_cmp_eq_u32 s%d, 0' % sKW)
                p('s_cselect_b32 s%d, 0x%x, s%d' % (sIncG, (-448 * 3584) & 0xffffffff, sIncG))
                if role == 'AB' and Tg < 8: p('s_cselect_b32 s%d, 0x%x, s%d' % (sIncQ, (-448 * 3072) & 0xffffffff, sIncQ))
            else: p('s_nop 0')
            toks.append(p.vm('buffer_load_dwordx4 v%d, %s, s%d offen lds' % (v, srd(s), so0)))
            if so1 is not None: toks.append(p.vm('buffer_load_dwordx4 v%d, %s, s%d offen offset:1024 lds' % (v, srd(s), so1)))
            if adv is not None: p('v_add_u32 v%d, s%d, v%d' % (v, adv, v))
        return f
    if Tg < 8:
        if role == 'AB':
            for li in range(3): items.append(line(2048 * li, vWA, S_WQ, sL[2 * li], sL[2 * li + 1], sIncQ if (li == 2 and Tg < 7) else None, li == 0))
        else:
            items.append(line(0, vWA, S_WG, sL[0], sL[1], sIncG, True))
            items.append(line(2048, vWB, S_WU, sL[0], sL[1], sIncG, False))
            items.append(line(4096, vWC, S_WG, sL[2], None, sIncG if Tg < 7 else None, False))
            items.append(line(5120, vWD, S_WU, sL[2], None, sIncG if Tg < 7 else None, False))
    else:
        g, u = (vWB, vWC) if role == 'AB' else (vWA, vWB)
        items.append(line(0, g, S_WG, sG2[0], sG2[1], sIncG if Tg < 15 else None, True))
        items.append(line(2048, u, S_WU, sG2[0], sG2[1], sIncG if Tg < 15 else None, False))
    return items, toks

def emit_poll_loop(p, vaddr, soff, vdst):
    l0, l1 = p.newlabel('L_poll'), p.newlabel('L_pollok')
    p('s_mov_b32 s%d, 0' % sSPIN)
    p.label(l0)
    p('buffer_load_dword v%d, v%d, %s, s%d offen %s' % (vdst, vaddr, srd(S_WS), soff, LD))
    p('s_waitcnt vmcnt(0)')
    p('v_cmp_eq_u32 vcc, s%d, v%d' % (sNONCE, vdst))
    p('s_nop 1')
    p('s_cmp_eq_u64 vcc, -1')
    p('s_cbranch_scc1 %s' % l1)
    p('s_sleep 1')
    p('s_add_u32 s%d, s%d, 1' % (sSPIN, sSPIN)); p('s_cmp_lt_u32 s%d, 20000' % sSPIN)
    p('s_cbranch_scc1 %s' % l0)
    p.label(l1)
    p.vm_issued += 1; p.vm_done = p.vm_issued

def poll_issue(p, vaddr, soff, vdst):
    return p.vm('buffer_load_dword v%d, v%d, %s, s%d offen %s' % (vdst, vaddr, srd(S_WS), soff, LD))

def poll_check(p, tok, vaddr, soff, vdst):
    p.wait(tok)
    l0, l1 = p.newlabel('L_pc'), p.newlabel('L_pcok')
    p('v_cmp_eq_u32 vcc, s%d, v%d' % (sNONCE, vdst)); p('s_nop 1'); p('s_cmp_eq_u64 vcc, -1'); p('s_cbranch_scc1 %s' % l1)
    p('s_mov_b32 s%d, 0' % sSPIN)
    p.label(l0)
    p('s_sleep 1')
    p('buffer_load_dword v%d, v%d, %s, s%d offen %s' % (vdst, vaddr, srd(S_WS), soff, LD))
    p('s_waitcnt vmcnt(0)')
    p('v_cmp_eq_u32 vcc, s%d, v%d' % (sNONCE, vdst)); p('s_nop 1'); p('s_cmp_eq_u64 vcc, -1'); p('s_cbranch_scc1 %s' % l1)
    p('s_add_u32 s%d, s%d, 1' % (sSPIN, sSPIN)); p('s_cmp_lt_u32 s%d, 20000' % sSPIN); p('s_cbranch_scc1 %s' % l0)
    p.label(l1)

def epilogue1_items(p, role, free_oct, kvp_toks):
    t = vT + 8
    if role == 'CD':
        pre = []
        for j in range(6):
            soff, off = (sHST1, 1024 * j) if j < 4 else (sHST1b, 1024 * (j - 4))
            pre += mlp_epi_items(p, ACC1 + 16 * j, True, t + (j & 1) * 12, soff, off)
            pre.append(Mark(lambda j=j: free_oct.extend([ACC1 + 16 * j, ACC1 + 16 * j + 8])))
        return [pre]
    PK = vT + 16; VV = vT + 24; BS = vT + 32
    pre = []
    for pr in range(2):
        pre += phi_items(p, ACC1 + 16 * pr, t, PK) + phi_items(p, ACC1 + 16 * pr + 8, t, PK + 4)
        pre += pack_items(p, ACC1 + 32 + 16 * pr, t, VV) + pack_items(p, ACC1 + 32 + 16 * pr + 8, t, VV + 4)
        da = ACC1 + 16 * pr; db = ACC1 + 32 + 16 * pr
        for hb, (d, msk) in enumerate(((da, 0x0000ffff), (db, 0xffff0000))):
            pre.append(T(p, 's_mov_b32 vcc_lo, 0x%x' % msk)); pre.append(T(p, 's_mov_b32 vcc_hi, 0x%x' % msk))
            for r in range(8): pre.append(T(p, 'v_cndmask_b32 v%d, v%d, v%d, vcc' % (BS + r, vT + 7, VV + r)))
            pre.append(T(p, 's_nop 1'))
            pre.append(T(p, 'v_mfma_f32_32x32x16_bf16 a[%d:%d], v[%d:%d], v[%d:%d], 0' % (d, d + 15, PK, PK + 3, BS, BS + 3)))
            pre.append(T(p, 'v_mfma_f32_32x32x16_bf16 a[%d:%d], v[%d:%d], v[%d:%d], a[%d:%d]' % (d, d + 15, PK + 4, PK + 7, BS + 4, BS + 7, d, d + 15)))
    def qhead(pr, hb):
        dst = PK + 4 * hb
        return phi_items(p, ACC1 + 64 + 16 * pr + 8 * hb, t, dst) + [store_item(p, dst, sPQ, 1024 * (2 * pr + hb)), Mark(lambda: free_oct.append(ACC1 + 64 + 16 * pr + 8 * hb))]
    pre += qhead(0, 0)
    KA = vT + 6
    pre.append(T(p, 'v_add_u32 v%d, s%d, v%d' % (KA, sWB, vST)))
    for hd in range(4):
        pr, hb = hd >> 1, hd & 1
        src = (ACC1 + 16 * pr) if hb == 0 else (ACC1 + 32 + 16 * pr + 8)
        for q in range(2):
            pre.append(lambda src=src, q=q, hd=hd: p.last_ds_writes.append(p.lg('ds_write_b128 v%d, a[%d:%d] offset:%d' % (KA, src + 4 * q, src + 4 * q + 3, KVS[hd] + q * 1024))))
    pre.append(Mark(lambda: free_oct.extend([ACC1 + 8 * k for k in range(8)])))
    post = []
    RA = vT + 6; RB = vT + 5; rtok = []
    post.append(T(p, 's_mul_i32 s%d, s%d, 6144' % (sT0, sW))); post.append(T(p, 's_add_u32 s%d, s%d, 4096' % (sT0, sT0)))
    post.append(T(p, 'v_add_u32 v%d, s%d, v%d' % (RA, sT0, vST))); post.append(T(p, 'v_add_u32 v%d, 0x10000, v%d' % (RB, RA)))
    R = vT + 8
    def rd(wv, q, dst): return lambda: rtok.append(p.lg('ds_read_b128 v[%d:%d], v%d offset:%d' % (dst, dst + 3, RA if wv < 2 else RB, (wv & 1) * 32768 + q * 1024)))
    for wv in range(4):
        for q in range(2): post.append(rd(wv, q, R + 8 * wv + 4 * q))
    post.append(lambda: p.wait(rtok))
    for wv in (1, 2, 3):
        for r in range(8): post.append(T(p, 'v_add_f32 v%d, v%d, v%d' % (R + r, R + r, R + 8 * wv + r)))
    for q in range(2): post.append(store_item(p, R + 4 * q, sKVP, 1024 * q, kvp_toks))
    post.append(T(p, 's_nop 1'))
    rest = []
    for (pr, hb) in ((0, 1), (1, 0), (1, 1)): rest += qhead(pr, hb)
    return [pre, post + rest]

def build_role(p, role):
    xit, xt = x_dma_items(p)
    su, variants = setup_items(p, role)
    su = p.later + su
    k = 0
    for n, f in enumerate(xit):
        f()
        upto = (len(su) * (n + 1) + len(xit) - 1) // len(xit)
        while k < min(upto, len(su)): su[k](); k += 1
    p.stamp(2)
    p('v_add_u32 v%d, s%d, v%d' % (vX0, sS2, vT2A)); p('v_add_u32 v%d, s%d, v%d' % (vX1, sS2, vT2B))
    p('v_add_u32 v%d, s%d, v%d' % (vT + 22, sWB, vT2A)); p('v_add_u32 v%d, s%d, v%d' % (vT + 23, sWB, vT2B))
    p('s_and_b32 s%d, s%d, 3' % (sK2, sRT)); p('s_mul_i32 s%d, s%d, 7' % (sK2, sK2)); p('s_mul_i32 s%d, s%d, 3' % (sT1, sCT)); p('s_add_u32 s%d, s%d, s%d' % (sK2, sK2, sT1))
    p('s_sub_u32 s%d, s%d, 28' % (sT1, sK2)); p('s_cmp_ge_u32 s%d, 28' % sK2); p('s_cselect_b32 s%d, s%d, s%d' % (sK2, sT1, sK2))
    p('s_mov_b32 s%d, s%d' % (sX[2], sK2))
    p('s_lshl_b32 s%d, s%d, 14' % (sT1, sK2)); p('s_add_u32 s%d, s%d, s%d' % (sWD0, sWD0, sT1)); p('s_add_u32 s%d, s%d, s%d' % (sWD1, sWD1, sT1))
    ln1 = p.newlabel('L_n1')
    p('v_mov_b32 v%d, 0' % (vT + 16))
    p('s_or_b32 s%d, s2, s%d' % (sT1, sW)); p('s_cmp_lg_u32 s%d, 0' % sT1); p('s_cbranch_scc1 %s' % ln1)
    p('s_mov_b32 s%d, 0x%x' % (sT1, NONCE_OFF))
    p('buffer_load_dword v%d, v%d, %s, s%d offen %s' % (vT + 17, vT + 16, srd(S_WS), sT1, LD))
    p.label(ln1)
    n_at = p.vm_issued
    p('s_mul_i32 s%d, s%d, 6144' % (sT0, sW)); p('s_add_u32 s%d, s%d, %d' % (sT0, sT0, SPARE))
    stok = {}
    it, stok[0] = dma_stage_items(p, role, 0)
    for f in it: f()
    xa = vT + 8
    vS, vQ = vT + 12, vT + 13
    for r in (vS, vQ, vS + 2, vQ + 2): p('v_mov_b32 v%d, 0' % r)
    free_after = {1: 1, 2: 2, 4: 3, 5: 4}
    rt = {}; dq = []
    def stats(c):
        p.wait(rt[c])
        if c in free_after:
            it, stok[free_after[c]] = dma_stage_items(p, role, free_after[c]); dq.extend(it)
        for r in range(16):
            reg = XF + 16 * c + r; o = 2 * (r & 1)
            p('v_dot2_f32_bf16 v%d, v%d, s%d, v%d' % (vS + o, reg, sONES, vS + o))
            p('v_dot2_f32_bf16 v%d, v%d, v%d, v%d' % (vQ + o, reg, reg, vQ + o))
            if r % 6 == 5 and dq: dq.pop(0)()
    for c in range(8):
        p.wait(xt[c])
        rt[c] = [p.lg('ds_read_b128 %s, v%d offset:%d' % (xf(4 * c + ss), xa + ss, 4096 * c)) for ss in range(4)]
        if c > 0: stats(c - 1)
    stats(7)
    p.stamp(3)
    ln2 = p.newlabel('L_n2')
    p('s_or_b32 s%d, s2, s%d' % (sT1, sW)); p('s_cmp_lg_u32 s%d, 0' % sT1); p('s_cbranch_scc1 %s' % ln2)
    p('s_waitcnt vmcnt(%d)' % min(63, p.vm_issued - n_at))
    p('v_add_u32 v%d, 64, v%d' % (vT + 18, vT + 17)); p('v_or_b32 v%d, 1, v%d' % (vT + 18, vT + 18))
    p('s_mov_b32 s%d, 0x%x' % (sT1, NONCE_OFF))
    p('s_mov_b64 s[88:89], exec'); p('s_mov_b64 exec, 1')
    p('buffer_store_dword v%d, v%d, %s, 0 offen %s' % (vT + 18, vT + 16, srd(S_DBG), ST))
    p('buffer_store_dword v%d, v%d, %s, s%d offen %s' % (vT + 18, vT + 16, srd(S_WS), sT1, ST))
    p('s_mov_b64 exec, s[88:89]')
    p.label(ln2)
    p('v_add_f32 v%d, v%d, v%d' % (vS, vS, vS + 2)); p('v_add_f32 v%d, v%d, v%d' % (vQ, vQ, vQ + 2))
    p('v_mov_b32 v%d, v%d' % (vS + 2, vS)); p('v_mov_b32 v%d, v%d' % (vQ + 2, vQ))
    p('s_nop 1')
    p('v_permlane32_swap_b32 v%d, v%d' % (vS, vS + 2)); p('v_permlane32_swap_b32 v%d, v%d' % (vQ, vQ + 2))
    p('s_nop 1')
    p('v_add_f32 v%d, v%d, v%d' % (vS, vS, vS + 2)); p('v_add_f32 v%d, v%d, v%d' % (vQ, vQ, vQ + 2))
    p('v_mul_f32 v%d, 0x3b000000, v%d' % (vS, vS)); p('v_mul_f32 v%d, 0x3b000000, v%d' % (vQ, vQ))
    p('v_fma_f32 v%d, -v%d, v%d, v%d' % (vQ, vS, vS, vQ))
    p('v_max_f32 v%d, 0, v%d' % (vQ, vQ)); p('v_add_f32 v%d, 0x3727c5ac, v%d' % (vQ, vQ))
    p('v_rsq_f32 v%d, v%d' % (vRS, vQ)); p('s_nop 0')
    p('v_mul_f32 v%d, v%d, v%d' % (vNM, vS, vRS)); p('v_sub_f32 v%d, 0, v%d' % (vNM, vNM))
    for f in norm_items(p, 0, vT): f()
    p.wait(stok[0]); p('s_barrier')
    p.stamp(4)
    ftok = {}
    for f in tr_items(p, role, 0, variants, ftok): f()

    kc1, kc2 = 235, (185 if role == 'AB' else 140)
    est = [0]
    for S in range(64): est.append(est[-1] + (kc1 if S < 32 else kc2))
    free_oct = [160 + 8 * k for k in range(12)]
    W = dict(pos=0, loc={}, dtok={}, ttok={}, dS={}, slot_owner=[None] * 8, tr_next=0)
    RES = [(55, o) for o in (18432, 20480, 22528)] + [(59, o) for o in (0, 2048, 4096)] + [(63, o) for o in (6144, 8192, 10240)] + [(64, o) for o in (12288, 14336, 16384)]
    cur_vR = [vT + 22, vT + 23]
    def slot_info(sl):
        if sl < 4: return sWB, 24576 + 2048 * sl, cur_vR, 24576 + 2048 * sl, 0
        return sS2, 2048 * (sl - 4), (vX0, vX1), 2048 * (sl - 4), 7
    res_next = [0]
    wo_loc, wo_tok = {}, {}
    wo_next = [0]
    def adv2():
        p('s_add_u32 s%d, s%d, 1' % (sK2, sK2)); p('s_mov_b32 s%d, 16384' % sInc2); p('s_cmp_eq_u32 s%d, 28' % sK2)
        p('s_cselect_b32 s%d, 0x%x, s%d' % (sInc2, (-27 * 16384) & 0xffffffff, sInc2)); p('s_cselect_b32 s%d, 0, s%d' % (sK2, sK2))
        p('s_add_u32 s%d, s%d, s%d' % (sWD0, sWD0, sInc2)); p('s_add_u32 s%d, s%d, s%d' % (sWD1, sWD1, sInc2))
    def wd_dma(pos, breg, off, pre=None):
        toks = W['dtok'].setdefault(pos, [])
        def f():
            if pre: p.wait(pre)
            p('s_add_u32 m0, s%d, %d' % (breg, off)); p('s_nop 0')
            toks.append(p.vm('buffer_load_dwordx4 v%d, %s, s%d offen lds' % (vD2, srd(S_WD), sWD0)))
            toks.append(p.vm('buffer_load_dwordx4 v%d, %s, s%d offen offset:1024 lds' % (vD2, srd(S_WD), sWD1)))
            if pos < 27: adv2()
        return f
    def wo_dma(hh, breg, off, pre=None):
        toks = wo_tok.setdefault(hh, [])
        def f():
            if pre: p.wait(pre)
            p('s_add_u32 m0, s%d, %d' % (breg, off)); p('s_nop 0')
            toks.append(p.vm('buffer_load_dwordx4 v%d, %s, s%d offen lds' % (vD2, srd(S_WO), sWO0)))
            toks.append(p.vm('buffer_load_dwordx4 v%d, %s, s%d offen offset:1024 lds' % (vD2, srd(S_WO), sWO1)))
            if hh < 7: p('s_add_u32 s%d, s%d, 16384' % (sWO0, sWO0)); p('s_add_u32 s%d, s%d, 16384' % (sWO1, sWO1))
        return f
    def tr4_items(pos, regs, off, octb, store):
        it = []
        for nt, reg in enumerate(regs):
            for rd in range(2):
                b = octb + 4 * nt + 2 * rd
                def f(b=b, reg=reg, o=off + 1024 * rd, first=(nt == 0 and rd == 0)):
                    if first: p.wait(W['dtok'][pos])
                    store.append(p.lg('ds_read_b64_tr_b16 a[%d:%d], v%d offset:%d' % (b, b + 1, reg, o)))
                it.append(f)
        return it
    def next_w2_item(S):
        pos = W['pos']
        if pos < 28:
            for sl in range(8):
                own = W['slot_owner'][sl]
                breg, moff, _, _, s0 = slot_info(sl)
                if S >= s0 and (own is None or (own >= 0 and W['loc'][own][0] == 'agpr' and len(W['ttok'].get(own, [])) == 4)):
                    pre = W['ttok'][own] if own is not None else None
                    W['slot_owner'][sl] = pos; W['loc'][pos] = ('stage', sl); W['dS'][pos] = S; W['pos'] += 1
                    return wd_dma(pos, breg, moff, pre)
            if res_next[0] < len(RES) and S >= RES[res_next[0]][0]:
                off = RES[res_next[0]][1]; res_next[0] += 1
                W['loc'][pos] = ('res', off); W['dS'][pos] = S; W['pos'] += 1
                return wd_dma(pos, sWB, off)
            return None
        if wo_next[0] < 8 and res_next[0] < len(RES) and S >= RES[res_next[0]][0]:
            off = RES[res_next[0]][1]; res_next[0] += 1
            hh = wo_next[0]; wo_next[0] += 1; wo_loc[hh] = ('res', off)
            return wo_dma(hh, sWB, off)
        if wo_next[0] < 8 and S >= 64:
            for sl in range(8):
                own = W['slot_owner'][sl]
                if own is None or (own >= 0 and W['loc'][own][0] == 'agpr' and len(W['ttok'].get(own, [])) == 4):
                    pre = W['ttok'][own] if own is not None else None
                    W['slot_owner'][sl] = -1
                    breg, moff, _, _, _ = slot_info(sl)
                    hh = wo_next[0]; wo_next[0] += 1; wo_loc[hh] = (('res', moff) if sl < 4 else ('stage', moff))
                    return wo_dma(hh, breg, moff, pre)
        return None

    kvp_toks = []
    phases = epilogue1_items(p, role, free_oct, kvp_toks)
    cur_phase = 0; phase_done_S = -1; kvp_S = 0; n_at2 = 0
    nonce_w, nonce_r = [], []
    p.last_ds_writes = []
    dmaq = dq; kvp_flagged = False
    for S in range(64):
        grp = 1 if S < 32 else 2
        tl = tiles_of(role, grp); G = len(tl); s = S & 31
        def mk(j, S=S, s=s, tl=tl, G=G, grp=grp):
            var, lo, rds, sw = tl[j]
            b = wf(S, j, G); Wr = 'a[%d:%d]' % (b, b + 3)
            if grp == 1:
                d = 'a[%d:%d]' % (ACC1 + 16 * j, ACC1 + 16 * j + 15); c0 = '0'
                if role == 'AB' and j in (0, 1, 4, 5): c0 = 'a[%d:%d]' % (EPSB, EPSB + 15)
            else:
                d = 'v[%d:%d]' % (ACC2 + 16 * j, ACC2 + 16 * j + 15); c0 = '0'
            c = c0 if s == 0 else d
            A, B = (xf(s), Wr) if sw else (Wr, xf(s))
            def f():
                h = G // 2
                if j % h == 0: p.wait([t for jj in range(j, j + h) for t in ftok[(S, jj)]])
                p('v_mfma_f32_32x32x16_bf16 %s, %s, %s, %s' % (d, A, B, c))
            return f
        mf = [mk(j) for j in range(G)]
        if S == 32: p.stamp(5)
        p.stamp(100 + S)
        if S == 1: free_oct.extend([EPSB, EPSB + 8])
        if S == 33: free_oct.extend([WF + 32, WF + 40])
        def barrier_block(S=S):
            nonlocal cur_phase, phase_done_S, kvp_flagged, n_at2
            Tn = (S + 2) >> 2
            toks = list(stok[Tn]) if Tn <= 15 else []
            flag_kvp = (role == 'AB' and len(kvp_toks) == 2 and not kvp_flagged and est[S] >= est[kvp_S] + 1500)
            if flag_kvp: toks += kvp_toks
            adv_phase = (phase_done_S >= 0 and phase_done_S < S and cur_phase + 1 < len(phases))
            if adv_phase: toks += p.last_ds_writes
            p.wait(toks)
            p('s_barrier')
            if adv_phase:
                cur_phase += 1; phase_done_S = -1
            if flag_kvp:
                p('s_lshl_b32 s%d, s%d, 4' % (sT1, sU)); p('s_add_u32 s%d, s%d, s%d' % (sT1, sT1, sI))
                uniform_flag(p, FLG_KVP, sT1); kvp_flagged = True
            if S == 2:
                p('v_mov_b32 v%d, 0' % (vT + 16))
                nonce_r.append(p.vm('buffer_load_dword v%d, v%d, %s, 0 offen %s' % (vT + 19, vT + 16, srd(S_DBG), LD)))
            if S == 22:
                lp, lok = p.newlabel('L_np'), p.newlabel('L_nok')
                p.wait(nonce_r)
                p('s_mov_b32 s%d, 0' % sSPIN)
                p.label(lp)
                p('v_readfirstlane_b32 s%d, v%d' % (sNONCE, vT + 19)); p('s_nop 1')
                p('s_cmp_lg_u32 s%d, 0' % sNONCE); p('s_cbranch_scc1 %s' % lok)
                p('s_sleep 2')
                p('buffer_load_dword v%d, v%d, %s, 0 offen %s' % (vT + 19, vT + 16, srd(S_DBG), LD))
                p('s_waitcnt vmcnt(0)')
                p('s_add_u32 s%d, s%d, 1' % (sSPIN, sSPIN)); p('s_cmp_lt_u32 s%d, 20000' % sSPIN); p('s_cbranch_scc1 %s' % lp)
                p.label(lok)
            Td = (S >> 2) + NRING - 1
            if NRING + 1 <= Td <= 15:
                it, stok[Td] = dma_stage_items(p, role, Td); dmaq.extend(it)
        mf[0]()
        bar_here = (S % 4 == 2)
        L_tr = tr_items(p, role, S + 1, variants, ftok) if S + 1 < 64 else []
        L_norm = norm_items(p, s + 1, vT) if (grp == 1 and s + 1 < 32) else []
        if S == 31:
            L_norm = [T(p, 'v_mov_b32 v%d, v%d' % (vT, vT + 22)), T(p, 'v_mov_b32 v%d, v%d' % (vT + 1, vT + 23))]
            if role == 'AB': L_norm.append(T(p, 'v_mov_b32 v%d, s%d' % (vT + 7, sONES)))
        if S == 32: cur_vR[0], cur_vR[1] = vT, vT + 1
        budget = 2 if (grp == 1 or S >= 48) else 1
        L_dma = []
        if dmaq: L_dma.append(dmaq.pop(0))
        if dmaq and len(dmaq) > 3: L_dma.append(dmaq.pop(0))
        while len(L_dma) < budget:
            f = next_w2_item(S)
            if f is None: break
            L_dma.append(f)
        L_w2tr = []
        cand = [q for q in sorted(W['loc']) if W['loc'][q][0] == 'stage']
        st = cand[0] if cand else None
        if st is not None and est[S] >= est[W['dS'][st]] + LAT and free_oct and len(W['dtok'].get(st, [])) == 2:
            ob = free_oct.pop(0); sl = W['loc'][st][1]; W['loc'][st] = ('agpr', ob)
            _, _, regs, toff, _ = slot_info(sl)
            L_w2tr = tr4_items(st, tuple(regs), toff, ob, W['ttok'].setdefault(st, [])); W['tr_next'] += 1
        L_epi = []
        if grp == 2 and cur_phase < len(phases) and phases[cur_phase]:
            ph = phases[cur_phase]
            last = (46 if cur_phase == 0 else 62) if role == 'AB' else 54
            left = max(1, last - S + 1)
            n = (len(ph) + left - 1) // left
            L_epi = ph[:n]; del ph[:n]
            if not ph: phase_done_S = S
            if role == 'AB' and cur_phase == 1 and len(kvp_toks) < 2: kvp_S = S
        if bar_here:
            h = G // 2
            def part(L, lo, hi, n): return L[(len(L) * lo) // n:(len(L) * hi) // n]
            Ls = [L_tr, L_norm, L_epi, L_w2tr, L_dma]
            interleave(p, mf[1:h + 1], [part(L, 0, h, G - 1) for L in Ls])
            barrier_block()
            interleave(p, mf[h + 1:], [part(L, h, G - 1, G - 1) for L in Ls])
        else:
            interleave(p, mf[1:], [L_tr, L_norm, L_epi, L_w2tr, L_dma])
    for ph in phases: assert not ph, len(ph)
    assert not dmaq
    if role == 'AB': assert kvp_flagged
    p.stamp(6)
    p('s_nop 7'); p('s_nop 3')
    hst = []
    for j in range(4):
        for f in mlp_epi_items(p, ACC2 + 16 * j, False, vT + 12 * (j & 1), sHST2, 1024 * j, hst): f()
    p.stamp(7)
    p.c('W2 state at end of phase 1: pos=%d tr_next=%d wo_next=%d loc=%s' % (W['pos'], W['tr_next'], wo_next[0], sorted(W['loc'].items())))
    return dict(W=W, free_oct=free_oct, wo_loc=wo_loc, wo_tok=wo_tok, hst=hst, next_w2_item=next_w2_item, tr4_items=tr4_items)

def phase2(p, role, info):
    W, free_oct = info['W'], info['free_oct']
    sH0, sH1, sPQ0, sPQ1, sKZ, sF = sL[0], sL[1], sL[2], sL[3], sL[4], sL[5]
    sKH, sIncH = sK2, sInc2
    p.wait(info['hst'][-1]); p('s_barrier')
    p('s_lshl_b32 s%d, s%d, 2' % (sT1, sQD)); p('s_add_u32 s%d, s%d, s%d' % (sT1, sT1, sMEM))
    p('s_lshl_b32 s%d, s%d, 4' % (sT2, sI)); p('s_add_u32 s%d, s%d, s%d' % (sT1, sT1, sT2))
    uniform_flag(p, FLG_H, sT1)
    p.stamp(8)
    while True:
        f = info['next_w2_item'](64)
        if f is None: break
        f()
    if not (W['pos'] == 28 and len(info['wo_loc']) == 8): print(W['loc'], W['slot_owner'], info['wo_loc'], W['dS']); raise SystemExit('W2 overflow')
    vPH, vPZ, vPD = vT + 16, vT + 17, vT + 18
    p('v_and_b32 v%d, 3, v%d' % (vPH, vL)); p('v_lshlrev_b32 v%d, 7, v%d' % (vPH, vPH))
    p('s_lshr_b32 s%d, s%d, 1' % (sT0, sRT)); p('s_lshl_b32 s%d, s%d, 4' % (sT0, sT0)); p('s_lshl_b32 s%d, s%d, 2' % (sT1, sW)); p('s_add_u32 s%d, s%d, s%d' % (sT0, sT0, sT1))
    p('s_lshl_b32 s%d, s%d, 7' % (sT0, sT0)); p('s_add_u32 s%d, s%d, 0x%x' % (sG2[0], sT0, FLG_H))
    p('v_and_b32 v%d, 31, v%d' % (vPZ, vL)); p('v_lshlrev_b32 v%d, 7, v%d' % (vPZ, vPZ))
    p('s_lshl_b32 s%d, s%d, 12' % (sG2[1], sW)); p('s_add_u32 s%d, s%d, 0x%x' % (sG2[1], sG2[1], FLG_KVZ))
    p('s_mul_i32 s%d, s%d, %d' % (sH0, sRT, 2 * 112 * 1024)); p('s_mul_i32 s%d, s%d, %d' % (sT0, sW, 28 * 1024)); p('s_add_u32 s%d, s%d, s%d' % (sH0, sH0, sT0))
    p('s_lshl_b32 s%d, s%d, 10' % (sT0, sX[2])); p('s_add_u32 s%d, s%d, s%d' % (sH0, sH0, sT0))
    p('s_add_u32 s%d, s%d, %d' % (sH1, sH0, 112 * 1024))
    p('s_mov_b32 s%d, s%d' % (sKH, sX[2]))
    p('s_lshl_b32 s%d, s%d, 16' % (sPQ0, sRT)); p('s_lshl_b32 s%d, s%d, 13' % (sT0, sW)); p('s_add_u32 s%d, s%d, s%d' % (sPQ0, sPQ0, sT0)); p('s_add_u32 s%d, s%d, 0x%x' % (sPQ0, sPQ0, PQ_OFF))
    p('s_add_u32 s%d, s%d, 32768' % (sPQ1, sPQ0))
    p('s_add_u32 s%d, s%d, 0x%x' % (sKZ, sT0, KVZ_OFF))
    vR0, vR1 = vT + 20, vT + 21
    p('s_sub_u32 s%d, s%d, s%d' % (sT0, sWB, sS2))
    p('v_add_u32 v%d, s%d, v%d' % (vR0, sT0, vX0)); p('v_add_u32 v%d, s%d, v%d' % (vR1, sT0, vX1))
    KR = vT + 8
    RED = (role == 'CD')
    if RED:
        p('s_lshl_b32 s%d, s%d, 1' % (sU, sQD)); p('s_add_u32 s%d, s%d, s%d' % (sU, sU, sMEM)); p('s_sub_u32 s%d, s%d, 2' % (sU, sU))
        p('v_and_b32 v%d, 15, v%d' % (vT + 6, vL)); p('v_lshlrev_b32 v%d, 7, v%d' % (vT + 6, vT + 6))
        p('s_lshl_b32 s%d, s%d, 11' % (sF, sU)); p('s_add_u32 s%d, s%d, 0x%x' % (sF, sF, FLG_KVP))
        emit_poll_loop(p, vT + 6, sF, vPD)
        p('v_lshrrev_b32 v%d, 3, v%d' % (vT + 6, vL)); p('v_lshlrev_b32 v%d, 12, v%d' % (vT + 6, vT + 6))
        p('v_bfe_u32 v%d, v%d, 2, 1' % (vT + 7, vL)); p('v_lshl_add_u32 v%d, v%d, 10, v%d' % (vT + 6, vT + 7, vT + 6))
        p('v_and_b32 v%d, 3, v%d' % (vT + 7, vL)); p('v_lshl_add_u32 v%d, v%d, 4, v%d' % (vT + 6, vT + 7, vT + 6))
        p('s_lshl_b32 s%d, s%d, 2' % (sF, sU)); p('s_add_u32 s%d, s%d, s%d' % (sF, sF, sW))
        p('s_lshl_b32 s%d, s%d, 15' % (sT0, sF)); p('s_lshl_b32 s%d, s%d, 6' % (sT1, sI)); p('s_add_u32 s%d, s%d, s%d' % (sT0, sT0, sT1)); p('s_add_u32 s%d, s%d, 0x%x' % (sT0, sT0, KVP_OFF))
        krt = [p.vm('buffer_load_dwordx4 v[%d:%d], v%d, %s, s%d offen %s%s' % (KR + 4 * k, KR + 4 * k + 3, vT + 6, srd(S_WS), sT0, 'offset:2048 ' if k else '', LD)) for k in range(2)]
        p.wait(krt)
        for r in range(4): p('v_add_f32 v%d, v%d, v%d' % (KR + r, KR + r, KR + 4 + r))
        for r in range(4): p('v_mov_b32 v%d, v%d' % (KR + 4 + r, KR + r))
        p('s_nop 1')
        for r in range(4): p('v_permlane32_swap_b32 v%d, v%d' % (KR + r, KR + 4 + r))
        p('s_nop 1')
        for r in range(4): p('v_add_f32 v%d, v%d, v%d' % (KR + r, KR + r, KR + 4 + r))
        for r in range(4): p('v_mov_b32 v%d, v%d' % (KR + 4 + r, KR + r))
        p('s_nop 1')
        for r in range(4): p('v_permlane16_swap_b32 v%d, v%d' % (KR + r, KR + 4 + r))
        p('s_nop 1')
        for r in range(4): p('v_add_f32 v%d, v%d, v%d' % (KR + r, KR + r, KR + 4 + r))
        p('s_nop 1')
        for r in range(4): p('v_add_f32_dpp v%d, v%d, v%d row_ror:8 row_mask:0xf bank_mask:0xf' % (KR + 4 + r, KR + r, KR + r))
        p('v_cvt_pk_bf16_f32 v%d, v%d, v%d' % (KR, KR + 4, KR + 5)); p('v_cvt_pk_bf16_f32 v%d, v%d, v%d' % (KR + 1, KR + 6, KR + 7))
        p('v_and_b32 v%d, 3, v%d' % (vT + 7, vL)); p('v_lshlrev_b32 v%d, 4, v%d' % (vT + 6, vT + 7))
        p('v_bfe_u32 v%d, v%d, 2, 1' % (vT + 7, vL)); p('v_lshl_add_u32 v%d, v%d, 3, v%d' % (vT + 6, vT + 7, vT + 6))
        p('s_lshl_b32 s%d, s%d, 10' % (sT0, sF)); p('s_lshl_b32 s%d, s%d, 6' % (sT1, sI)); p('s_add_u32 s%d, s%d, s%d' % (sT0, sT0, sT1)); p('s_add_u32 s%d, s%d, 0x%x' % (sT0, sT0, KVZ_OFF))
        p('s_mov_b64 s[88:89], exec'); p('s_mov_b64 exec, 0xff')
        kzs = p.vm('buffer_store_dwordx2 v[%d:%d], v%d, %s, s%d offen %s' % (KR, KR + 1, vT + 6, srd(S_WS), sT0, ST))
        p('s_mov_b64 exec, s[88:89]')
        p.wait(kzs); p('s_barrier')
        p('s_lshl_b32 s%d, s%d, 4' % (sT1, sU)); p('s_add_u32 s%d, s%d, s%d' % (sT1, sT1, sI))
        uniform_flag(p, FLG_KVZ, sT1)
    def to_agpr(pos):
        kind, where = W['loc'][pos]
        ob = free_oct.pop(0)
        if kind == 'stage':
            if where < 4: regs, off = (vR0, vR1), 24576 + 2048 * where
            else: regs, off = (vX0, vX1), 2048 * (where - 4)
        else: regs, off = (vR0, vR1), where
        W['loc'][pos] = ('agpr', ob)
        for f in info['tr4_items'](pos, regs, off, ob, W['ttok'].setdefault(pos, [])): f()
    emit_poll_loop(p, vPH, sG2[0], vPD)
    p.stamp(9)
    NR = 16; HB = XF; ht = {}
    def ld_h(j):
        ht[j] = []
        for mt, so in enumerate((sH0, sH1)):
            r = HB + 8 * (j % NR) + 4 * mt
            ht[j].append(p.vm('buffer_load_dwordx4 v[%d:%d], v%d, %s, s%d offen %s' % (r, r + 3, vST, srd(S_WS), so, LD)))
        if j < 27:
            p('s_add_u32 s%d, s%d, 1' % (sKH, sKH)); p('s_movk_i32 s%d, 1024' % sIncH); p('s_cmp_eq_u32 s%d, 28' % sKH)
            p('s_cselect_b32 s%d, 0x%x, s%d' % (sIncH, (-27 * 1024) & 0xffffffff, sIncH)); p('s_cselect_b32 s%d, 0, s%d' % (sKH, sKH))
            p('s_add_u32 s%d, s%d, s%d' % (sH0, sH0, sIncH)); p('s_add_u32 s%d, s%d, s%d' % (sH1, sH1, sIncH))
    for j in range(NR): ld_h(j)
    for pos in range(28):
        if W['loc'][pos][0] != 'agpr': to_agpr(pos)
    ACC = ACC2
    PQR, ND, KZR = XF, XF + 64, XF + 96
    pqt, kzt = {}, {}
    XR = vT + 24
    ga = vT + 22
    zt = None
    for j in range(28):
        p.wait(ht[j] + W['ttok'][j])
        ob = W['loc'][j][1]
        for nt in range(2):
            for mt in range(2):
                d = ACC + 16 * (2 * nt + mt); r = HB + 8 * (j % NR) + 4 * mt
                p('v_mfma_f32_32x32x16_bf16 v[%d:%d], a[%d:%d], v[%d:%d], %s' % (d, d + 15, ob + 4 * nt, ob + 4 * nt + 3, r, r + 3, '0' if j == 0 else 'v[%d:%d]' % (d, d + 15)))
        if j + NR < 28: ld_h(j + NR)
        if 16 <= j < 24:
            hh = j - 16
            for mt, so in enumerate((sPQ0, sPQ1)):
                r = PQR + 8 * hh + 4 * mt
                pqt[(hh, mt)] = p.vm('buffer_load_dwordx4 v[%d:%d], v%d, %s, s%d offen %s' % (r, r + 3, vST, srd(S_WS), so, LD)); p('s_add_u32 s%d, s%d, 1024' % (so, so))
        if j == 17: zt = poll_issue(p, vPZ, sG2[1], vPD)
        if j == 20:
            p('v_lshrrev_b32 v%d, 3, v0' % ga); p('v_lshlrev_b32 v%d, 10, v%d' % (ga, ga))
            p('v_and_b32 v%d, 7, v0' % (vT + 23)); p('v_lshl_add_u32 v%d, v%d, 4, v%d' % (ga, vT + 23, ga))
            p('s_lshl_b32 s%d, s%d, 16' % (sHST1, sRT)); p('s_lshl_b32 s%d, s%d, 7' % (sT1, sCT)); p('s_add_u32 s%d, s%d, s%d' % (sHST1, sHST1, sT1))
            p('s_add_u32 s%d, s%d, 32768' % (sHST2, sHST1))
            xt = [p.vm('buffer_load_dwordx4 v[%d:%d], v%d, %s, s%d offen' % (XR + 4 * k, XR + 4 * k + 3, ga, srd(S_X), (sHST1, sHST2)[k])) for k in range(2)]
        if j == 24:
            poll_check(p, zt, vPZ, sG2[1], vPD)
            for hh in range(8):
                kzt[hh] = p.vm('buffer_load_dwordx4 v[%d:%d], v%d, %s, s%d offen %s' % (KZR + 4 * hh, KZR + 4 * hh + 3, vST, srd(S_WS), sKZ, LD)); p('s_add_u32 s%d, s%d, 1024' % (sKZ, sKZ))
    p.stamp(10)
    wfr = {}
    FBS = [free for free in (0, 8, 16)]
    def wo_tr(hh):
        p.wait(info['wo_tok'][hh]); t = []
        fb = FBS[hh % 3]
        kind, off = info['wo_loc'][hh]
        for nt, reg in enumerate((vR0, vR1) if kind == 'res' else (vX0, vX1)):
            for rd in range(2):
                b = fb + 4 * nt + 2 * rd
                t.append(p.lg('ds_read_b64_tr_b16 a[%d:%d], v%d offset:%d' % (b, b + 1, reg, off + 1024 * rd)))
        wfr[hh] = t
    def nd_mfma(u):
        hh, mt = u >> 1, u & 1
        d = ND + 16 * (u & 1)
        p.wait([kzt[hh], pqt[(hh, mt)]])
        p('v_mfma_f32_32x32x16_bf16 v[%d:%d], v[%d:%d], v[%d:%d], 0' % (d, d + 15, KZR + 4 * hh, KZR + 4 * hh + 3, PQR + 8 * hh + 4 * mt, PQR + 8 * hh + 4 * mt + 3))
    def o_valu(u):
        hh = u >> 1
        d = ND + 16 * (u & 1)
        num, den = (d, d + 8) if hh % 2 == 0 else (d + 8, d)
        t = vT + 8 * (u & 1)
        p('v_add_f32 v%d, s%d, v%d' % (t + 4, sEPS, den)); p('v_rcp_f32 v%d, v%d' % (t + 4, t + 4)); p('s_nop 0')
        for r in range(8): p('v_mul_f32 v%d, v%d, v%d' % (num + r, num + r, t + 4))
        for q in range(4): p('v_cvt_pk_bf16_f32 v%d, v%d, v%d' % (t + q, num + 2 * q, num + 2 * q + 1))
    def wo_mfma(u):
        hh, mt = u >> 1, u & 1
        p.wait(wfr[hh])
        fb = FBS[hh % 3]; t = vT + 8 * (u & 1)
        for nt in range(2):
            d = ACC + 16 * (2 * nt + mt)
            p('v_mfma_f32_32x32x16_bf16 v[%d:%d], a[%d:%d], v[%d:%d], v[%d:%d]' % (d, d + 15, fb + 4 * nt, fb + 4 * nt + 3, t, t + 3, d, d + 15))
    p('s_nop 3')
    wo_tr(0); wo_tr(1)
    nd_mfma(0); nd_mfma(1)
    for u in range(16):
        o_valu(u)
        if u + 2 < 16: nd_mfma(u + 2)
        if u % 2 == 0 and (u >> 1) + 2 < 8: wo_tr((u >> 1) + 2)
        wo_mfma(u)
    p.stamp(11)
    p.wait_all(vm=False); p('s_barrier')
    wa = vT
    p('v_and_b32 v%d, 31, v%d' % (wa, vL)); p('v_mul_u32_u24 v%d, 272, v%d' % (wa, wa))
    p('v_lshrrev_b32 v%d, 5, v%d' % (wa + 1, vL)); p('v_lshl_add_u32 v%d, v%d, 4, v%d' % (wa, wa + 1, wa))
    p('s_mul_i32 s%d, s%d, 17408' % (sT0, sW)); p('v_add_u32 v%d, s%d, v%d' % (wa, sT0, wa))
    ra = vT + 2
    p('v_lshrrev_b32 v%d, 3, v0' % ra); p('v_mul_u32_u24 v%d, 272, v%d' % (ra, ra))
    p('v_and_b32 v%d, 7, v0' % (vT + 3)); p('v_lshl_add_u32 v%d, v%d, 5, v%d' % (ra, vT + 3, ra))
    p('s_nop 3')
    for mt in range(2):
        for nt in range(2):
            for q in range(4):
                r = ACC + 16 * (2 * nt + mt) + 4 * q
                p.lg('ds_write_b128 v%d, v[%d:%d] offset:%d' % (wa, r, r + 3, mt * 8704 + nt * 128 + q * 32))
    p.wait_all(vm=False); p('s_barrier')
    R = XF; rt = {}
    for j in range(2):
        for wv in range(4):
            for hh in range(2):
                r = R + 32 * j + 8 * wv + 4 * hh
                rt[(j, wv, hh)] = p.lg('ds_read_b128 v[%d:%d], v%d offset:%d' % (r, r + 3, ra, wv * 17408 + j * 8704 + hh * 16))
    for j in range(2):
        p.wait([rt[(j, wv, hh)] for wv in range(4) for hh in range(2)])
        b = R + 32 * j
        for r in range(8): p('v_add_f32 v%d, v%d, v%d' % (b + r, b + r, b + 8 + r))
        for r in range(8): p('v_add_f32 v%d, v%d, v%d' % (b + 16 + r, b + 16 + r, b + 24 + r))
        for r in range(8): p('v_add_f32 v%d, v%d, v%d' % (b + r, b + r, b + 16 + r))
        p.wait(xt[j])
        t = vT + 16
        for q in range(4):
            x = XR + 4 * j + q
            p('v_lshlrev_b32 v%d, 16, v%d' % (t, x)); p('v_and_b32 v%d, 0xffff0000, v%d' % (t + 1, x))
            p('v_add_f32 v%d, v%d, v%d' % (b + 2 * q, b + 2 * q, t)); p('v_add_f32 v%d, v%d, v%d' % (b + 2 * q + 1, b + 2 * q + 1, t + 1))
            p('v_cvt_pk_bf16_f32 v%d, v%d, v%d' % (x, b + 2 * q, b + 2 * q + 1))
        p.vm('buffer_store_dwordx4 v[%d:%d], v%d, %s, s%d offen' % (XR + 4 * j, XR + 4 * j + 3, ga, srd(S_OUT), (sHST1, sHST2)[j]))
    p.stamp(12)
    if p.stamps_on:
        p('s_waitcnt vmcnt(0)'); p.stamp_rt(13)
        p.stamp_dump(srd(S_WS), 0x8000000, 14)

def build(stamps=None):
    p = Prog(); p.stamps_on = stamps is not None
    if stamps: p.stamp_map = {i: k for k, i in enumerate(stamps)}
    p('s_cmp_ge_u32 s2, 256'); p('s_cbranch_scc1 L_end')
    p.later = prologue(p)
    pro = list(p.ins)
    p('s_cmp_ge_u32 s%d, 2' % sMEM); p('s_cbranch_scc1 L_cd')
    st = (p.vm_issued, p.vm_done, p.lg_issued, p.lg_done)
    paths = {}
    for role in ('AB', 'CD'):
        if role == 'CD':
            p.vm_issued, p.vm_done, p.lg_issued, p.lg_done = st
        n0 = len(p.ins)
        info = build_role(p, role)
        phase2(p, role, info)
        paths[role] = p.ins[n0:]
        if role == 'AB': p('s_branch L_end')
    p.label('L_end')
    probs = []
    head = pro + ['s_cmp_ge_u32 s%d, 2' % sMEM, 's_cbranch_scc1 L_cd']
    out = list(head)
    for role in ('AB', 'CD'):
        fixed, n = fix_hazards(head + paths[role])
        assert fixed[:len(head)] == head
        body = fixed[len(head):]
        print(role, 'auto-inserted wait states:', n)
        probs += check_hazards(head + body, role) + check_waits(head + body, 'w' + role)
        if role == 'CD': out.append('L_cd:')
        out += body
        if role == 'AB': out.append('s_branch L_end')
        paths[role] = body
    out.append('L_end:')
    p.ins = out
    return p, probs, paths

if __name__ == '__main__':
    sys.path.insert(0, 'dev')
    from asmlib import make_file
    stamps = [int(x) for x in sys.argv[2].split(',')] if len(sys.argv) > 2 else None
    p, probs, paths = build(stamps)
    for x in probs[:30]: print(x)
    for l in p.ins:
        if l.startswith('; W2 state'): print(l[:300])
    print('problems:', len(probs), 'regs', maxregs(p.ins), 'n', len(p.ins))
    ks = [dict(name=NAME, body=p.text(), grid=(256, 1, 1), block=(256, 1, 1), lds=163840, vgpr=512, accum=256, sgpr=102)]
    open(sys.argv[1], 'w').write(make_file(ks, single=True))
```

```python
import sys
from fw import *

NAME = 'parallel_sum__linear_attn_block__glu_gated_reglu__prompt_kernel'
H_OFF, PQ_OFF, KVP_OFF, KVZ_OFF, XN_OFF = 0x0, 0x800000, 0xA00000, 0xB00000, 0xD00000
FLG_H, FLG_KVP, FLG_KVZ, NONCE_OFF, FLG_XN = 0xC00000, 0xC10000, 0xC20000, 0xC30000, 0xC40000
WS_BYTES = 268435456
SPARE = 131072
ST = 'sc1'; LD = 'sc1'
NRING = 5
LAT = 2000

S_X, S_WQ, S_WG, S_WU, S_WS, S_WD, S_WO, S_OUT = 4, 8, 12, 16, 20, 24, 28, 32
sW, sI, sMEM, sQD, sWB = 36, 37, 38, 39, 40
sLOG2E, sEPS, sONES = 41, 42, 43
sL = [44, 45, 46, 47, 48, 49]
sG2 = [50, 51]
sHST1, sHST1b, sHST2, sPQ, sKVP = 52, 53, 54, 55, 56
sT0, sT1, sT2 = 57, 58, 59
sNONCE, sSPIN = 60, 3
sRT, sCT = 61, 62
sWD0, sWD1, sWO0, sWO1 = 63, 64, 65, 66
sU, sS2 = 67, 68
sWRAP, sStepQ, sWrapQ = 69, 88, 89
sStepG, sWrapG, sInc = 90, 91, 92
sXN = 93
sEX = 94
sC = 96
sXO = [97, 98, 99, 100]
def srd(b): return 's[%d:%d]' % (b, b + 3)

vL, vST, vD2 = 1, 2, 3
vWA, vWB, vWC, vWD = 4, 5, 6, 7
vS0, vS1 = 8, 9
vR0, vR1 = 10, 11
vTR = 12
vT = 24
ACC2 = 64
ACC1 = 128
VOCT = [224, 232, 240, 248]
XF = 0
WF = 128
AOCT = [176 + 8 * k for k in range(10)]
def xf(s): return 'a[%d:%d]' % (XF + 4 * s, XF + 4 * s + 3)
def T(p, s): return lambda: p(s)
def rng(f, b, n): return '%s[%d:%d]' % (f, b, b + n - 1)
KVS = [4096, 10240, 16384, 22528]

class Mark:
    def __init__(self, fn): self.fn = fn
    def __call__(self): self.fn()

def slot_base_const(S):
    return 32768 * (S & 3) + 6144 * ((S >> 2) % NRING)

def tiles_of(role, grp):
    if grp == 2: return [('m%d' % t, 0, 512, False) for t in range(4)]
    if role == 'AB':
        return [('q0', 0, 512, True), ('q1', 0, 512, True), ('q0', 2048, 512, True), ('q1', 2048, 512, True), ('q0', 4096, 512, False), ('q1', 4096, 512, False)]
    return [('m%d' % t, 0, 512, False) for t in range(4)] + [('h0', 4096, 256, False), ('h1', 4096, 256, False)]
def wf(S, j, G): return WF + (S & 1) * 4 * G + 4 * j

def tr_items(p, role, S, variants, ftok):
    tl = tiles_of(role, 1 if S < 32 else 2); G = len(tl)
    items = []; blk = slot_base_const(S)
    for j, (var, lo, rds, sw) in enumerate(tl):
        ftok[(S, j)] = []
        for rd in range(2):
            const = blk + lo + rd * rds
            win, off = const >> 16, const & 0xffff
            b = wf(S, j, G) + 2 * rd
            def f(b=b, reg=variants[var][win], off=off, key=(S, j)):
                ftok[key].append(p.lg('ds_read_b64_tr_b16 a[%d:%d], v%d offset:%d' % (b, b + 1, reg, off)))
            items.append(f)
    return items

def prologue(p):
    if p.stamps_on: p('s_memrealtime s[98:99]'); p('s_memtime s[100:101]')
    p('s_load_dwordx2 s[70:71], s[0:1], 0')
    p('s_load_dwordx2 s[86:87], s[0:1], 72')
    p('s_load_dwordx4 s[72:75], s[0:1], 8')
    p('s_load_dwordx4 s[76:79], s[0:1], 32')
    p('s_load_dwordx4 s[80:83], s[0:1], 48')
    p('v_and_b32 v%d, 63, v0' % vL)
    p('v_lshrrev_b32 v%d, 6, v0' % vT)
    p('s_and_b32 s%d, s2, 7' % sT0); p('s_lshr_b32 s%d, s2, 3' % sT1)
    p('v_readfirstlane_b32 s%d, v%d' % (sW, vT))
    p('s_lshr_b32 s%d, s%d, 1' % (sQD, sT0))
    p('s_lshl_b32 s%d, s%d, 2' % (sRT, sT0)); p('s_and_b32 s%d, s%d, 3' % (sT2, sT1)); p('s_add_u32 s%d, s%d, s%d' % (sRT, sRT, sT2))
    p('s_lshr_b32 s%d, s%d, 2' % (sCT, sT1))
    p('s_and_b32 s%d, s%d, 1' % (sT0, sT0)); p('s_lshl_b32 s%d, s%d, 3' % (sT0, sT0))
    p('s_and_b32 s%d, s%d, 7' % (sI, sT1)); p('s_add_u32 s%d, s%d, s%d' % (sI, sI, sT0))
    p('s_lshr_b32 s%d, s%d, 3' % (sMEM, sT1))
    p('s_lshl_b32 s%d, s%d, 2' % (sC, sQD)); p('s_add_u32 s%d, s%d, s%d' % (sC, sC, sMEM))
    p('s_lshl_b32 s%d, s%d, 7' % (sT0, sI)); p('s_lshl_b32 s%d, s%d, 3' % (sT1, sC)); p('s_add_u32 s%d, s%d, s%d' % (sT0, sT0, sT1))
    p('s_lshl_b32 s%d, s%d, 1' % (sT1, sW)); p('s_add_u32 s%d, s%d, s%d' % (sT0, sT0, sT1)); p('s_lshl_b32 s%d, s%d, 10' % (sT0, sT0))
    p('v_lshrrev_b32 v%d, 5, v%d' % (vT, vL)); p('v_lshlrev_b32 v%d, 10, v%d' % (vT, vT))
    p('v_and_b32 v%d, 31, v%d' % (vT + 1, vL)); p('v_lshl_add_u32 v%d, v%d, 5, v%d' % (vT, vT + 1, vT))
    p('v_mov_b32 v%d, 0' % (vT + 2)); p('s_mov_b32 s%d, 0x%x' % (sT1, NONCE_OFF))
    p('s_waitcnt lgkmcnt(0)')
    def mk(base, src, n):
        p('s_mov_b32 s%d, s%d' % (base, src)); p('s_mov_b32 s%d, s%d' % (base + 1, src + 1))
        p('s_mov_b32 s%d, 0x%x' % (base + 2, n)); p('s_mov_b32 s%d, 0x00020000' % (base + 3))
    mk(S_X, 70, 2048 * 1024); mk(S_WS, 86, WS_BYTES)
    XR = vT + 8
    p.xl = [p.vm('buffer_load_dwordx4 v[%d:%d], v%d, %s, s%d offen %s' % (XR + 4 * k, XR + 4 * k + 3, vT, srd(S_X), sT0, 'offset:16' if k else '')) for k in range(2)]
    p.nl = p.vm('buffer_load_dword v%d, v%d, %s, s%d offen %s' % (vT + 3, vT + 2, srd(S_WS), sT1, LD))
    mk(S_WQ, 72, 512 * 3072); mk(S_WO, 74, 512 * 1024); mk(S_WG, 76, 512 * 3584); mk(S_WU, 78, 512 * 3584); mk(S_WD, 80, 1792 * 1024); mk(S_OUT, 82, 2048 * 1024)
    if p.stamps_on: p('s_mov_b32 s70, s98'); p('s_mov_b32 s72, s100')
    p('s_lshl_b32 s%d, s%d, 15' % (sWB, sW))
    p('s_lshl_b32 s%d, s%d, 13' % (sS2, sW)); p('s_add_u32 s%d, s%d, %d' % (sS2, sS2, SPARE))
    p('s_lshl_b32 s%d, s%d, 1' % (sT0, sMEM)); p('s_add_u32 s%d, s%d, s%d' % (sT0, sT0, sI)); p('s_and_b32 s%d, s%d, 7' % (sXO[0], sT0))
    p('s_sub_u32 s%d, 7, s%d' % (sWRAP, sXO[0]))
    p('s_mov_b32 s%d, 0x3fb8aa3b' % sLOG2E); p('s_mov_b32 s%d, 0x358637bd' % sEPS); p('s_mov_b32 s%d, 0x3f803f80' % sONES)
    p('s_mov_b32 s%d, %d' % (sStepG, 64 * 3584)); p('s_mov_b32 s%d, 0x%x' % (sWrapG, (-448 * 3584) & 0xffffffff))
    p('s_mov_b32 s%d, %d' % (sStepQ, 64 * 3072)); p('s_mov_b32 s%d, 0x%x' % (sWrapQ, (-448 * 3072) & 0xffffffff))
    p('v_lshlrev_b32 v%d, 4, v%d' % (vST, vL))

def setup(p, role):
    q = p
    a, b, c = vT + 16, vT + 17, vT + 18
    q('v_lshrrev_b32 v%d, 3, v%d' % (a, vL))
    q('v_lshrrev_b32 v%d, 2, v%d' % (c, vL)); q('v_and_b32 v%d, 4, v%d' % (c, c))
    q('v_and_b32 v%d, 7, v%d' % (b, vL)); q('v_xor_b32 v%d, v%d, v%d' % (b, b, c)); q('v_lshlrev_b32 v%d, 4, v%d' % (b, b))
    q('v_lshl_add_u32 v%d, v%d, 10, v%d' % (vD2, a, b))
    q('s_movk_i32 s%d, 3072' % sT1); q('s_movk_i32 s%d, 3584' % sT2)
    rot = sXO[0]
    q('s_mul_i32 s%d, s%d, %d' % (sXO[1], rot, 64 * 3072)); q('s_mul_i32 s%d, s%d, %d' % (sXO[2], rot, 64 * 3584))
    if role == 'AB':
        q('v_mad_u32_u24 v%d, v%d, s%d, v%d' % (vWA, a, sT1, b)); q('v_mad_u32_u24 v%d, v%d, s%d, v%d' % (vWB, a, sT2, b))
        q('v_add_u32 v%d, s%d, v%d' % (vWA, sXO[1], vWA)); q('v_add_u32 v%d, s%d, v%d' % (vWB, sXO[2], vWB))
        q('v_xor_b32 v%d, 32, v%d' % (vWC, vWB))
    else:
        q('v_mad_u32_u24 v%d, v%d, s%d, v%d' % (vWA, a, sT2, b)); q('v_add_u32 v%d, s%d, v%d' % (vWA, sXO[2], vWA))
        q('v_xor_b32 v%d, 32, v%d' % (vWB, vWA))
        q('v_lshrrev_b32 v%d, 2, v%d' % (a, vL)); q('v_and_b32 v%d, 3, v%d' % (b, vL)); q('v_lshlrev_b32 v%d, 4, v%d' % (b, b))
        q('v_mad_u32_u24 v%d, v%d, s%d, v%d' % (vWC, a, sT2, b)); q('v_add_u32 v%d, s%d, v%d' % (vWC, sXO[2], vWC))
        q('v_xor_b32 v%d, 32, v%d' % (vWD, vWC))
    q('s_mul_i32 s%d, s%d, %d' % (sT1, sW, 16 * 3072)); q('s_mul_i32 s%d, s%d, %d' % (sT2, sW, 16 * 3584))
    q('s_lshl_b32 s%d, s%d, 2' % (sXO[3], sI)); q('s_add_u32 s%d, s%d, s%d' % (sXO[3], sXO[3], sW))
    q('s_mul_i32 s%d, s%d, %d' % (sHST1, sXO[3], 112 * 1024))
    q('s_lshl_b32 s%d, s%d, 15' % (sPQ, sXO[3])); q('s_add_u32 s%d, s%d, 0x%x' % (sXN, sPQ, XN_OFF)); q('s_add_u32 s%d, s%d, 0x%x' % (sPQ, sPQ, PQ_OFF))
    if role == 'AB':
        q('s_lshl_b32 s%d, s%d, 1' % (sU, sQD)); q('s_add_u32 s%d, s%d, s%d' % (sU, sU, sMEM))
        q('s_lshl_b32 s%d, s%d, 12' % (sKVP, sU)); q('s_add_u32 s%d, s%d, s%d' % (sPQ, sPQ, sKVP))
        q('s_lshl_b32 s%d, s%d, 2' % (sKVP, sU)); q('s_add_u32 s%d, s%d, s%d' % (sKVP, sKVP, sW)); q('s_lshl_b32 s%d, s%d, 15' % (sKVP, sKVP))
        q('s_lshl_b32 s%d, s%d, 11' % (sHST2, sI)); q('s_add_u32 s%d, s%d, s%d' % (sKVP, sKVP, sHST2)); q('s_add_u32 s%d, s%d, 0x%x' % (sKVP, sKVP, KVP_OFF))
        q('s_lshl_b32 s%d, s%d, 7' % (sT0, sU)); q('s_add_u32 s%d, s%d, s%d' % (sT0, sT0, sT1))
        q('s_add_u32 s%d, s%d, %d' % (sL[0], sT0, 1024)); q('s_add_u32 s%d, s%d, %d' % (sL[1], sT0, 1024 + 8 * 3072 - 1024))
        q('s_add_u32 s%d, s%d, %d' % (sL[2], sT0, 2048 - 2048)); q('s_add_u32 s%d, s%d, %d' % (sL[3], sT0, 2048 + 8 * 3072 - 3072))
        q('s_add_u32 s%d, s%d, %d' % (sL[4], sT0, 0)); q('s_add_u32 s%d, s%d, %d' % (sL[5], sT0, 8 * 3072 - 1024))
        q('s_mul_i32 s%d, s%d, 7' % (sT0, sQD)); q('s_add_u32 s%d, s%d, s%d' % (sT0, sT0, sMEM))
        q('s_lshl_b32 s%d, s%d, 12' % (sHST2, sT0)); q('s_add_u32 s%d, s%d, s%d' % (sHST2, sHST2, sHST1))
        q('s_lshl_b32 s%d, s%d, 7' % (sT0, sT0)); q('s_add_u32 s%d, s%d, s%d' % (sG2[0], sT0, sT2)); q('s_add_u32 s%d, s%d, %d' % (sG2[1], sG2[0], 8 * 3584 - 1024))
    else:
        q('s_mul_i32 s%d, s%d, 7' % (sT0, sQD)); q('s_sub_u32 s%d, s%d, 2' % (sT1, sMEM))
        q('s_mul_i32 s%d, s%d, 3' % (sL[5], sT1)); q('s_add_u32 s%d, s%d, s%d' % (sL[5], sL[5], sT0)); q('s_add_u32 s%d, s%d, 2' % (sL[5], sL[5]))
        q('s_add_u32 s%d, s%d, 4' % (sL[4], sT0))
        q('s_lshl_b32 s%d, s%d, 12' % (sHST1b, sL[4])); q('s_lshl_b32 s%d, s%d, 11' % (sL[3], sT1)); q('s_add_u32 s%d, s%d, s%d' % (sHST1b, sHST1b, sL[3]))
        q('s_add_u32 s%d, s%d, s%d' % (sHST1b, sHST1b, sHST1))
        q('s_lshl_b32 s%d, s%d, 12' % (sL[3], sL[5])); q('s_add_u32 s%d, s%d, 4096' % (sHST2, sL[3])); q('s_add_u32 s%d, s%d, s%d' % (sHST2, sHST2, sHST1))
        q('s_add_u32 s%d, s%d, s%d' % (sHST1, sHST1, sL[3]))
        q('s_lshl_b32 s%d, s%d, 7' % (sL[2], sL[4])); q('s_lshl_b32 s%d, s%d, 6' % (sT1, sT1)); q('s_add_u32 s%d, s%d, s%d' % (sL[2], sL[2], sT1))
        q('s_add_u32 s%d, s%d, s%d' % (sL[2], sL[2], sT2))
        q('s_lshl_b32 s%d, s%d, 7' % (sL[0], sL[5])); q('s_add_u32 s%d, s%d, s%d' % (sL[0], sL[0], sT2)); q('s_add_u32 s%d, s%d, %d' % (sL[1], sL[0], 8 * 3584 - 1024))
        q('s_add_u32 s%d, s%d, 128' % (sG2[0], sL[0])); q('s_add_u32 s%d, s%d, 128' % (sG2[1], sL[1]))
    q('s_mul_i32 s%d, s%d, %d' % (sWD0, sW, 448 * 1024)); q('s_lshl_b32 s%d, s%d, 7' % (sT0, sCT)); q('s_add_u32 s%d, s%d, s%d' % (sWD0, sWD0, sT0))
    q('s_add_u32 s%d, s%d, %d' % (sWD1, sWD0, 8192 - 1024))
    q('s_lshl_b32 s%d, s%d, 17' % (sWO0, sW)); q('s_add_u32 s%d, s%d, s%d' % (sWO0, sWO0, sT0)); q('s_add_u32 s%d, s%d, %d' % (sWO1, sWO0, 8192 - 1024))

def setup_tr(p, role):
    q = p
    t0, t1, t2, t3, t4, u0, u1, t5 = [vT + 16 + i for i in range(8)]
    q('v_lshrrev_b32 v%d, 5, v%d' % (t5, vL)); q('v_lshlrev_b32 v%d, 3, v%d' % (t0, t5))
    q('v_bfe_u32 v%d, v%d, 2, 2' % (t1, vL)); q('v_add_u32 v%d, v%d, v%d' % (t0, t0, t1))
    q('v_lshl_add_u32 v%d, v%d, 2, v%d' % (t5, t5, t1))
    q('v_bfe_u32 v%d, v%d, 4, 1' % (t1, vL)); q('v_bfe_u32 v%d, v%d, 1, 1' % (t2, vL)); q('v_bfe_u32 v%d, v%d, 3, 1' % (t3, vL))
    q('v_and_b32 v%d, 1, v%d' % (t4, vL)); q('v_lshlrev_b32 v%d, 3, v%d' % (t4, t4))
    variants = {}
    names = (['q0', 'q1', 'm0', 'm1', 'm2', 'm3'] if role == 'AB' else ['m0', 'm1', 'm2', 'm3', 'h0', 'h1'])
    def qvar(dst, th, rowreg):
        q('v_lshl_add_u32 v%d, v%d, 1, v%d' % (u0, t1, t2))
        q('v_lshlrev_b32 v%d, 2, v%d' % (u1, t3)); q('v_xor_b32 v%d, %d, v%d' % (u1, 4 * th, u1)); q('v_add_u32 v%d, v%d, v%d' % (u0, u0, u1))
        q('v_lshl_add_u32 v%d, v%d, 4, v%d' % (u0, u0, t4)); q('v_lshl_add_u32 v%d, v%d, 7, v%d' % (dst, rowreg, u0))
    for vi, nm in enumerate(names):
        r0 = vTR + 2 * vi
        if nm[0] == 'q': qvar(r0, int(nm[1]), t0)
        elif nm[0] == 'm':
            tt = int(nm[1])
            q('v_add_u32 v%d, %d, v%d' % (u0, 2 * tt, t2))
            q('v_lshlrev_b32 v%d, 2, v%d' % (u1, t3)); q('v_xor_b32 v%d, v%d, v%d' % (u0, u0, u1))
            q('v_lshlrev_b32 v%d, 1, v%d' % (u1, t1)); q('v_xor_b32 v%d, v%d, v%d' % (u0, u0, u1))
            q('v_lshl_add_u32 v%d, v%d, 4, v%d' % (u0, u0, t4)); q('v_lshl_add_u32 v%d, v%d, 7, v%d' % (u0, t0, u0)); q('v_lshl_add_u32 v%d, v%d, 11, v%d' % (r0, t1, u0))
        else:
            tt = int(nm[1])
            q('v_add_u32 v%d, %d, v%d' % (u0, 2 * tt, t2))
            q('v_lshlrev_b32 v%d, 1, v%d' % (u1, t1)); q('v_xor_b32 v%d, v%d, v%d' % (u0, u0, u1))
            q('v_lshl_add_u32 v%d, v%d, 4, v%d' % (u0, u0, t4)); q('v_lshl_add_u32 v%d, v%d, 6, v%d' % (u0, t0, u0)); q('v_lshl_add_u32 v%d, v%d, 10, v%d' % (r0, t1, u0))
        q('v_add_u32 v%d, 0x10000, v%d' % (r0 + 1, r0))
        variants[nm] = {0: r0, 1: r0 + 1}
    qvar(vS0, 0, t5); qvar(vS1, 1, t5)
    q('v_add_u32 v%d, s%d, v%d' % (vR0, sWB, vS0)); q('v_add_u32 v%d, s%d, v%d' % (vR1, sWB, vS1))
    q('v_add_u32 v%d, s%d, v%d' % (vS0, sS2, vS0)); q('v_add_u32 v%d, s%d, v%d' % (vS1, sS2, vS1))
    return variants

def dma_stage_items(p, role, Tg):
    toks = []; items = []
    base = 6144 * (Tg % NRING)
    def ld(v, s, so, off): toks.append(p.vm('buffer_load_dwordx4 v%d, %s, s%d offen %slds' % (v, srd(s), so, ('offset:%d ' % off) if off else '')))
    def inc(step, wrap):
        p('s_cmp_eq_u32 s%d, %d' % (sWRAP, Tg & 7)); p('s_cselect_b32 s%d, s%d, s%d' % (sInc, wrap, step))
    adv = lambda v: p('v_add_u32 v%d, s%d, v%d' % (v, sInc, v))
    m0 = lambda off: p('s_add_u32 m0, s%d, %d' % (sWB, base + off))
    if Tg < 8 and role == 'AB':
        def f0(): m0(0); inc(sStepQ, sWrapQ); ld(vWA, S_WQ, sL[0], 0); ld(vWA, S_WQ, sL[1], 1024)
        def f1(): pass
        def f01(): f0(); ld(vWA, S_WQ, sL[2], 2048); ld(vWA, S_WQ, sL[3], 3072)
        def f2():
            m0(4096); p('s_nop 0'); ld(vWA, S_WQ, sL[4], 0); ld(vWA, S_WQ, sL[5], 1024)
            if Tg < 7: adv(vWA)
        items = [f01, f2]
    elif Tg < 8:
        def f0(): m0(0); inc(sStepG, sWrapG); ld(vWA, S_WG, sL[0], 0); ld(vWA, S_WG, sL[1], 1024); adv(vWA)
        def f1(): m0(2048); p('s_nop 0'); ld(vWB, S_WU, sL[0], 0); ld(vWB, S_WU, sL[1], 1024); adv(vWB)
        def f2():
            m0(4096); p('s_nop 0'); ld(vWC, S_WG, sL[2], 0)
            if Tg < 7: adv(vWC)
            m0(5120); p('s_nop 0'); ld(vWD, S_WU, sL[2], 0)
            if Tg < 7: adv(vWD)
        items = [f0, f1, f2]
    else:
        g, u = (vWB, vWC) if role == 'AB' else (vWA, vWB)
        def f0():
            m0(0); inc(sStepG, sWrapG); ld(g, S_WG, sG2[0], 0); ld(g, S_WG, sG2[1], 1024)
            if Tg < 15: adv(g)
        def f1():
            m0(2048); p('s_nop 0'); ld(u, S_WU, sG2[0], 0); ld(u, S_WU, sG2[1], 1024)
            if Tg < 15: adv(u)
        items = [f0, f1]
    return items, toks

def store_item(p, reg, soff, off, keep=None):
    def f():
        t = p.vm('buffer_store_dwordx4 v[%d:%d], v%d, %s, s%d offen %s%s' % (reg, reg + 3, vST, srd(S_WS), soff, ('offset:%d ' % off) if off else '', ST))
        if keep is not None: keep.append(t)
    return f

def mlp_epi_items(p, acc, t, soff, off, keep=None):
    it = []
    for r in range(8): it.append(T(p, 'v_max_f32 v%d, 0, v%d' % (acc + r, acc + r)))
    for r in range(8): it.append(T(p, 'v_mul_f32 v%d, v%d, v%d' % (acc + r, acc + r, acc + 8 + r)))
    for q in range(4): it.append(T(p, 'v_cvt_pk_bf16_f32 v%d, v%d, v%d' % (t + q, acc + 2 * q, acc + 2 * q + 1)))
    it.append(store_item(p, t, soff, off, keep))
    return it

def phi_items(p, acc, t, dst):
    it = []
    for half in range(2):
        rr = list(range(4 * half, 4 * half + 4))
        for r in rr: it.append(T(p, 'v_mul_f32 v%d, s%d, v%d' % (t + (r & 3), sLOG2E, acc + r)))
        for r in rr: it.append(T(p, 'v_exp_f32 v%d, v%d clamp' % (t + (r & 3), t + (r & 3))))
        for r in rr: it.append(T(p, 'v_max_f32 v%d, s%d, v%d' % (acc + r, sEPS, acc + r)))
        for r in rr: it.append(T(p, 'v_add_f32 v%d, v%d, v%d' % (acc + r, acc + r, t + (r & 3))))
        for q in range(2): it.append(T(p, 'v_cvt_pk_bf16_f32 v%d, v%d, v%d' % (dst + 2 * half + q, acc + 4 * half + 2 * q, acc + 4 * half + 2 * q + 1)))
    return it

def emit_flag(p, base, idx_sgpr):
    p('s_lshl_b32 s%d, s%d, 7' % (sT0, idx_sgpr)); p('s_add_u32 s%d, s%d, 0x%x' % (sT0, sT0, base))
    p('v_mov_b32 v%d, s%d' % (vT + 4, sNONCE)); p('v_mov_b32 v%d, 0' % (vT + 5))
    p('s_mov_b64 s[%d:%d], exec' % (sEX, sEX + 1)); p('s_mov_b64 exec, 1')
    p('buffer_store_dword v%d, v%d, %s, s%d offen %s' % (vT + 4, vT + 5, srd(S_WS), sT0, ST))
    p('s_mov_b64 exec, s[%d:%d]' % (sEX, sEX + 1))

def uniform_flag(p, base, idx_sgpr):
    la = p.newlabel('L_fa')
    p('s_cmp_lg_u32 s%d, 0' % sW); p('s_cbranch_scc1 %s' % la)
    emit_flag(p, base, idx_sgpr)
    p.label(la)

def poll_issue(p, vaddr, soff, vdst):
    return p.vm('buffer_load_dword v%d, v%d, %s, s%d offen %s' % (vdst, vaddr, srd(S_WS), soff, LD))

def poll_check(p, tok, vaddr, soff, vdst):
    p.wait(tok)
    l0, l1 = p.newlabel('L_pc'), p.newlabel('L_pcok')
    p('v_cmp_eq_u32 vcc, s%d, v%d' % (sNONCE, vdst)); p('s_nop 1'); p('s_cmp_eq_u64 vcc, -1'); p('s_cbranch_scc1 %s' % l1)
    p('s_mov_b32 s%d, 0' % sSPIN)
    p.label(l0)
    p('buffer_load_dword v%d, v%d, %s, s%d offen %s' % (vdst, vaddr, srd(S_WS), soff, LD))
    p('s_waitcnt vmcnt(0)')
    p('v_cmp_eq_u32 vcc, s%d, v%d' % (sNONCE, vdst)); p('s_nop 1'); p('s_cmp_eq_u64 vcc, -1'); p('s_cbranch_scc1 %s' % l1)
    p('s_sleep 1')
    p('s_add_u32 s%d, s%d, 1' % (sSPIN, sSPIN)); p('s_cmp_lt_u32 s%d, 20000' % sSPIN); p('s_cbranch_scc1 %s' % l0)
    p.label(l1)

def epilogue1_items(p, role, free_oct, kvp_toks):
    if role == 'CD':
        pre = []
        for j in range(6):
            soff, off = (sHST1, 1024 * j) if j < 4 else (sHST1b, 1024 * (j - 4))
            pre += mlp_epi_items(p, ACC1 + 16 * j, vT + 8 + (j & 1) * 4, soff, off)
            pre.append(T(p, 's_nop 0'))
            pre.append(Mark(lambda j=j: free_oct.extend([('v', ACC1 + 16 * j), ('v', ACC1 + 16 * j + 8)])))
        return [pre]
    t = vT + 8; PK = vT + 12; VV = vT + 20; BS = vT + 28
    pre = []
    for pr in range(2):
        ka = ACC1 + 16 * pr; va = ACC1 + 32 + 16 * pr
        pre += phi_items(p, ka, t, PK) + phi_items(p, ka + 8, t, PK + 4)
        for q in range(8): pre.append(T(p, 'v_cvt_pk_bf16_f32 v%d, v%d, v%d' % (VV + q, va + 2 * q, va + 2 * q + 1)))
        for hb, (d, msk) in enumerate(((ka, 0x0000ffff), (va, 0xffff0000))):
            pre.append(T(p, 's_mov_b32 vcc_lo, 0x%x' % msk)); pre.append(T(p, 's_mov_b32 vcc_hi, 0x%x' % msk))
            for r in range(8): pre.append(T(p, 'v_cndmask_b32 v%d, v%d, v%d, vcc' % (BS + r, vT + 7, VV + r)))
            pre.append(T(p, 's_nop 1'))
            pre.append(T(p, 'v_mfma_f32_32x32x16_bf16 v[%d:%d], v[%d:%d], v[%d:%d], 0' % (d, d + 15, PK, PK + 3, BS, BS + 3)))
            pre.append(T(p, 'v_mfma_f32_32x32x16_bf16 v[%d:%d], v[%d:%d], v[%d:%d], v[%d:%d]' % (d, d + 15, PK + 4, PK + 7, BS + 4, BS + 7, d, d + 15)))
    def qhead(pr, hb):
        dst = PK + 4 * hb; a = ACC1 + 64 + 16 * pr + 8 * hb
        return phi_items(p, a, t, dst) + [store_item(p, dst, sPQ, 1024 * (2 * pr + hb)), Mark(lambda: free_oct.append(('v', a)))]
    pre += qhead(0, 0)
    KA = vT + 6
    pre.append(T(p, 'v_add_u32 v%d, s%d, v%d' % (KA, sWB, vST)))
    for hd in range(4):
        pr, hb = hd >> 1, hd & 1
        src = (ACC1 + 16 * pr) if hb == 0 else (ACC1 + 32 + 16 * pr + 8)
        for q in range(2):
            pre.append(lambda src=src, q=q, hd=hd: p.last_ds_writes.append(p.lg('ds_write_b128 v%d, v[%d:%d] offset:%d' % (KA, src + 4 * q, src + 4 * q + 3, KVS[hd] + q * 1024))))
    post = []
    RA = vT + 6; RB = vT + 5; rtok = []
    post.append(T(p, 's_mul_i32 s%d, s%d, 6144' % (sT0, sW))); post.append(T(p, 's_add_u32 s%d, s%d, 4096' % (sT0, sT0)))
    post.append(T(p, 'v_add_u32 v%d, s%d, v%d' % (RA, sT0, vST))); post.append(T(p, 'v_add_u32 v%d, 0x10000, v%d' % (RB, RA)))
    R = ACC1
    def rd(wv, q, dst): return lambda: rtok.append(p.lg('ds_read_b128 v[%d:%d], v%d offset:%d' % (dst, dst + 3, RA if wv < 2 else RB, (wv & 1) * 32768 + q * 1024)))
    for wv in range(4):
        for q in range(2): post.append(rd(wv, q, R + 8 * wv + 4 * q))
    post.append(lambda: p.wait(rtok))
    for wv in (1, 2, 3):
        for r in range(8): post.append(T(p, 'v_add_f32 v%d, v%d, v%d' % (R + r, R + r, R + 8 * wv + r)))
    for q in range(2): post.append(store_item(p, R + 4 * q, sKVP, 1024 * q, kvp_toks))
    post.append(T(p, 's_nop 1'))
    post.append(Mark(lambda: free_oct.extend([('v', ACC1 + 8 * k) for k in range(8)])))
    rest = []
    for (pr, hb) in ((0, 1), (1, 0), (1, 1)): rest += qhead(pr, hb)
    return [pre, post + rest]

def interleave(p, mf, lists):
    n = len(mf); idx = [0] * len(lists)
    for j, m in enumerate(mf):
        for k, L in enumerate(lists):
            upto = (len(L) * (j + 1) + n - 1) // n
            while idx[k] < min(upto, len(L)):
                L[idx[k]](); idx[k] += 1
        m()

def build_role(p, role):
    stok = {}
    kc1, kc2 = 200, (175 if role == 'AB' else 140)
    est = [0]
    for S in range(64): est.append(est[-1] + (kc1 if S < 32 else kc2))
    free_oct = [('a', b) for b in AOCT] + [('v', b) for b in VOCT]
    NSL = 5
    W = dict(pos=0, loc={}, dtok={}, ttok={}, dS={}, slot_owner=[None] * NSL)
    RES = [(51, o) for o in (6144, 8192, 10240)] + [(55, o) for o in (12288, 14336, 16384)] + [(59, o) for o in (18432, 20480, 22528)] + [(63, o) for o in (24576, 26624, 28672)] + [(64, o) for o in (0, 2048, 4096)]
    res_next = [0]; wo_loc, wo_tok = {}, {}; wo_next = [0]
    def slot_info(sl):
        if sl == 0: return sWB, 30720, (vR0, vR1), 30720
        return sS2, 2048 * (sl - 1), (vS0, vS1), 2048 * (sl - 1)
    def wd_dma(pos, breg, off, pre=None):
        toks = W['dtok'].setdefault(pos, [])
        def f():
            if pre: p.wait(pre)
            p('s_add_u32 m0, s%d, %d' % (breg, off))
            if pos > 0: p('v_add_u32 v%d, 0x4000, v%d' % (vD2, vD2))
            else: p('s_nop 0')
            toks.append(p.vm('buffer_load_dwordx4 v%d, %s, s%d offen lds' % (vD2, srd(S_WD), sWD0)))
            toks.append(p.vm('buffer_load_dwordx4 v%d, %s, s%d offen offset:1024 lds' % (vD2, srd(S_WD), sWD1)))
        return f
    def wo_dma(hh, breg, off, pre=None):
        toks = wo_tok.setdefault(hh, [])
        def f():
            if pre: p.wait(pre)
            p('s_add_u32 m0, s%d, %d' % (breg, off))
            p('v_add_u32 v%d, 0x%x, v%d' % (vD2, 0x4000 if hh > 0 else (-27 * 0x4000) & 0xffffffff, vD2))
            toks.append(p.vm('buffer_load_dwordx4 v%d, %s, s%d offen lds' % (vD2, srd(S_WO), sWO0)))
            toks.append(p.vm('buffer_load_dwordx4 v%d, %s, s%d offen offset:1024 lds' % (vD2, srd(S_WO), sWO1)))
        return f
    def tr4_items(pos, regs, off, oc, store):
        it = []
        for nt, reg in enumerate(regs):
            for rd in range(2):
                b = oc[1] + 4 * nt + 2 * rd
                def f(b=b, reg=reg, o=off + 1024 * rd, first=(nt == 0 and rd == 0)):
                    if first: p.wait(W['dtok'][pos])
                    store.append(p.lg('ds_read_b64_tr_b16 %s[%d:%d], v%d offset:%d' % (oc[0], b, b + 1, reg, o)))
                it.append(f)
        return it
    def slot_free(sl):
        own = W['slot_owner'][sl]
        return own is None or (own >= 0 and W['loc'][own][0] == 'reg' and len(W['ttok'].get(own, [])) == 4)
    def next_w2_item(S):
        pos = W['pos']
        if pos < 28:
            for sl in range(NSL):
                if slot_free(sl):
                    own = W['slot_owner'][sl]
                    pre = W['ttok'][own] if own is not None else None
                    breg, moff, _, _ = slot_info(sl)
                    W['slot_owner'][sl] = pos; W['loc'][pos] = ('stage', sl); W['dS'][pos] = S; W['pos'] += 1
                    return wd_dma(pos, breg, moff, pre)
            if res_next[0] < len(RES) and S >= RES[res_next[0]][0]:
                off = RES[res_next[0]][1]; res_next[0] += 1
                W['loc'][pos] = ('res', off); W['dS'][pos] = S; W['pos'] += 1
                return wd_dma(pos, sWB, off)
            return None
        if wo_next[0] < 8:
            for sl in range(NSL):
                if slot_free(sl):
                    own = W['slot_owner'][sl]
                    pre = W['ttok'][own] if own is not None else None
                    W['slot_owner'][sl] = -1
                    breg, moff, regs, toff = slot_info(sl)
                    hh = wo_next[0]; wo_next[0] += 1; wo_loc[hh] = (regs, toff)
                    return wo_dma(hh, breg, moff, pre)
            if res_next[0] < len(RES) and S >= RES[res_next[0]][0]:
                off = RES[res_next[0]][1]; res_next[0] += 1
                hh = wo_next[0]; wo_next[0] += 1; wo_loc[hh] = ((vR0, vR1), off)
                return wo_dma(hh, sWB, off)
        return None
    def staged_to_reg(S_now, force=False):
        cand = [q for q in sorted(W['loc']) if W['loc'][q][0] == 'stage']
        if not cand or not free_oct: return []
        st = cand[0]
        if len(W['dtok'].get(st, [])) != 2: return []
        if not force and est[max(S_now, 0)] < est[max(W['dS'][st], 0)] + LAT and W['dS'][st] >= 0: return []
        oc = free_oct.pop(0); sl = W['loc'][st][1]; W['loc'][st] = ('reg', oc)
        _, _, regs, toff = slot_info(sl)
        return tr4_items(st, regs, toff, oc, W['ttok'].setdefault(st, []))
    XR = vT + 8
    vS, vQ = vT + 4, vT + 5
    p.wait(p.xl)
    p.stamp(14)
    p('v_mov_b32 v%d, 0' % vS); p('v_mov_b32 v%d, 0' % vQ)
    for r in range(8):
        p('v_dot2_f32_bf16 v%d, v%d, s%d, v%d' % (vS, XR + r, sONES, vS)); p('v_dot2_f32_bf16 v%d, v%d, v%d, v%d' % (vQ, XR + r, XR + r, vQ))
    for sh in (8, 4, 2, 1):
        p('s_nop 1')
        p('v_add_f32_dpp v%d, v%d, v%d row_ror:%d row_mask:0xf bank_mask:0xf' % (vS, vS, vS, sh))
        p('v_add_f32_dpp v%d, v%d, v%d row_ror:%d row_mask:0xf bank_mask:0xf' % (vQ, vQ, vQ, sh))
    p('v_mov_b32 v%d, v%d' % (vT + 6, vS)); p('v_mov_b32 v%d, v%d' % (vT + 7, vQ)); p('s_nop 1')
    p('v_permlane16_swap_b32 v%d, v%d' % (vS, vT + 6)); p('v_permlane16_swap_b32 v%d, v%d' % (vQ, vT + 7)); p('s_nop 1')
    p('v_add_f32 v%d, v%d, v%d' % (vS, vS, vT + 6)); p('v_add_f32 v%d, v%d, v%d' % (vQ, vQ, vT + 7))
    p('v_mul_f32 v%d, 0x3b000000, v%d' % (vS, vS)); p('v_mul_f32 v%d, 0x3b000000, v%d' % (vQ, vQ))
    p('v_fma_f32 v%d, -v%d, v%d, v%d' % (vQ, vS, vS, vQ))
    p('v_max_f32 v%d, 0, v%d' % (vQ, vQ)); p('v_add_f32 v%d, 0x3727c5ac, v%d' % (vQ, vQ))
    p('v_rsq_f32 v%d, v%d' % (vQ, vQ)); p('s_nop 0')
    p('v_mul_f32 v%d, v%d, v%d' % (vS, vS, vQ)); p('v_sub_f32 v%d, 0, v%d' % (vS, vS))
    for r in range(8):
        a0, a1 = vT + 16, vT + 17
        p('v_lshlrev_b32 v%d, 16, v%d' % (a0, XR + r)); p('v_and_b32 v%d, 0xffff0000, v%d' % (a1, XR + r))
        p('v_fma_f32 v%d, v%d, v%d, v%d' % (a0, a0, vQ, vS)); p('v_fma_f32 v%d, v%d, v%d, v%d' % (a1, a1, vQ, vS))
        p('v_cvt_pk_bf16_f32 v%d, v%d, v%d' % (XR + r, a0, a1))
    wa = vT + 16
    p('v_and_b32 v%d, 31, v%d' % (wa, vL)); p('v_lshrrev_b32 v%d, 3, v%d' % (wa + 1, wa)); p('v_lshlrev_b32 v%d, 13, v%d' % (wa + 1, wa + 1))
    p('v_and_b32 v%d, 7, v%d' % (wa, wa)); p('v_mul_u32_u24 v%d, 288, v%d' % (wa, wa)); p('v_add_u32 v%d, v%d, v%d' % (wa, wa, wa + 1))
    p('v_lshrrev_b32 v%d, 5, v%d' % (wa + 1, vL)); p('v_lshl_add_u32 v%d, v%d, 4, v%d' % (wa, wa + 1, wa))
    p('s_lshl_b32 s%d, s%d, 5' % (sT0, sW)); p('s_add_u32 s%d, s%d, %d' % (sT0, sT0, SPARE + 4096)); p('v_add_u32 v%d, s%d, v%d' % (wa, sT0, wa))
    w0 = p.lg('ds_write_b128 v%d, v[%d:%d]' % (wa, XR, XR + 3)); w1 = p.lg('ds_write_b128 v%d, v[%d:%d] offset:144' % (wa, XR + 4, XR + 7))
    ra = vT + 18
    p('v_lshrrev_b32 v%d, 3, v%d' % (ra, vL)); p('v_mul_u32_u24 v%d, 144, v%d' % (ra, ra)); p('v_and_b32 v%d, 7, v%d' % (ra + 1, vL)); p('v_lshl_add_u32 v%d, v%d, 4, v%d' % (ra, ra + 1, ra))
    p('s_add_u32 s%d, s%d, 4096' % (sT0, sS2)); p('v_add_u32 v%d, s%d, v%d' % (ra, sT0, ra))
    ga = vT + 20
    p('v_lshrrev_b32 v%d, 4, v%d' % (ga, vL)); p('v_lshlrev_b32 v%d, 10, v%d' % (ga, ga))
    p('v_bfe_u32 v%d, v%d, 3, 1' % (ga + 1, vL)); p('v_lshl_add_u32 v%d, v%d, 9, v%d' % (ga, ga + 1, ga))
    p('v_and_b32 v%d, 7, v%d' % (ga + 1, vL)); p('v_lshl_add_u32 v%d, v%d, 4, v%d' % (ga, ga + 1, ga))
    p('s_lshl_b32 s%d, s%d, 2' % (sT0, sI)); p('s_lshr_b32 s%d, s%d, 2' % (sT1, sC)); p('s_add_u32 s%d, s%d, s%d' % (sT0, sT0, sT1)); p('s_lshl_b32 s%d, s%d, 15' % (sT0, sT0))
    p('s_and_b32 s%d, s%d, 3' % (sT1, sC)); p('s_lshl_b32 s%d, s%d, 7' % (sT1, sT1)); p('s_add_u32 s%d, s%d, s%d' % (sT0, sT0, sT1))
    p('s_lshl_b32 s%d, s%d, 13' % (sT1, sW)); p('s_add_u32 s%d, s%d, s%d' % (sT0, sT0, sT1)); p('s_add_u32 s%d, s%d, 0x%x' % (sT0, sT0, XN_OFF))
    p.wait([w0, w1]); p('s_barrier')
    r0 = p.lg('ds_read_b128 v[%d:%d], v%d' % (XR, XR + 3, ra)); r1 = p.lg('ds_read_b128 v[%d:%d], v%d offset:1152' % (XR + 4, XR + 7, ra))
    p.wait([r0, r1])
    xs = [p.vm('buffer_store_dwordx4 v[%d:%d], v%d, %s, s%d offen %s%s' % (XR + 4 * k, XR + 4 * k + 3, ga, srd(S_WS), sT0, 'offset:4096 ' if False else '', ST)) if k == 0 else None for k in range(1)]
    p('s_add_u32 s%d, s%d, 4096' % (sT1, sT0))
    xs.append(p.vm('buffer_store_dwordx4 v[%d:%d], v%d, %s, s%d offen %s' % (XR + 4, XR + 7, ga, srd(S_WS), sT1, ST)))
    setup(p, role)
    for Tg in range(2):
        it, stok[Tg] = dma_stage_items(p, role, Tg)
        for f in it: f()
    p.wait(p.nl)
    p('v_add_u32 v%d, 64, v%d' % (vT + 3, vT + 3)); p('v_or_b32 v%d, 1, v%d' % (vT + 3, vT + 3)); p('s_nop 0')
    p('v_readfirstlane_b32 s%d, v%d' % (sNONCE, vT + 3))
    p.wait(xs); p('s_barrier')
    p('s_lshl_b32 s%d, s%d, 4' % (sT1, sI)); p('s_add_u32 s%d, s%d, s%d' % (sT1, sT1, sC))
    uniform_flag(p, FLG_XN, sT1)
    p.stamp(3)
    for Tg in range(2, NRING):
        it, stok[Tg] = dma_stage_items(p, role, Tg)
        for f in it: f()
    for k in range(NSL): next_w2_item(-1)()
    variants = setup_tr(p, role)
    vPX = vT + 22
    p('v_and_b32 v%d, 3, v%d' % (vPX, vL)); p('v_lshlrev_b32 v%d, 7, v%d' % (vPX, vPX))
    p('s_lshl_b32 s%d, s%d, 4' % (sXO[1], sI)); p('s_lshl_b32 s%d, s%d, 2' % (sT1, sW)); p('s_add_u32 s%d, s%d, s%d' % (sXO[1], sXO[1], sT1))
    p('s_lshl_b32 s%d, s%d, 7' % (sXO[1], sXO[1])); p('s_add_u32 s%d, s%d, 0x%x' % (sXO[1], sXO[1], FLG_XN))
    if role == 'AB':
        p('v_mov_b32 v%d, s%d' % (vT + 23, sEPS))
        for r in range(16): p('v_mov_b32 v%d, v%d' % (ACC2 + r, vT + 23))
    tk = poll_issue(p, vPX, sXO[1], vT + 23)
    poll_check(p, tk, vPX, sXO[1], vT + 23)
    p.stamp(15)
    xt = {}
    p('s_lshl_b32 s%d, s%d, 12' % (sXO[2], sXO[0])); p('s_add_u32 s%d, s%d, s%d' % (sXO[2], sXO[2], sXN))
    def xn_chunk_items(c):
        it = []
        for ss in range(4):
            def f(ss=ss):
                xt[4 * c + ss] = p.vm('buffer_load_dwordx4 %s, v%d, %s, s%d offen %s%s' % (xf(4 * c + ss), vST, srd(S_WS), sXO[2], ('offset:%d ' % (1024 * ss)) if ss else '', LD))
                if ss == 3 and c < 7:
                    p('s_add_u32 s%d, s%d, 4096' % (sXO[2], sXO[2]))
                    p('s_cmp_eq_u32 s%d, %d' % (sWRAP, c)); p('s_cselect_b32 s%d, 32768, 0' % sXO[3]); p('s_sub_u32 s%d, s%d, s%d' % (sXO[2], sXO[2], sXO[3]))
            it.append(f)
        return it
    for c in range(3):
        for f in xn_chunk_items(c): f()
    xq = []
    for c in range(3, 8): xq += xn_chunk_items(c)
    for k in range(NSL):
        for f in staged_to_reg(-1, force=True): f()
    p.wait(stok[0]); p('s_barrier')
    p.stamp(4)
    ftok = {}
    for f in tr_items(p, role, 0, variants, ftok): f()

    kvp_toks = []
    p.last_ds_writes = []
    phases = epilogue1_items(p, role, free_oct, kvp_toks)
    st = dict(cur=0, done=-1, kvp_S=0, flagged=False)
    dmaq = []
    for S in range(64):
        grp = 1 if S < 32 else 2
        tl = tiles_of(role, grp); G = len(tl); s = S & 31
        def mk(j, S=S, s=s, tl=tl, G=G, grp=grp):
            var, lo, rds, sw = tl[j]
            b = wf(S, j, G); Wr = 'a[%d:%d]' % (b, b + 3)
            acc = (ACC1 if grp == 1 else ACC2) + 16 * j
            d = 'v[%d:%d]' % (acc, acc + 15); c0 = '0'
            if grp == 1 and role == 'AB' and j in (0, 1, 4, 5): c0 = 'v[%d:%d]' % (ACC2, ACC2 + 15)
            c = c0 if s == 0 else d
            A, B = (xf(s), Wr) if sw else (Wr, xf(s))
            def f():
                h = G // 2
                tk = []
                if j % h == 0: tk += [t for jj in range(j, j + h) for t in ftok[(S, jj)]]
                if j == 0 and grp == 1: tk.append(xt[s])
                p.wait(tk)
                p('v_mfma_f32_32x32x16_bf16 %s, %s, %s, %s' % (d, A, B, c))
            return f
        mf = [mk(j) for j in range(G)]
        if S == 32: p.stamp(5)
        p.stamp(100 + S)
        if S == 33: free_oct.extend([('a', WF + 32), ('a', WF + 40)])
        def barrier_block(S=S):
            Tn = (S + 2) >> 2
            toks = list(stok[Tn]) if Tn <= 15 else []
            flag_kvp = (role == 'AB' and len(kvp_toks) == 2 and not st['flagged'] and est[S] >= est[st['kvp_S']] + 1300)
            if flag_kvp: toks += kvp_toks
            adv_phase = (st['done'] >= 0 and st['done'] < S and st['cur'] + 1 < len(phases))
            if adv_phase: toks += p.last_ds_writes
            p.wait(toks)
            p('s_barrier')
            if adv_phase: st['cur'] += 1; st['done'] = -1
            if flag_kvp:
                p('s_lshl_b32 s%d, s%d, 4' % (sT1, sU)); p('s_add_u32 s%d, s%d, s%d' % (sT1, sT1, sI))
                uniform_flag(p, FLG_KVP, sT1); st['flagged'] = True
            Td = (S >> 2) + NRING - 1
            if NRING <= Td <= 15:
                it, stok[Td] = dma_stage_items(p, role, Td); dmaq.extend(it)
        mf[0]()
        L_tr = tr_items(p, role, S + 1, variants, ftok) if S + 1 < 64 else []
        L_misc = []
        if S == 31 and role == 'AB': L_misc = [T(p, 'v_mov_b32 v%d, s%d' % (vT + 7, sONES))]
        L_dma = []
        for k in range(2):
            if xq: L_dma.append(xq.pop(0))
        if dmaq: L_dma.append(dmaq.pop(0))
        if (len(L_dma) < 1 or ((grp == 1) or S >= 48) and len(L_dma) < 2):
            f = next_w2_item(S)
            if f is not None: L_dma.append(f)
        L_w2tr = staged_to_reg(S)
        L_epi = []
        if grp == 2 and st['cur'] < len(phases) and phases[st['cur']]:
            ph = phases[st['cur']]
            last = (45 if st['cur'] == 0 else 62) if role == 'AB' else 50
            left = max(1, last - S + 1)
            n = (len(ph) + left - 1) // left
            L_epi = ph[:n]; del ph[:n]
            if not ph: st['done'] = S
            if role == 'AB' and st['cur'] == 1 and len(kvp_toks) < 2: st['kvp_S'] = S
        Ls = [L_tr, L_misc, L_epi, L_w2tr, L_dma]
        if S % 4 == 2:
            h = G // 2
            part = lambda L, lo, hi, n: L[(len(L) * lo) // n:(len(L) * hi) // n]
            interleave(p, mf[1:h + 1], [part(L, 0, h, G - 1) for L in Ls])
            barrier_block()
            interleave(p, mf[h + 1:], [part(L, h, G - 1, G - 1) for L in Ls])
        else:
            interleave(p, mf[1:], Ls)
    for ph in phases: assert not ph, len(ph)
    assert not dmaq
    if role == 'AB': assert st['flagged']
    p.stamp(6)
    p('s_nop 7'); p('s_nop 3')
    hst = []
    for j in range(4):
        for f in mlp_epi_items(p, ACC2 + 16 * j, vT + 8 + 4 * (j & 1), sHST2, 1024 * j, hst): f()
    p.stamp(7)
    p.c('W2 state: pos=%d wo=%d loc=%s' % (W['pos'], wo_next[0], sorted(W['loc'].items())))
    return dict(W=W, free_oct=free_oct, wo_loc=wo_loc, wo_tok=wo_tok, hst=hst, next_w2_item=next_w2_item, tr4_items=tr4_items, slot_info=slot_info)

def phase2(p, role, info):
    W, free_oct = info['W'], info['free_oct']
    sH0, sH1, sPQ0, sPQ1, sKZ, sF = sL[0], sL[1], sL[2], sL[3], sL[4], sL[5]
    p.wait(info['hst'][-1]); p('s_barrier')
    p('s_lshl_b32 s%d, s%d, 4' % (sT1, sI)); p('s_add_u32 s%d, s%d, s%d' % (sT1, sT1, sC))
    uniform_flag(p, FLG_H, sT1)
    p.stamp(8)
    while True:
        f = info['next_w2_item'](64)
        if f is None: break
        f()
    if not (W['pos'] == 28 and len(info['wo_loc']) == 8):
        print(W['loc'], W['slot_owner'], info['wo_loc']); raise SystemExit('W2 overflow')
    vPH, vPZ, vPD = vT + 16, vT + 17, vT + 18
    p('v_and_b32 v%d, 3, v%d' % (vPH, vL)); p('v_lshlrev_b32 v%d, 7, v%d' % (vPH, vPH))
    p('s_lshr_b32 s%d, s%d, 1' % (sT0, sRT)); p('s_lshl_b32 s%d, s%d, 4' % (sT0, sT0)); p('s_lshl_b32 s%d, s%d, 2' % (sT1, sW)); p('s_add_u32 s%d, s%d, s%d' % (sT0, sT0, sT1))
    p('s_lshl_b32 s%d, s%d, 7' % (sT0, sT0)); p('s_add_u32 s%d, s%d, 0x%x' % (sG2[0], sT0, FLG_H))
    p('v_and_b32 v%d, 31, v%d' % (vPZ, vL)); p('v_lshlrev_b32 v%d, 7, v%d' % (vPZ, vPZ))
    p('s_lshl_b32 s%d, s%d, 12' % (sG2[1], sW)); p('s_add_u32 s%d, s%d, 0x%x' % (sG2[1], sG2[1], FLG_KVZ))
    p('s_mul_i32 s%d, s%d, %d' % (sH0, sRT, 2 * 112 * 1024)); p('s_mul_i32 s%d, s%d, %d' % (sT0, sW, 28 * 1024)); p('s_add_u32 s%d, s%d, s%d' % (sH0, sH0, sT0))
    p('s_add_u32 s%d, s%d, %d' % (sH1, sH0, 112 * 1024))
    p('s_lshl_b32 s%d, s%d, 16' % (sPQ0, sRT)); p('s_lshl_b32 s%d, s%d, 13' % (sT0, sW)); p('s_add_u32 s%d, s%d, s%d' % (sPQ0, sPQ0, sT0)); p('s_add_u32 s%d, s%d, 0x%x' % (sPQ0, sPQ0, PQ_OFF))
    p('s_add_u32 s%d, s%d, 32768' % (sPQ1, sPQ0))
    p('s_add_u32 s%d, s%d, 0x%x' % (sKZ, sT0, KVZ_OFF))
    KR = vT + 8
    if role == 'CD':
        p('s_lshl_b32 s%d, s%d, 1' % (sU, sQD)); p('s_add_u32 s%d, s%d, s%d' % (sU, sU, sMEM)); p('s_sub_u32 s%d, s%d, 2' % (sU, sU))
        p('v_and_b32 v%d, 15, v%d' % (vT + 6, vL)); p('v_lshlrev_b32 v%d, 7, v%d' % (vT + 6, vT + 6))
        p('s_lshl_b32 s%d, s%d, 11' % (sF, sU)); p('s_add_u32 s%d, s%d, 0x%x' % (sF, sF, FLG_KVP))
        tk = poll_issue(p, vT + 6, sF, vPD); poll_check(p, tk, vT + 6, sF, vPD)
        p('v_lshrrev_b32 v%d, 3, v%d' % (vT + 6, vL)); p('v_lshlrev_b32 v%d, 12, v%d' % (vT + 6, vT + 6))
        p('v_bfe_u32 v%d, v%d, 2, 1' % (vT + 7, vL)); p('v_lshl_add_u32 v%d, v%d, 10, v%d' % (vT + 6, vT + 7, vT + 6))
        p('v_and_b32 v%d, 3, v%d' % (vT + 7, vL)); p('v_lshl_add_u32 v%d, v%d, 4, v%d' % (vT + 6, vT + 7, vT + 6))
        p('s_lshl_b32 s%d, s%d, 2' % (sF, sU)); p('s_add_u32 s%d, s%d, s%d' % (sF, sF, sW))
        p('s_lshl_b32 s%d, s%d, 15' % (sT0, sF)); p('s_lshl_b32 s%d, s%d, 6' % (sT1, sI)); p('s_add_u32 s%d, s%d, s%d' % (sT0, sT0, sT1)); p('s_add_u32 s%d, s%d, 0x%x' % (sT0, sT0, KVP_OFF))
        krt = [p.vm('buffer_load_dwordx4 v[%d:%d], v%d, %s, s%d offen %s%s' % (KR + 4 * k, KR + 4 * k + 3, vT + 6, srd(S_WS), sT0, 'offset:2048 ' if k else '', LD)) for k in range(2)]
        p.wait(krt)
        for r in range(4): p('v_add_f32 v%d, v%d, v%d' % (KR + r, KR + r, KR + 4 + r))
        for r in range(4): p('v_mov_b32 v%d, v%d' % (KR + 4 + r, KR + r))
        p('s_nop 1')
        for r in range(4): p('v_permlane32_swap_b32 v%d, v%d' % (KR + r, KR + 4 + r))
        p('s_nop 1')
        for r in range(4): p('v_add_f32 v%d, v%d, v%d' % (KR + r, KR + r, KR + 4 + r))
        for r in range(4): p('v_mov_b32 v%d, v%d' % (KR + 4 + r, KR + r))
        p('s_nop 1')
        for r in range(4): p('v_permlane16_swap_b32 v%d, v%d' % (KR + r, KR + 4 + r))
        p('s_nop 1')
        for r in range(4): p('v_add_f32 v%d, v%d, v%d' % (KR + r, KR + r, KR + 4 + r))
        p('s_nop 1')
        for r in range(4): p('v_add_f32_dpp v%d, v%d, v%d row_ror:8 row_mask:0xf bank_mask:0xf' % (KR + 4 + r, KR + r, KR + r))
        p('v_cvt_pk_bf16_f32 v%d, v%d, v%d' % (KR, KR + 4, KR + 5)); p('v_cvt_pk_bf16_f32 v%d, v%d, v%d' % (KR + 1, KR + 6, KR + 7))
        p('v_and_b32 v%d, 3, v%d' % (vT + 7, vL)); p('v_lshlrev_b32 v%d, 4, v%d' % (vT + 6, vT + 7))
        p('v_bfe_u32 v%d, v%d, 2, 1' % (vT + 7, vL)); p('v_lshl_add_u32 v%d, v%d, 3, v%d' % (vT + 6, vT + 7, vT + 6))
        p('s_lshl_b32 s%d, s%d, 10' % (sT0, sF)); p('s_lshl_b32 s%d, s%d, 6' % (sT1, sI)); p('s_add_u32 s%d, s%d, s%d' % (sT0, sT0, sT1)); p('s_add_u32 s%d, s%d, 0x%x' % (sT0, sT0, KVZ_OFF))
        p('s_mov_b64 s[%d:%d], exec' % (sEX, sEX + 1)); p('s_mov_b64 exec, 0xff')
        kzs = p.vm('buffer_store_dwordx2 v[%d:%d], v%d, %s, s%d offen %s' % (KR, KR + 1, vT + 6, srd(S_WS), sT0, ST))
        p('s_mov_b64 exec, s[%d:%d]' % (sEX, sEX + 1))
        p.wait(kzs); p('s_barrier')
        p('s_lshl_b32 s%d, s%d, 4' % (sT1, sU)); p('s_add_u32 s%d, s%d, s%d' % (sT1, sT1, sI))
        uniform_flag(p, FLG_KVZ, sT1)
    def to_reg(pos):
        kind, where = W['loc'][pos]
        oc = free_oct.pop(0)
        if kind == 'stage': _, _, regs, off = info['slot_info'](where)
        else: regs, off = (vR0, vR1), where
        W['loc'][pos] = ('reg', oc)
        for f in info['tr4_items'](pos, regs, off, oc, W['ttok'].setdefault(pos, [])): f()
    tk = poll_issue(p, vPH, sG2[0], vPD); poll_check(p, tk, vPH, sG2[0], vPD)
    p.stamp(9)
    NR = 16; ht = {}
    def hb(j, mt): return XF + 8 * (j % NR) + 4 * mt
    def ld_h(j):
        ht[j] = []
        for mt, so in enumerate((sH0, sH1)):
            r = hb(j, mt)
            ht[j].append(p.vm('buffer_load_dwordx4 a[%d:%d], v%d, %s, s%d offen %s%s' % (r, r + 3, vST, srd(S_WS), so, ('offset:%d ' % (1024 * (j & 3))) if j & 3 else '', LD)))
        if j & 3 == 3: p('s_add_u32 s%d, s%d, 4096' % (sH0, sH0)); p('s_add_u32 s%d, s%d, 4096' % (sH1, sH1))
    for j in range(NR): ld_h(j)
    for pos in range(28):
        if W['loc'][pos][0] != 'reg': to_reg(pos)
    ACC = ACC2
    PQR, KZR = XF, XF + 96
    ND = vT + 0
    pqt, kzt = {}, {}
    XR = vT + 24; ga = vT + 22; zt = None
    for j in range(28):
        p.wait(ht[j] + W['ttok'][j])
        oc = W['loc'][j][1]
        for nt in range(2):
            for mt in range(2):
                d = ACC + 16 * (2 * nt + mt); r = hb(j, mt)
                p('v_mfma_f32_32x32x16_bf16 v[%d:%d], %s[%d:%d], a[%d:%d], %s' % (d, d + 15, oc[0], oc[1] + 4 * nt, oc[1] + 4 * nt + 3, r, r + 3, '0' if j == 0 else 'v[%d:%d]' % (d, d + 15)))
        if j + NR < 28: ld_h(j + NR)
        if 16 <= j < 24:
            hh = j - 16
            for mt, so in enumerate((sPQ0, sPQ1)):
                r = PQR + 8 * hh + 4 * mt
                pqt[(hh, mt)] = p.vm('buffer_load_dwordx4 a[%d:%d], v%d, %s, s%d offen %s%s' % (r, r + 3, vST, srd(S_WS), so, ('offset:%d ' % (1024 * (hh & 3))) if hh & 3 else '', LD))
            if hh == 3: p('s_add_u32 s%d, s%d, 4096' % (sPQ0, sPQ0)); p('s_add_u32 s%d, s%d, 4096' % (sPQ1, sPQ1))
        if j == 12: zt = poll_issue(p, vPZ, sG2[1], vPD)
        if j == 16:
            poll_check(p, zt, vPZ, sG2[1], vPD)
            for hh in range(8):
                kzt[hh] = p.vm('buffer_load_dwordx4 a[%d:%d], v%d, %s, s%d offen %s%s' % (KZR + 4 * hh, KZR + 4 * hh + 3, vST, srd(S_WS), sKZ, ('offset:%d ' % (1024 * (hh & 3))) if hh & 3 else '', LD))
                if hh == 3: p('s_add_u32 s%d, s%d, 4096' % (sKZ, sKZ))
        if j == 20:
            p('v_lshrrev_b32 v%d, 3, v0' % ga); p('v_lshlrev_b32 v%d, 10, v%d' % (ga, ga))
            p('v_and_b32 v%d, 7, v0' % (vT + 23)); p('v_lshl_add_u32 v%d, v%d, 4, v%d' % (ga, vT + 23, ga))
            p('s_lshl_b32 s%d, s%d, 16' % (sHST1, sRT)); p('s_lshl_b32 s%d, s%d, 7' % (sT1, sCT)); p('s_add_u32 s%d, s%d, s%d' % (sHST1, sHST1, sT1))
            p('s_add_u32 s%d, s%d, 32768' % (sHST2, sHST1))
            xt = [p.vm('buffer_load_dwordx4 v[%d:%d], v%d, %s, s%d offen' % (XR + 4 * k, XR + 4 * k + 3, ga, srd(S_X), (sHST1, sHST2)[k])) for k in range(2)]
    p.stamp(10)
    ND = ACC1
    wfr = {}
    FBS = [WF, WF + 8, WF + 16]
    def wo_tr(hh):
        p.wait(info['wo_tok'][hh]); t = []
        fb = FBS[hh % 3]; regs, off = info['wo_loc'][hh]
        for nt, reg in enumerate(regs):
            for rd in range(2):
                b = fb + 4 * nt + 2 * rd
                t.append(p.lg('ds_read_b64_tr_b16 a[%d:%d], v%d offset:%d' % (b, b + 1, reg, off + 1024 * rd)))
        wfr[hh] = t
    def nd_mfma(u):
        hh, mt = u >> 1, u & 1; d = ND + 16 * (u & 1)
        p.wait([kzt[hh], pqt[(hh, mt)]])
        p('v_mfma_f32_32x32x16_bf16 v[%d:%d], a[%d:%d], a[%d:%d], 0' % (d, d + 15, KZR + 4 * hh, KZR + 4 * hh + 3, PQR + 8 * hh + 4 * mt, PQR + 8 * hh + 4 * mt + 3))
    def o_valu(u):
        hh = u >> 1; d = ND + 16 * (u & 1)
        num, den = (d, d + 8) if hh % 2 == 0 else (d + 8, d)
        t = vT + 8 * (u & 1)
        p('v_add_f32 v%d, s%d, v%d' % (t + 4, sEPS, den)); p('v_rcp_f32 v%d, v%d' % (t + 4, t + 4)); p('s_nop 0')
        for r in range(8): p('v_mul_f32 v%d, v%d, v%d' % (num + r, num + r, t + 4))
        for q in range(4): p('v_cvt_pk_bf16_f32 v%d, v%d, v%d' % (t + q, num + 2 * q, num + 2 * q + 1))
    def wo_mfma(u):
        hh, mt = u >> 1, u & 1
        p.wait(wfr[hh])
        fb = FBS[hh % 3]; t = vT + 8 * (u & 1)
        for nt in range(2):
            d = ACC + 16 * (2 * nt + mt)
            p('v_mfma_f32_32x32x16_bf16 v[%d:%d], a[%d:%d], v[%d:%d], v[%d:%d]' % (d, d + 15, fb + 4 * nt, fb + 4 * nt + 3, t, t + 3, d, d + 15))
    p('s_nop 3')
    wo_tr(0); wo_tr(1)
    nd_mfma(0); nd_mfma(1)
    for u in range(16):
        o_valu(u)
        if u + 2 < 16: nd_mfma(u + 2)
        if u % 2 == 0 and (u >> 1) + 2 < 8: wo_tr((u >> 1) + 2)
        wo_mfma(u)
    p.stamp(11)
    p.wait_all(vm=False); p('s_barrier')
    wa = vT
    p('v_and_b32 v%d, 31, v%d' % (wa, vL)); p('v_mul_u32_u24 v%d, 272, v%d' % (wa, wa))
    p('v_lshrrev_b32 v%d, 5, v%d' % (wa + 1, vL)); p('v_lshl_add_u32 v%d, v%d, 4, v%d' % (wa, wa + 1, wa))
    p('s_mul_i32 s%d, s%d, 17408' % (sT0, sW)); p('v_add_u32 v%d, s%d, v%d' % (wa, sT0, wa))
    ra = vT + 2
    p('v_lshrrev_b32 v%d, 3, v0' % ra); p('v_mul_u32_u24 v%d, 272, v%d' % (ra, ra))
    p('v_and_b32 v%d, 7, v0' % (vT + 3)); p('v_lshl_add_u32 v%d, v%d, 5, v%d' % (ra, vT + 3, ra))
    p('s_nop 3')
    for mt in range(2):
        for nt in range(2):
            for q in range(4):
                r = ACC + 16 * (2 * nt + mt) + 4 * q
                p.lg('ds_write_b128 v%d, v[%d:%d] offset:%d' % (wa, r, r + 3, mt * 8704 + nt * 128 + q * 32))
    p.wait_all(vm=False); p('s_barrier')
    R = ACC1; rt = {}
    for j in range(2):
        for wv in range(4):
            for hh in range(2):
                r = R + 32 * j + 8 * wv + 4 * hh
                rt[(j, wv, hh)] = p.lg('ds_read_b128 v[%d:%d], v%d offset:%d' % (r, r + 3, ra, wv * 17408 + j * 8704 + hh * 16))
    for j in range(2):
        p.wait([rt[(j, wv, hh)] for wv in range(4) for hh in range(2)])
        b = R + 32 * j
        for r in range(8): p('v_add_f32 v%d, v%d, v%d' % (b + r, b + r, b + 8 + r))
        for r in range(8): p('v_add_f32 v%d, v%d, v%d' % (b + 16 + r, b + 16 + r, b + 24 + r))
        for r in range(8): p('v_add_f32 v%d, v%d, v%d' % (b + r, b + r, b + 16 + r))
        p.wait(xt[j])
        t = vT + 16
        for q in range(4):
            x = XR + 4 * j + q
            p('v_lshlrev_b32 v%d, 16, v%d' % (t, x)); p('v_and_b32 v%d, 0xffff0000, v%d' % (t + 1, x))
            p('v_add_f32 v%d, v%d, v%d' % (b + 2 * q, b + 2 * q, t)); p('v_add_f32 v%d, v%d, v%d' % (b + 2 * q + 1, b + 2 * q + 1, t + 1))
            p('v_cvt_pk_bf16_f32 v%d, v%d, v%d' % (x, b + 2 * q, b + 2 * q + 1))
        p.vm('buffer_store_dwordx4 v[%d:%d], v%d, %s, s%d offen' % (XR + 4 * j, XR + 4 * j + 3, ga, srd(S_OUT), (sHST1, sHST2)[j]))
    la = p.newlabel('L_ns')
    p('s_or_b32 s%d, s2, s%d' % (sT1, sW)); p('s_cmp_lg_u32 s%d, 0' % sT1); p('s_cbranch_scc1 %s' % la)
    p('s_barrier') if False else None
    p('v_mov_b32 v%d, s%d' % (vT + 4, sNONCE)); p('v_mov_b32 v%d, 0' % (vT + 5)); p('s_mov_b32 s%d, 0x%x' % (sT1, NONCE_OFF))
    p('s_mov_b64 exec, 1')
    p('buffer_store_dword v%d, v%d, %s, s%d offen %s' % (vT + 4, vT + 5, srd(S_WS), sT1, ST))
    p.label(la)
    p.stamp(12)
    if p.stamps_on:
        p('s_mov_b64 exec, -1')
        p('s_waitcnt vmcnt(0)'); p.stamp_rt(13)
        p.stamp_dump(srd(S_WS), 0x8000000, 14)

def build(stamps=None):
    p = Prog(); p.stamps_on = stamps is not None
    if stamps: p.stamp_map = {i: k for k, i in enumerate(stamps)}
    p('s_cmp_ge_u32 s2, 256'); p('s_cbranch_scc1 L_end')
    prologue(p)
    pro = list(p.ins)
    st = (p.vm_issued, p.vm_done, p.lg_issued, p.lg_done)
    paths = {}
    for role in ('AB', 'CD'):
        p.vm_issued, p.vm_done, p.lg_issued, p.lg_done = st
        n0 = len(p.ins)
        info = build_role(p, role)
        phase2(p, role, info)
        paths[role] = p.ins[n0:]
    probs = []
    head = pro + ['s_cmp_ge_u32 s%d, 2' % sMEM, 's_cbranch_scc1 L_cd']
    out = list(head)
    for role in ('AB', 'CD'):
        fixed, n = fix_hazards(head + paths[role])
        assert fixed[:len(head)] == head, 'hazard in prologue'
        body = fixed[len(head):]
        print(role, 'auto-inserted wait states:', n, 'instrs', len(body))
        probs += check_hazards(head + body, role) + check_waits(head + body, 'w' + role)
        if role == 'CD': out.append('L_cd:')
        out += body
        if role == 'AB': out.append('s_branch L_end')
        paths[role] = body
    out.append('L_end:')
    p.ins = out
    return p, probs, paths

if __name__ == '__main__':
    sys.path.insert(0, 'dev')
    from asmlib import make_file
    stamps = [int(x) for x in sys.argv[2].split(',')] if len(sys.argv) > 2 else None
    p, probs, paths = build(stamps)
    for x in probs[:30]: print(x)
    for l in p.ins:
        if l.startswith('; W2 state'): print(l[:700])
    print('problems:', len(probs), 'regs', maxregs(p.ins), 'n', len(p.ins))
    ks = [dict(name=NAME, body=p.text(), grid=(256, 1, 1), block=(256, 1, 1), lds=163840, vgpr=512, accum=256, sgpr=102)]
    open(sys.argv[1], 'w').write(make_file(ks, single=True))
```

```python
import sys, os
from fw import *

NAME = 'parallel_sum__linear_attn_block__glu_gated_reglu__prompt_kernel'
H_OFF, PQ_OFF, KVP_OFF, KVZ_OFF, STAT_OFF = 0x0, 0x800000, 0xA00000, 0xB00000, 0xD00000
FLG_H, FLG_KVP, FLG_KVZ, NONCE_OFF = 0xC00000, 0xC10000, 0xC20000, 0xC30000
WS_BYTES = 268435456
SPARE = 131072
ST = 'sc1'; LD = 'sc1'; DST = 'sc1'
TOUCH = int(os.environ.get('TOUCH', '1'))
NRING = 5
LAT = int(os.environ.get('LAT', '2600'))
SLEEP = 6
ROTMODE = int(os.environ.get('ROTMODE', '1'))
EARLY12 = int(os.environ.get('EARLY12', '0'))

S_X, S_WQ, S_WG, S_WU, S_WS, S_WD, S_WO, S_OUT = 4, 8, 12, 16, 20, 24, 28, 32
sW, sI, sMEM, sQD, sWB = 36, 37, 38, 39, 40
sLOG2E, sEPS, sONES = 41, 42, 43
sL = [44, 45, 46, 47, 48, 49]
sG2 = [50, 51]
sHST1, sHST1b, sHST2, sPQ, sKVP = 52, 53, 54, 55, 56
sT0, sT1, sT2 = 57, 58, 59
sNONCE, sSPIN = 60, 3
sRT, sCT = 61, 62
sWD0, sWD1, sWO0, sWO1 = 63, 64, 65, 66
sU, sS2, sWRAP = 67, 68, 69
sStepQ, sWrapQ, sStepG, sWrapG, sInc = 88, 89, 90, 91, 92
sC = 93
sEX = 94
sMASK, sROT = 96, 97
sXB, sKX, sIncX = 98, 99, 100
sW2WRAP = 101
def srd(b): return 's[%d:%d]' % (b, b + 3)

vL, vST, vD2 = 1, 2, 3
vWA, vWB, vWC, vWD = 4, 5, 6, 7
vS0, vS1 = 8, 9
vR0, vR1 = 10, 11
vTR = 12
vT = 24
vRS, vNM = 62, 63
ACC2 = 64
XF = 128
vX = [72, 73, 74, 75]
vXA = [76, 77, 78, 79]
vDUM = 80; vTA = 81
ACC1, WF, EPSB = 0, 96, 144
AOCT = [160 + 8 * k for k in range(12)]
def xf(s): return 'v[%d:%d]' % (XF + 4 * s, XF + 4 * s + 3)
def T(p, s): return lambda: p(s)
KVS = [4096, 10240, 16384, 22528]

class Mark:
    def __init__(self, fn): self.fn = fn
    def __call__(self): self.fn()

def slot_base_const(S):
    Tg = S >> 2
    if Tg == 0: return SPARE + 6144 * (S & 3)
    return 32768 * (S & 3) + 6144 * ((Tg - 1) % NRING)

def tiles_of(role, grp):
    if grp == 2: return [('m%d' % t, 0, 512, False) for t in range(4)]
    if role == 'AB':
        return [('q0', 0, 512, True), ('q1', 0, 512, True), ('q0', 2048, 512, True), ('q1', 2048, 512, True), ('q0', 4096, 512, False), ('q1', 4096, 512, False)]
    return [('m%d' % t, 0, 512, False) for t in range(4)] + [('h0', 4096, 256, False), ('h1', 4096, 256, False)]
def wf(S, j, G): return WF + (S & 1) * 4 * G + 4 * j

def tr_items(p, role, S, variants, ftok):
    tl = tiles_of(role, 1 if S < 32 else 2); G = len(tl)
    items = []; blk = slot_base_const(S)
    for j, (var, lo, rds, sw) in enumerate(tl):
        ftok[(S, j)] = []
        for rd in range(2):
            const = blk + lo + rd * rds
            win, off = const >> 16, const & 0xffff
            b = wf(S, j, G) + 2 * rd
            def f(b=b, reg=variants[var][win], off=off, key=(S, j)):
                ftok[key].append(p.lg('ds_read_b64_tr_b16 a[%d:%d], v%d offset:%d' % (b, b + 1, reg, off)))
            items.append(f)
    return items

def prologue(p):
    if p.stamps_on: p('s_memrealtime s[98:99]'); p('s_memtime s[100:101]')
    p('s_load_dwordx2 s[70:71], s[0:1], 0')
    p('s_load_dwordx2 s[86:87], s[0:1], 72')
    p('s_load_dwordx4 s[72:75], s[0:1], 8')
    p('s_load_dwordx4 s[76:79], s[0:1], 32')
    p('s_load_dwordx4 s[80:83], s[0:1], 48')
    p('v_and_b32 v%d, 63, v0' % vL)
    p('v_lshrrev_b32 v%d, 6, v0' % vT)
    p('s_and_b32 s%d, s2, 7' % sT0); p('s_lshr_b32 s%d, s2, 3' % sT1)
    p('v_readfirstlane_b32 s%d, v%d' % (sW, vT))
    p('s_lshr_b32 s%d, s%d, 1' % (sQD, sT0))
    p('s_lshl_b32 s%d, s%d, 2' % (sRT, sT0)); p('s_and_b32 s%d, s%d, 3' % (sT2, sT1)); p('s_add_u32 s%d, s%d, s%d' % (sRT, sRT, sT2))
    p('s_lshr_b32 s%d, s%d, 2' % (sCT, sT1))
    p('s_and_b32 s%d, s%d, 1' % (sT0, sT0)); p('s_lshl_b32 s%d, s%d, 3' % (sT0, sT0))
    p('s_and_b32 s%d, s%d, 7' % (sI, sT1)); p('s_add_u32 s%d, s%d, s%d' % (sI, sI, sT0))
    p('s_lshr_b32 s%d, s%d, 3' % (sMEM, sT1))
    p('s_lshl_b32 s%d, s%d, 2' % (sC, sQD)); p('s_add_u32 s%d, s%d, s%d' % (sC, sC, sMEM))
    if ROTMODE == 0:
        p('s_lshl_b32 s%d, s%d, 1' % (sROT, sMEM)); p('s_add_u32 s%d, s%d, s%d' % (sROT, sROT, sI)); p('s_and_b32 s%d, s%d, 7' % (sROT, sROT))
    else:
        p('s_and_b32 s%d, s%d, 1' % (sROT, sI)); p('s_lshl_b32 s%d, s%d, 1' % (sROT, sROT)); p('s_add_u32 s%d, s%d, s%d' % (sROT, sROT, sMEM)); p('s_lshl_b32 s%d, s%d, 1' % (sROT, sROT)); p('s_and_b32 s%d, s%d, 7' % (sROT, sROT))
    p('s_lshl_b32 s%d, s%d, 7' % (sT0, sI)); p('s_lshl_b32 s%d, s%d, 3' % (sT1, sC)); p('s_add_u32 s%d, s%d, s%d' % (sT0, sT0, sT1))
    p('s_lshl_b32 s%d, s%d, 1' % (sT1, sW)); p('s_add_u32 s%d, s%d, s%d' % (sT2, sT0, sT1)); p('s_lshl_b32 s%d, s%d, 10' % (sT0, sT2))
    p('v_lshrrev_b32 v%d, 5, v%d' % (vT, vL)); p('v_lshlrev_b32 v%d, 10, v%d' % (vT, vT))
    p('v_and_b32 v%d, 31, v%d' % (vT + 1, vL)); p('v_lshl_add_u32 v%d, v%d, 5, v%d' % (vT, vT + 1, vT))
    p('v_mov_b32 v%d, 0' % (vT + 2)); p('s_mov_b32 s%d, 0x%x' % (sT1, NONCE_OFF))
    p('s_lshl_b32 s%d, s%d, 4' % (sHST2, sT2)); p('s_add_u32 s%d, s%d, 0x%x' % (sHST2, sHST2, STAT_OFF))
    a, b, c = vT + 4, vT + 5, vT + 6
    p('v_lshrrev_b32 v%d, 3, v%d' % (a, vL)); p('v_lshlrev_b32 v%d, 10, v%d' % (a, a))
    p('v_and_b32 v%d, 7, v%d' % (b, vL)); p('v_lshrrev_b32 v%d, 4, v%d' % (c, vL)); p('v_xor_b32 v%d, v%d, v%d' % (b, b, c))
    p('v_lshl_add_u32 v%d, v%d, 4, v%d' % (vX[0], b, a))
    p('s_lshl_b32 s%d, s%d, 7' % (sT1, sROT)); p('v_add_u32 v%d, s%d, v%d' % (vX[0], sT1, vX[0]))
    p('v_xor_b32 v%d, 64, v%d' % (vX[1], vX[0])); p('v_add_u32 v%d, 14336, v%d' % (vX[2], vX[0])); p('v_add_u32 v%d, 7168, v%d' % (vX[1], vX[1]))
    p('v_add_u32 v%d, 14336, v%d' % (vX[3], vX[1]))
    p('s_mov_b32 s%d, 0x%x' % (sT1, NONCE_OFF))
    p('s_lshl_b32 s%d, s%d, 15' % (sWB, sW))
    p('s_waitcnt lgkmcnt(0)')
    if p.stamps_on: p('s_mov_b32 s88, s98'); p('s_mov_b32 s89, s100')
    def mk(base, src, n):
        p('s_mov_b32 s%d, s%d' % (base, src)); p('s_mov_b32 s%d, s%d' % (base + 1, src + 1))
        p('s_mov_b32 s%d, 0x%x' % (base + 2, n)); p('s_mov_b32 s%d, 0x00020000' % (base + 3))
    mk(S_X, 70, 2048 * 1024); mk(S_WS, 86, WS_BYTES)
    XR = vT + 8
    p.xl = [p.vm('buffer_load_dwordx4 v[%d:%d], v%d, %s, s%d offen %s' % (XR + 4 * k, XR + 4 * k + 3, vT, srd(S_X), sT0, 'offset:16' if k else '')) for k in range(2)]
    p.nl = p.vm('buffer_load_dword v%d, v%d, %s, s%d offen %s' % (vT + 3, vT + 2, srd(S_WS), sT1, LD))
    p('s_lshl_b32 s%d, s%d, 2' % (sXB, sI)); p('s_add_u32 s%d, s%d, s%d' % (sXB, sXB, sW)); p('s_lshl_b32 s%d, s%d, 15' % (sXB, sXB))
    p('s_mov_b32 s%d, s%d' % (sKX, sROT))
    mk(S_WQ, 72, 512 * 3072); mk(S_WO, 74, 512 * 1024); mk(S_WG, 76, 512 * 3584); mk(S_WU, 78, 512 * 3584); mk(S_WD, 80, 1792 * 1024); mk(S_OUT, 82, 2048 * 1024)
    if p.stamps_on: p('s_mov_b32 s70, s88'); p('s_mov_b32 s72, s89')
    p('s_lshl_b32 s%d, s%d, 13' % (sS2, sW)); p('s_add_u32 s%d, s%d, %d' % (sS2, sS2, SPARE))
    p('s_sub_u32 s%d, 7, s%d' % (sWRAP, sROT))
    p('s_mov_b32 s%d, 0x3fb8aa3b' % sLOG2E); p('s_mov_b32 s%d, 0x358637bd' % sEPS); p('s_mov_b32 s%d, 0x3f803f80' % sONES); p('s_mov_b32 s%d, 0xffff0000' % sMASK)
    p('s_mov_b32 s%d, %d' % (sStepG, 64 * 3584)); p('s_mov_b32 s%d, 0x%x' % (sWrapG, (-448 * 3584) & 0xffffffff))
    p('s_mov_b32 s%d, %d' % (sStepQ, 64 * 3072)); p('s_mov_b32 s%d, 0x%x' % (sWrapQ, (-448 * 3072) & 0xffffffff))
    p('v_lshlrev_b32 v%d, 4, v%d' % (vST, vL))

def x_dma_items(p):
    toks = [[] for _ in range(8)]; items = []
    for c in range(8):
        def f(c=c):
            p('s_add_u32 m0, s%d, %d' % (sWB, 4096 * c))
            p('s_add_u32 s%d, s%d, 1' % (sKX, sKX)); p('s_and_b32 s%d, s%d, 7' % (sKX, sKX))
            p('s_movk_i32 s%d, 128' % sIncX); p('s_cmp_eq_u32 s%d, 0' % sKX); p('s_cselect_b32 s%d, 0xfffffc80, s%d' % (sIncX, sIncX))
            for q in range(4):
                toks[c].append(p.vm('buffer_load_dwordx4 v%d, %s, s%d offen %slds' % (vX[q], srd(S_X), sXB, ('offset:%d ' % (1024 * q)) if q else '')))
            if c < 7:
                for q in range(4): p('v_add_u32 v%d, s%d, v%d' % (vX[q], sIncX, vX[q]))
        items.append(f)
    return items, toks

def setup(p, role):
    q = p
    a, b, c = vT + 16, vT + 17, vT + 18
    q('v_lshrrev_b32 v%d, 3, v%d' % (a, vL))
    q('v_lshrrev_b32 v%d, 2, v%d' % (c, vL)); q('v_and_b32 v%d, 4, v%d' % (c, c))
    q('v_and_b32 v%d, 7, v%d' % (b, vL)); q('v_xor_b32 v%d, v%d, v%d' % (b, b, c)); q('v_lshlrev_b32 v%d, 4, v%d' % (b, b))
    q('v_lshl_add_u32 v%d, v%d, 10, v%d' % (vD2, a, b))
    q('s_movk_i32 s%d, 3072' % sT1); q('s_movk_i32 s%d, 3584' % sT2)
    rot = sROT
    q('s_mul_i32 s%d, s%d, %d' % (sWO1, rot, 64 * 3072)); q('s_mul_i32 s%d, s%d, %d' % (sWD1, rot, 64 * 3584))
    if role == 'AB':
        q('v_mad_u32_u24 v%d, v%d, s%d, v%d' % (vWA, a, sT1, b)); q('v_mad_u32_u24 v%d, v%d, s%d, v%d' % (vWB, a, sT2, b))
        q('v_add_u32 v%d, s%d, v%d' % (vWA, sWO1, vWA)); q('v_add_u32 v%d, s%d, v%d' % (vWB, sWD1, vWB))
        q('v_xor_b32 v%d, 32, v%d' % (vWC, vWB))
    else:
        q('v_mad_u32_u24 v%d, v%d, s%d, v%d' % (vWA, a, sT2, b)); q('v_add_u32 v%d, s%d, v%d' % (vWA, sWD1, vWA))
        q('v_xor_b32 v%d, 32, v%d' % (vWB, vWA))
        q('v_lshrrev_b32 v%d, 2, v%d' % (a, vL)); q('v_and_b32 v%d, 3, v%d' % (b, vL)); q('v_lshlrev_b32 v%d, 4, v%d' % (b, b))
        q('v_mad_u32_u24 v%d, v%d, s%d, v%d' % (vWC, a, sT2, b)); q('v_add_u32 v%d, s%d, v%d' % (vWC, sWD1, vWC))
        q('v_xor_b32 v%d, 32, v%d' % (vWD, vWC))
    q('s_mul_i32 s%d, s%d, %d' % (sT1, sW, 16 * 3072)); q('s_mul_i32 s%d, s%d, %d' % (sT2, sW, 16 * 3584))
    q('s_lshl_b32 s%d, s%d, 2' % (sWO0, sI)); q('s_add_u32 s%d, s%d, s%d' % (sWO0, sWO0, sW))
    q('s_mul_i32 s%d, s%d, %d' % (sHST1, sWO0, 112 * 1024))
    q('s_lshl_b32 s%d, s%d, 15' % (sPQ, sWO0)); q('s_add_u32 s%d, s%d, 0x%x' % (sPQ, sPQ, PQ_OFF))
    if role == 'AB':
        q('s_lshl_b32 s%d, s%d, 1' % (sU, sQD)); q('s_add_u32 s%d, s%d, s%d' % (sU, sU, sMEM))
        q('s_lshl_b32 s%d, s%d, 12' % (sKVP, sU)); q('s_add_u32 s%d, s%d, s%d' % (sPQ, sPQ, sKVP))
        q('s_lshl_b32 s%d, s%d, 2' % (sKVP, sU)); q('s_add_u32 s%d, s%d, s%d' % (sKVP, sKVP, sW)); q('s_lshl_b32 s%d, s%d, 15' % (sKVP, sKVP))
        q('s_lshl_b32 s%d, s%d, 11' % (sHST2, sI)); q('s_add_u32 s%d, s%d, s%d' % (sKVP, sKVP, sHST2)); q('s_add_u32 s%d, s%d, 0x%x' % (sKVP, sKVP, KVP_OFF))
        q('s_lshl_b32 s%d, s%d, 7' % (sT0, sU)); q('s_add_u32 s%d, s%d, s%d' % (sT0, sT0, sT1))
        q('s_add_u32 s%d, s%d, %d' % (sL[0], sT0, 1024)); q('s_add_u32 s%d, s%d, %d' % (sL[1], sT0, 1024 + 8 * 3072 - 1024))
        q('s_add_u32 s%d, s%d, %d' % (sL[2], sT0, 2048 - 2048)); q('s_add_u32 s%d, s%d, %d' % (sL[3], sT0, 2048 + 8 * 3072 - 3072))
        q('s_add_u32 s%d, s%d, %d' % (sL[4], sT0, 0)); q('s_add_u32 s%d, s%d, %d' % (sL[5], sT0, 8 * 3072 - 1024))
        q('s_mul_i32 s%d, s%d, 7' % (sT0, sQD)); q('s_add_u32 s%d, s%d, s%d' % (sT0, sT0, sMEM))
        q('s_lshl_b32 s%d, s%d, 12' % (sHST2, sT0)); q('s_add_u32 s%d, s%d, s%d' % (sHST2, sHST2, sHST1))
        q('s_lshl_b32 s%d, s%d, 7' % (sT0, sT0)); q('s_add_u32 s%d, s%d, s%d' % (sG2[0], sT0, sT2)); q('s_add_u32 s%d, s%d, %d' % (sG2[1], sG2[0], 8 * 3584 - 1024))
    else:
        q('s_mul_i32 s%d, s%d, 7' % (sT0, sQD)); q('s_sub_u32 s%d, s%d, 2' % (sT1, sMEM))
        q('s_mul_i32 s%d, s%d, 3' % (sL[5], sT1)); q('s_add_u32 s%d, s%d, s%d' % (sL[5], sL[5], sT0)); q('s_add_u32 s%d, s%d, 2' % (sL[5], sL[5]))
        q('s_add_u32 s%d, s%d, 4' % (sL[4], sT0))
        q('s_lshl_b32 s%d, s%d, 12' % (sHST1b, sL[4])); q('s_lshl_b32 s%d, s%d, 11' % (sL[3], sT1)); q('s_add_u32 s%d, s%d, s%d' % (sHST1b, sHST1b, sL[3]))
        q('s_add_u32 s%d, s%d, s%d' % (sHST1b, sHST1b, sHST1))
        q('s_lshl_b32 s%d, s%d, 12' % (sL[3], sL[5])); q('s_add_u32 s%d, s%d, 4096' % (sHST2, sL[3])); q('s_add_u32 s%d, s%d, s%d' % (sHST2, sHST2, sHST1))
        q('s_add_u32 s%d, s%d, s%d' % (sHST1, sHST1, sL[3]))
        q('s_lshl_b32 s%d, s%d, 7' % (sL[2], sL[4])); q('s_lshl_b32 s%d, s%d, 6' % (sT1, sT1)); q('s_add_u32 s%d, s%d, s%d' % (sL[2], sL[2], sT1))
        q('s_add_u32 s%d, s%d, s%d' % (sL[2], sL[2], sT2))
        q('s_lshl_b32 s%d, s%d, 7' % (sL[0], sL[5])); q('s_add_u32 s%d, s%d, s%d' % (sL[0], sL[0], sT2)); q('s_add_u32 s%d, s%d, %d' % (sL[1], sL[0], 8 * 3584 - 1024))
        q('s_add_u32 s%d, s%d, 128' % (sG2[0], sL[0])); q('s_add_u32 s%d, s%d, 128' % (sG2[1], sL[1]))
    q('s_mul_i32 s%d, s%d, %d' % (sWD0, sW, 448 * 1024)); q('s_lshl_b32 s%d, s%d, 7' % (sT0, sCT)); q('s_add_u32 s%d, s%d, s%d' % (sWD0, sWD0, sT0))
    q('s_and_b32 s%d, s%d, 3' % (sT1, sRT)); q('s_lshl_b32 s%d, s%d, 3' % (sT1, sT1)); q('s_sub_u32 s%d, 28, s%d' % (sW2WRAP, sT1))
    q('s_lshl_b32 s%d, s%d, 14' % (sT1, sT1)); q('v_add_u32 v%d, s%d, v%d' % (vD2, sT1, vD2))
    q('s_add_u32 s%d, s%d, %d' % (sWD1, sWD0, 8192 - 1024))
    q('s_lshl_b32 s%d, s%d, 17' % (sWO0, sW)); q('s_add_u32 s%d, s%d, s%d' % (sWO0, sWO0, sT0)); q('s_add_u32 s%d, s%d, %d' % (sWO1, sWO0, 8192 - 1024))

def setup_tr(p, role):
    q = p
    t0, t1, t2, t3, t4, u0, u1, t5 = [vT + 16 + i for i in range(8)]
    q('v_lshrrev_b32 v%d, 5, v%d' % (t5, vL)); q('v_lshlrev_b32 v%d, 3, v%d' % (t0, t5))
    q('v_bfe_u32 v%d, v%d, 2, 2' % (t1, vL)); q('v_add_u32 v%d, v%d, v%d' % (t0, t0, t1))
    q('v_lshl_add_u32 v%d, v%d, 2, v%d' % (t5, t5, t1))
    q('v_bfe_u32 v%d, v%d, 4, 1' % (t1, vL)); q('v_bfe_u32 v%d, v%d, 1, 1' % (t2, vL)); q('v_bfe_u32 v%d, v%d, 3, 1' % (t3, vL))
    q('v_and_b32 v%d, 1, v%d' % (t4, vL)); q('v_lshlrev_b32 v%d, 3, v%d' % (t4, t4))
    variants = {}
    names = (['q0', 'q1', 'm0', 'm1', 'm2', 'm3'] if role == 'AB' else ['m0', 'm1', 'm2', 'm3', 'h0', 'h1'])
    def qvar(dst, th, rowreg):
        q('v_lshl_add_u32 v%d, v%d, 1, v%d' % (u0, t1, t2))
        q('v_lshlrev_b32 v%d, 2, v%d' % (u1, t3)); q('v_xor_b32 v%d, %d, v%d' % (u1, 4 * th, u1)); q('v_add_u32 v%d, v%d, v%d' % (u0, u0, u1))
        q('v_lshl_add_u32 v%d, v%d, 4, v%d' % (u0, u0, t4)); q('v_lshl_add_u32 v%d, v%d, 7, v%d' % (dst, rowreg, u0))
    for vi, nm in enumerate(names):
        r0 = vTR + 2 * vi
        if nm[0] == 'q': qvar(r0, int(nm[1]), t0)
        elif nm[0] == 'm':
            tt = int(nm[1])
            q('v_add_u32 v%d, %d, v%d' % (u0, 2 * tt, t2))
            q('v_lshlrev_b32 v%d, 2, v%d' % (u1, t3)); q('v_xor_b32 v%d, v%d, v%d' % (u0, u0, u1))
            q('v_lshlrev_b32 v%d, 1, v%d' % (u1, t1)); q('v_xor_b32 v%d, v%d, v%d' % (u0, u0, u1))
            q('v_lshl_add_u32 v%d, v%d, 4, v%d' % (u0, u0, t4)); q('v_lshl_add_u32 v%d, v%d, 7, v%d' % (u0, t0, u0)); q('v_lshl_add_u32 v%d, v%d, 11, v%d' % (r0, t1, u0))
        else:
            tt = int(nm[1])
            q('v_add_u32 v%d, %d, v%d' % (u0, 2 * tt, t2))
            q('v_lshlrev_b32 v%d, 1, v%d' % (u1, t1)); q('v_xor_b32 v%d, v%d, v%d' % (u0, u0, u1))
            q('v_lshl_add_u32 v%d, v%d, 4, v%d' % (u0, u0, t4)); q('v_lshl_add_u32 v%d, v%d, 6, v%d' % (u0, t0, u0)); q('v_lshl_add_u32 v%d, v%d, 10, v%d' % (r0, t1, u0))
        q('v_add_u32 v%d, 0x10000, v%d' % (r0 + 1, r0))
        q('v_add_u32 v%d, 0x20000, v%d' % (ACC2 + vi, r0))
        variants[nm] = {0: r0, 1: r0 + 1, 2: ACC2 + vi}
    qvar(vS0, 0, t5); qvar(vS1, 1, t5)
    q('v_add_u32 v%d, s%d, v%d' % (vR0, sWB, vS0)); q('v_add_u32 v%d, s%d, v%d' % (vR1, sWB, vS1))
    q('v_add_u32 v%d, s%d, v%d' % (vS0, sS2, vS0)); q('v_add_u32 v%d, s%d, v%d' % (vS1, sS2, vS1))
    return variants

def dma_stage_items(p, role, Tg):
    toks = []; items = []
    base = 6144 * ((Tg - 1) % NRING)
    def ld(v, s, so, off): toks.append(p.vm('buffer_load_dwordx4 v%d, %s, s%d offen %slds' % (v, srd(s), so, ('offset:%d ' % off) if off else '')))
    def inc(step, wrap):
        p('s_cmp_eq_u32 s%d, %d' % (sWRAP, Tg & 7)); p('s_cselect_b32 s%d, s%d, s%d' % (sInc, wrap, step))
    adv = lambda v: p('v_add_u32 v%d, s%d, v%d' % (v, sInc, v))
    m0 = lambda off: p('s_add_u32 m0, s%d, %d' % ((sT2, off) if Tg == 0 else (sWB, base + off)))
    if Tg < 8 and role == 'AB':
        def f0(): m0(0); inc(sStepQ, sWrapQ); ld(vWA, S_WQ, sL[0], 0); ld(vWA, S_WQ, sL[1], 1024)
        def f1(): pass
        def f01(): f0(); ld(vWA, S_WQ, sL[2], 2048); ld(vWA, S_WQ, sL[3], 3072)
        def f2():
            m0(4096); p('s_nop 0'); ld(vWA, S_WQ, sL[4], 0); ld(vWA, S_WQ, sL[5], 1024)
            if Tg < 7: adv(vWA)
        items = [f01, f2]
    elif Tg < 8:
        def f0(): m0(0); inc(sStepG, sWrapG); ld(vWA, S_WG, sL[0], 0); ld(vWA, S_WG, sL[1], 1024); adv(vWA)
        def f1(): m0(2048); p('s_nop 0'); ld(vWB, S_WU, sL[0], 0); ld(vWB, S_WU, sL[1], 1024); adv(vWB)
        def f2():
            m0(4096); p('s_nop 0'); ld(vWC, S_WG, sL[2], 0)
            if Tg < 7: adv(vWC)
            m0(5120); p('s_nop 0'); ld(vWD, S_WU, sL[2], 0)
            if Tg < 7: adv(vWD)
        items = [f0, f1, f2]
    else:
        g, u = (vWB, vWC) if role == 'AB' else (vWA, vWB)
        def f0():
            m0(0); inc(sStepG, sWrapG); ld(g, S_WG, sG2[0], 0); ld(g, S_WG, sG2[1], 1024)
            if Tg < 15: adv(g)
        def f1():
            m0(2048); p('s_nop 0'); ld(u, S_WU, sG2[0], 0); ld(u, S_WU, sG2[1], 1024)
            if Tg < 15: adv(u)
        items = [f0, f1]
    return items, toks

def store_item(p, reg, soff, off, keep=None):
    def f():
        t = p.vm('buffer_store_dwordx4 v[%d:%d], v%d, %s, s%d offen %s%s' % (reg, reg + 3, vST, srd(S_WS), soff, ('offset:%d ' % off) if off else '', DST))
        if keep is not None: keep.append(t)
    return f

def norm_items(p, s, t):
    it = []
    for pr in range(2):
        r0, r1 = XF + 4 * s + 2 * pr, XF + 4 * s + 2 * pr + 1
        a0, a1, b0, b1 = t + 4 * pr, t + 4 * pr + 1, t + 4 * pr + 2, t + 4 * pr + 3
        seq = ['v_lshlrev_b32 v%d, 16, v%d' % (a0, r0), 'v_and_b32 v%d, s%d, v%d' % (a1, sMASK, r0),
               'v_lshlrev_b32 v%d, 16, v%d' % (b0, r1), 'v_and_b32 v%d, s%d, v%d' % (b1, sMASK, r1),
               'v_fma_f32 v%d, v%d, v%d, v%d' % (a0, a0, vRS, vNM), 'v_fma_f32 v%d, v%d, v%d, v%d' % (a1, a1, vRS, vNM),
               'v_fma_f32 v%d, v%d, v%d, v%d' % (b0, b0, vRS, vNM), 'v_fma_f32 v%d, v%d, v%d, v%d' % (b1, b1, vRS, vNM),
               'v_cvt_pk_bf16_f32 v%d, v%d, v%d' % (r0, a0, a1), 'v_cvt_pk_bf16_f32 v%d, v%d, v%d' % (r1, b0, b1)]
        it += [T(p, x) for x in seq]
    return it

def mlp_epi_items(p, acc, in_agpr, t, soff, off, keep=None):
    it = []
    if in_agpr:
        for half in range(2):
            rr = range(4 * half, 4 * half + 4)
            for r in rr: it.append(T(p, 'v_accvgpr_read_b32 v%d, a%d' % (t + (r & 3), acc + r)))
            for r in rr: it.append(T(p, 'v_accvgpr_read_b32 v%d, a%d' % (t + 4 + (r & 3), acc + 8 + r)))
            for r in rr: it.append(T(p, 'v_max_f32 v%d, 0, v%d' % (t + (r & 3), t + (r & 3))))
            for r in rr: it.append(T(p, 'v_mul_f32 v%d, v%d, v%d' % (t + (r & 3), t + (r & 3), t + 4 + (r & 3))))
            for q in range(2): it.append(T(p, 'v_cvt_pk_bf16_f32 v%d, v%d, v%d' % (t + 8 + 2 * half + q, t + 2 * q, t + 2 * q + 1)))
    else:
        for r in range(8): it.append(T(p, 'v_max_f32 v%d, 0, v%d' % (acc + r, acc + r)))
        for r in range(8): it.append(T(p, 'v_mul_f32 v%d, v%d, v%d' % (acc + r, acc + r, acc + 8 + r)))
        for q in range(4): it.append(T(p, 'v_cvt_pk_bf16_f32 v%d, v%d, v%d' % (t + 8 + q, acc + 2 * q, acc + 2 * q + 1)))
    it.append(store_item(p, t + 8, soff, off, keep))
    return it

def phi_items(p, acc, t, dst):
    it = []
    for half in range(2):
        rr = list(range(4 * half, 4 * half + 4))
        for r in rr: it.append(T(p, 'v_accvgpr_read_b32 v%d, a%d' % (t + (r & 3), acc + r)))
        for r in rr: it.append(T(p, 'v_mul_f32 v%d, s%d, v%d' % (t + 4 + (r & 3), sLOG2E, t + (r & 3))))
        for r in rr: it.append(T(p, 'v_exp_f32 v%d, v%d clamp' % (t + 4 + (r & 3), t + 4 + (r & 3))))
        for r in rr: it.append(T(p, 'v_max_f32 v%d, s%d, v%d' % (t + (r & 3), sEPS, t + (r & 3))))
        for r in rr: it.append(T(p, 'v_add_f32 v%d, v%d, v%d' % (t + (r & 3), t + (r & 3), t + 4 + (r & 3))))
        for q in range(2): it.append(T(p, 'v_cvt_pk_bf16_f32 v%d, v%d, v%d' % (dst + 2 * half + q, t + 2 * q, t + 2 * q + 1)))
    return it

def pack_items(p, acc, t, dst):
    it = []
    for half in range(2):
        rr = list(range(4 * half, 4 * half + 4))
        for r in rr: it.append(T(p, 'v_accvgpr_read_b32 v%d, a%d' % (t + (r & 3), acc + r)))
        for q in range(2): it.append(T(p, 'v_cvt_pk_bf16_f32 v%d, v%d, v%d' % (dst + 2 * half + q, t + 2 * q, t + 2 * q + 1)))
    return it

def emit_flag(p, base, idx_sgpr):
    p('s_lshl_b32 s%d, s%d, 7' % (sT0, idx_sgpr)); p('s_add_u32 s%d, s%d, 0x%x' % (sT0, sT0, base))
    p('v_mov_b32 v%d, s%d' % (vT + 4, sNONCE)); p('v_mov_b32 v%d, 0' % (vT + 5))
    p('s_mov_b64 s[%d:%d], exec' % (sEX, sEX + 1)); p('s_mov_b64 exec, 1')
    p('buffer_store_dword v%d, v%d, %s, s%d offen %s' % (vT + 4, vT + 5, srd(S_WS), sT0, ST))
    p('s_mov_b64 exec, s[%d:%d]' % (sEX, sEX + 1))

def uniform_flag(p, base, idx_sgpr):
    la = p.newlabel('L_fa')
    p('s_cmp_lg_u32 s%d, 0' % sW); p('s_cbranch_scc1 %s' % la)
    emit_flag(p, base, idx_sgpr)
    p.label(la)

def poll_issue(p, vaddr, soff, vdst):
    return p.vm('buffer_load_dword v%d, v%d, %s, s%d offen %s' % (vdst, vaddr, srd(S_WS), soff, LD))

def poll_check(p, tok, vaddr, soff, vdst):
    if tok is not None: p.wait(tok)
    l0, l1 = p.newlabel('L_pc'), p.newlabel('L_pcok')
    p('v_cmp_eq_u32 vcc, s%d, v%d' % (sNONCE, vdst)); p('s_nop 1'); p('s_cmp_eq_u64 vcc, -1'); p('s_cbranch_scc1 %s' % l1)
    p('s_mov_b32 s%d, 0' % sSPIN)
    p.label(l0)
    p('buffer_load_dword v%d, v%d, %s, s%d offen %s' % (vdst, vaddr, srd(S_WS), soff, LD))
    p('s_waitcnt vmcnt(0)')
    p('v_cmp_eq_u32 vcc, s%d, v%d' % (sNONCE, vdst)); p('s_nop 1'); p('s_cmp_eq_u64 vcc, -1'); p('s_cbranch_scc1 %s' % l1)
    p('s_sleep %d' % SLEEP)
    p('s_add_u32 s%d, s%d, 1' % (sSPIN, sSPIN)); p('s_cmp_lt_u32 s%d, 20000' % sSPIN); p('s_cbranch_scc1 %s' % l0)
    p.label(l1)

def epilogue1_items(p, role, free_oct, kvp_toks):
    t = vT + 8
    if role == 'CD':
        pre = []
        for j in range(6):
            soff, off = (sHST1, 1024 * j) if j < 4 else (sHST1b, 1024 * (j - 4))
            pre += mlp_epi_items(p, ACC1 + 16 * j, True, t + (j & 1) * 12, soff, off)
            pre.append(Mark(lambda j=j: free_oct.extend([('a', ACC1 + 16 * j), ('a', ACC1 + 16 * j + 8)])))
        return [pre]
    PK = vT + 16; VV = vT + 24; BS = vT + 32
    pre = []
    for pr in range(2):
        pre += phi_items(p, ACC1 + 16 * pr, t, PK) + phi_items(p, ACC1 + 16 * pr + 8, t, PK + 4)
        pre += pack_items(p, ACC1 + 32 + 16 * pr, t, VV) + pack_items(p, ACC1 + 32 + 16 * pr + 8, t, VV + 4)
        da = ACC1 + 16 * pr; db = ACC1 + 32 + 16 * pr
        for hb, (d, msk) in enumerate(((da, 0x0000ffff), (db, 0xffff0000))):
            pre.append(T(p, 's_mov_b32 vcc_lo, 0x%x' % msk)); pre.append(T(p, 's_mov_b32 vcc_hi, 0x%x' % msk))
            for r in range(8): pre.append(T(p, 'v_cndmask_b32 v%d, v%d, v%d, vcc' % (BS + r, vT + 7, VV + r)))
            pre.append(T(p, 's_nop 1'))
            pre.append(T(p, 'v_mfma_f32_32x32x16_bf16 a[%d:%d], v[%d:%d], v[%d:%d], 0' % (d, d + 15, PK, PK + 3, BS, BS + 3)))
            pre.append(T(p, 'v_mfma_f32_32x32x16_bf16 a[%d:%d], v[%d:%d], v[%d:%d], a[%d:%d]' % (d, d + 15, PK + 4, PK + 7, BS + 4, BS + 7, d, d + 15)))
    def qhead(pr, hb):
        dst = PK + 4 * hb
        return phi_items(p, ACC1 + 64 + 16 * pr + 8 * hb, t, dst) + [store_item(p, dst, sPQ, 1024 * (2 * pr + hb)), Mark(lambda: free_oct.append(('a', ACC1 + 64 + 16 * pr + 8 * hb)))]
    pre += qhead(0, 0)
    KA = vT + 6
    pre.append(T(p, 'v_add_u32 v%d, s%d, v%d' % (KA, sWB, vST)))
    for hd in range(4):
        pr, hb = hd >> 1, hd & 1
        src = (ACC1 + 16 * pr) if hb == 0 else (ACC1 + 32 + 16 * pr + 8)
        for q in range(2):
            pre.append(lambda src=src, q=q, hd=hd: p.last_ds_writes.append(p.lg('ds_write_b128 v%d, a[%d:%d] offset:%d' % (KA, src + 4 * q, src + 4 * q + 3, KVS[hd] + q * 1024))))
    pre.append(Mark(lambda: free_oct.extend([('a', ACC1 + 8 * k) for k in range(8)])))
    post = []
    RA = vT + 6; RB = vT + 5; rtok = []
    post.append(T(p, 's_mul_i32 s%d, s%d, 6144' % (sT0, sW))); post.append(T(p, 's_add_u32 s%d, s%d, 4096' % (sT0, sT0)))
    post.append(T(p, 'v_add_u32 v%d, s%d, v%d' % (RA, sT0, vST))); post.append(T(p, 'v_add_u32 v%d, 0x10000, v%d' % (RB, RA)))
    R = vT + 8
    def rd(wv, q, dst): return lambda: rtok.append(p.lg('ds_read_b128 v[%d:%d], v%d offset:%d' % (dst, dst + 3, RA if wv < 2 else RB, (wv & 1) * 32768 + q * 1024)))
    for wv in range(4):
        for q in range(2): post.append(rd(wv, q, R + 8 * wv + 4 * q))
    post.append(lambda: p.wait(rtok))
    for wv in (1, 2, 3):
        for r in range(8): post.append(T(p, 'v_add_f32 v%d, v%d, v%d' % (R + r, R + r, R + 8 * wv + r)))
    for q in range(2): post.append(store_item(p, R + 4 * q, sKVP, 1024 * q, kvp_toks))
    post.append(T(p, 's_nop 1'))
    rest = []
    for (pr, hb) in ((0, 1), (1, 0), (1, 1)): rest += qhead(pr, hb)
    return [pre, post + rest]

def interleave(p, mf, lists):
    n = len(mf); idx = [0] * len(lists)
    for j, m in enumerate(mf):
        for k, L in enumerate(lists):
            upto = (len(L) * (j + 1) + n - 1) // n
            while idx[k] < min(upto, len(L)):
                L[idx[k]](); idx[k] += 1
        m()

def touch_wo(p):
    a = vT + 30
    p('s_lshr_b32 s%d, s2, 3' % sT0); p('s_lshl_b32 s%d, s%d, 2' % (sT0, sT0)); p('s_add_u32 s%d, s%d, s%d' % (sT0, sT0, sW)); p('s_lshl_b32 s%d, s%d, 12' % (sT0, sT0))
    p('v_and_b32 v%d, 31, v%d' % (a, vL)); p('v_lshlrev_b32 v%d, 7, v%d' % (a, a))
    p.vm('buffer_load_dword v%d, v%d, %s, s%d offen' % (vT + 31, a, srd(S_WO), sT0))
def touch_g2(p):
    a = vT + 30
    p('s_and_b32 s%d, s%d, 7' % (sT0, sI)); p('s_lshl_b32 s%d, s%d, 2' % (sT0, sT0)); p('s_mul_i32 s%d, s%d, %d' % (sT0, sT0, 16 * 3584))
    p('s_add_u32 s%d, s%d, s%d' % (sT0, sT0, sG2[0]))
    p('v_and_b32 v%d, 15, v%d' % (a, vL)); p('v_mul_u32_u24 v%d, 3584, v%d' % (a, a))
    p.vm('buffer_load_dword v%d, v%d, %s, s%d offen' % (vT + 31, a, srd(S_WG), sT0))
    p.vm('buffer_load_dword v%d, v%d, %s, s%d offen' % (vT + 31, a, srd(S_WU), sT0))
def build_role(p, role):
    stok = {}
    kc1, kc2 = 250, (210 if role == 'AB' else 160)
    est = [0]
    for S in range(64): est.append(est[-1] + (kc1 if S < 32 else kc2))
    free_oct = [('a', b) for b in AOCT]
    NSL = 5
    W = dict(pos=0, loc={}, dtok={}, ttok={}, dS={}, slot_owner=[None] * NSL)
    RES = [(51, o) for o in (0, 2048, 4096)] + [(55, o) for o in (6144, 8192, 10240)] + [(59, o) for o in (12288, 14336, 16384)] + [(63, o) for o in (18432, 20480, 22528)] + [(64, o) for o in (24576, 26624, 28672)]
    res_next = [0]; wo_loc, wo_tok = {}, {}; wo_next = [0]
    cur_S = [0]
    def slot_info(sl):
        if sl == 0: return sWB, 30720, (vR0, vR1), 30720
        return sS2, 2048 * (sl - 1), (vS0, vS1), 2048 * (sl - 1)
    def wd_dma(pos, breg, off, pre=None):
        toks = W['dtok'].setdefault(pos, [])
        def f():
            if pre: p.wait(pre)
            p('s_add_u32 m0, s%d, %d' % (breg, off))
            if pos > 0 and pos % 4 == 0:
                p('s_mov_b32 s%d, 0x4000' % sT2); p('s_cmp_eq_u32 s%d, %d' % (sW2WRAP, pos)); p('s_cselect_b32 s%d, 0x%x, s%d' % (sT2, (-27 * 0x4000) & 0xffffffff, sT2))
                p('v_add_u32 v%d, s%d, v%d' % (vD2, sT2, vD2))
            elif pos > 0: p('v_add_u32 v%d, 0x4000, v%d' % (vD2, vD2))
            else: p('s_nop 0')
            toks.append(p.vm('buffer_load_dwordx4 v%d, %s, s%d offen lds' % (vD2, srd(S_WD), sWD0)))
            toks.append(p.vm('buffer_load_dwordx4 v%d, %s, s%d offen offset:1024 lds' % (vD2, srd(S_WD), sWD1)))
        return f
    def wo_dma(hh, breg, off, pre=None):
        toks = wo_tok.setdefault(hh, [])
        def f():
            if pre: p.wait(pre)
            p('s_add_u32 m0, s%d, %d' % (breg, off))
            if hh == 0:
                p('v_and_b32 v%d, 0x3fff, v%d' % (vD2, vD2))
            else: p('v_add_u32 v%d, 0x4000, v%d' % (vD2, vD2))
            toks.append(p.vm('buffer_load_dwordx4 v%d, %s, s%d offen lds' % (vD2, srd(S_WO), sWO0)))
            toks.append(p.vm('buffer_load_dwordx4 v%d, %s, s%d offen offset:1024 lds' % (vD2, srd(S_WO), sWO1)))
        return f
    def tr4_items(pos, regs, off, oc, store):
        it = []
        for nt, reg in enumerate(regs):
            for rd in range(2):
                b = oc[1] + 4 * nt + 2 * rd
                def f(b=b, reg=reg, o=off + 1024 * rd, first=(nt == 0 and rd == 0)):
                    if first: p.wait(W['dtok'][pos])
                    store.append(p.lg('ds_read_b64_tr_b16 %s[%d:%d], v%d offset:%d' % (oc[0], b, b + 1, reg, o)))
                it.append(f)
        return it
    def slot_free(sl):
        own = W['slot_owner'][sl]
        if sl >= 1 and cur_S[0] < 7: return False
        return own is None or (own >= 0 and W['loc'][own][0] == 'reg' and len(W['ttok'].get(own, [])) == 4)
    def next_w2_item(S):
        cur_S[0] = S
        pos = W['pos']
        if pos < 28:
            for sl in range(NSL):
                if slot_free(sl):
                    own = W['slot_owner'][sl]
                    pre = W['ttok'][own] if own is not None else None
                    breg, moff, _, _ = slot_info(sl)
                    W['slot_owner'][sl] = pos; W['loc'][pos] = ('stage', sl); W['dS'][pos] = S; W['pos'] += 1
                    return wd_dma(pos, breg, moff, pre)
            if res_next[0] < len(RES) and S >= RES[res_next[0]][0]:
                off = RES[res_next[0]][1]; res_next[0] += 1
                W['loc'][pos] = ('res', off); W['dS'][pos] = S; W['pos'] += 1
                return wd_dma(pos, sWB, off)
            return None
        if wo_next[0] < 8:
            for sl in range(NSL):
                if slot_free(sl):
                    own = W['slot_owner'][sl]
                    pre = W['ttok'][own] if own is not None else None
                    W['slot_owner'][sl] = -1
                    breg, moff, regs, toff = slot_info(sl)
                    hh = wo_next[0]; wo_next[0] += 1; wo_loc[hh] = (regs, toff)
                    return wo_dma(hh, breg, moff, pre)
            if res_next[0] < len(RES) and S >= RES[res_next[0]][0]:
                off = RES[res_next[0]][1]; res_next[0] += 1
                hh = wo_next[0]; wo_next[0] += 1; wo_loc[hh] = ((vR0, vR1), off)
                return wo_dma(hh, sWB, off)
        return None
    def staged_to_reg(S_now, force=False):
        cand = [q for q in sorted(W['loc']) if W['loc'][q][0] == 'stage']
        if not cand or not free_oct: return []
        st = cand[0]
        if len(W['dtok'].get(st, [])) != 2: return []
        if not force and est[max(S_now, 0)] < est[max(W['dS'][st], 0)] + LAT and W['dS'][st] >= 0: return []
        oc = free_oct.pop(0); sl = W['loc'][st][1]; W['loc'][st] = ('reg', oc)
        _, _, regs, toff = slot_info(sl)
        return tr4_items(st, regs, toff, oc, W['ttok'].setdefault(st, []))
    xit, xt = x_dma_items(p)
    q = Prog(); setup(q, role); variants = setup_tr(q, role)
    t = vT + 16
    q('v_and_b32 v%d, 31, v%d' % (t, vL)); q('v_lshrrev_b32 v%d, 5, v%d' % (t + 1, vL)); q('v_bfe_u32 v%d, v%d, 1, 3' % (t + 2, vL))
    q('v_xor_b32 v%d, v%d, v%d' % (t + 1, t + 1, t + 2))
    q('v_lshlrev_b32 v%d, 7, v%d' % (t, t)); q('v_add_u32 v%d, s%d, v%d' % (t, sWB, t))
    for ss in range(4):
        q('v_xor_b32 v%d, %d, v%d' % (t + 2, 2 * ss, t + 1)); q('v_lshl_add_u32 v%d, v%d, 4, v%d' % (vXA[ss], t + 2, t))
    if role == 'AB':
        q('v_mov_b32 v%d, s%d' % (t, sEPS))
        for r in range(16): q('v_accvgpr_write_b32 a%d, v%d' % (EPSB + r, t))
    su = [T(p, x) for x in q.ins]
    p('s_mov_b32 s%d, s%d' % (sSPIN, sHST2))
    for c in range(4): xit[c]()
    XR = vT + 8
    vS, vQ = vT + 4, vT + 5
    p.wait(p.xl)
    p.stamp(14)
    p('v_mov_b32 v%d, 0' % vS); p('v_mov_b32 v%d, 0' % vQ)
    for r in range(8):
        p('v_dot2_f32_bf16 v%d, v%d, s%d, v%d' % (vS, XR + r, sONES, vS)); p('v_dot2_f32_bf16 v%d, v%d, v%d, v%d' % (vQ, XR + r, XR + r, vQ))
    for sh in (8, 4, 2, 1):
        p('s_nop 1')
        p('v_add_f32_dpp v%d, v%d, v%d row_ror:%d row_mask:0xf bank_mask:0xf' % (vS, vS, vS, sh))
        p('v_add_f32_dpp v%d, v%d, v%d row_ror:%d row_mask:0xf bank_mask:0xf' % (vQ, vQ, vQ, sh))
    p('v_mov_b32 v%d, v%d' % (vT + 6, vS)); p('v_mov_b32 v%d, v%d' % (vT + 7, vQ)); p('s_nop 1')
    p('v_permlane16_swap_b32 v%d, v%d' % (vS, vT + 6)); p('v_permlane16_swap_b32 v%d, v%d' % (vQ, vT + 7)); p('s_nop 1')
    p('v_add_f32 v%d, v%d, v%d' % (vS, vS, vT + 6)); p('v_add_f32 v%d, v%d, v%d' % (vQ, vQ, vT + 7))
    p('v_mul_f32 v%d, 0x3b000000, v%d' % (vS, vS)); p('v_mul_f32 v%d, 0x3b000000, v%d' % (vQ, vQ))
    p('v_fma_f32 v%d, -v%d, v%d, v%d' % (vQ, vS, vS, vQ))
    p('v_max_f32 v%d, 0, v%d' % (vQ, vQ)); p('v_add_f32 v%d, 0x3727c5ac, v%d' % (vQ, vQ))
    p('v_rsq_f32 v%d, v%d' % (vQ, vQ)); p('s_nop 0')
    p('v_mul_f32 v%d, v%d, v%d' % (vS, vS, vQ)); p('v_sub_f32 v%d, 0, v%d' % (vS, vS))
    p.wait(p.nl)
    p('v_add_u32 v%d, 64, v%d' % (vT + 3, vT + 3)); p('v_or_b32 v%d, 1, v%d' % (vT + 3, vT + 3))
    G = vT + 16
    p('v_mov_b32 v%d, v%d' % (G, vQ)); p('v_mov_b32 v%d, v%d' % (G + 1, vS)); p('v_mov_b32 v%d, v%d' % (G + 2, vT + 3)); p('v_mov_b32 v%d, v%d' % (G + 3, vT + 3))
    p('v_lshrrev_b32 v%d, 5, v%d' % (vT + 6, vL)); p('v_lshlrev_b32 v%d, 4, v%d' % (vT + 6, vT + 6))
    p('v_readfirstlane_b32 s%d, v%d' % (sNONCE, vT + 3))
    p('s_mov_b64 s[%d:%d], exec' % (sEX, sEX + 1)); p('s_mov_b32 exec_lo, 1'); p('s_mov_b32 exec_hi, 1')
    p.vm('buffer_store_dwordx4 v[%d:%d], v%d, %s, s%d offen %s' % (G, G + 3, vT + 6, srd(S_WS), sSPIN, ST))
    p('s_mov_b64 exec, s[%d:%d]' % (sEX, sEX + 1))
    p.stamp(3)
    k = 0
    for c in range(4, 8):
        xit[c]()
        upto = (len(su) * (c - 3)) // 4
        while k < upto: su[k](); k += 1
    p('s_mul_i32 s%d, s%d, 6144' % (sT2, sW)); p('s_add_u32 s%d, s%d, %d' % (sT2, sT2, SPARE))
    it, stok[0] = dma_stage_items(p, role, 0)
    for f in it: f()
    GR = vT + 8; vGA = vT + 12
    p('v_and_b32 v%d, 31, v%d' % (vGA, vL)); p('v_lshlrev_b32 v%d, 4, v%d' % (vGA, vGA))
    p('s_lshr_b32 s%d, s%d, 6' % (sT1, sXB)); p('s_add_u32 s%d, s%d, 0x%x' % (sT1, sT1, STAT_OFF))
    p('s_mov_b32 s%d, s%d' % (sKX, sT1))
    gt = p.vm('buffer_load_dwordx4 v[%d:%d], v%d, %s, s%d offen %s' % (GR, GR + 3, vGA, srd(S_WS), sKX, LD))
    p.stamp(2)
    free_after = {1: 1, 2: 2}
    rt = {}
    for c in range(8):
        p.wait(xt[c])
        rt[c] = [p.lg('ds_read_b128 %s, v%d offset:%d' % (xf(4 * c + ss), vXA[ss], 4096 * c)) for ss in range(4)]
        if EARLY12 and c - 1 in free_after:
            p.wait(rt[c - 1])
            it, stok[free_after[c - 1]] = dma_stage_items(p, role, free_after[c - 1])
            for f in it: f()
    p.wait([t for c in range(8) for t in rt[c]])
    p.stamp(14)
    if not EARLY12:
        for Tg in (1, 2):
            it, stok[Tg] = dma_stage_items(p, role, Tg)
            for f in it: f()
    dmaq0 = []
    for Tg in range(3, NRING + 1):
        it, stok[Tg] = dma_stage_items(p, role, Tg); dmaq0 += it
    p.wait(gt)
    l0, l1 = p.newlabel('L_g'), p.newlabel('L_gok')
    p('s_mov_b32 s%d, 0' % sSPIN)
    p.label(l0)
    p('v_cmp_eq_u32 vcc, s%d, v%d' % (sNONCE, GR + 2)); p('s_nop 1'); p('s_cmp_eq_u64 vcc, -1'); p('s_cbranch_scc1 %s' % l1)
    p('s_sleep 2')
    p('buffer_load_dwordx4 v[%d:%d], v%d, %s, s%d offen %s' % (GR, GR + 3, vGA, srd(S_WS), sKX, LD)); p('s_waitcnt vmcnt(0)')
    p('s_add_u32 s%d, s%d, 1' % (sSPIN, sSPIN)); p('s_cmp_lt_u32 s%d, 20000' % sSPIN); p('s_cbranch_scc1 %s' % l0)
    p.label(l1)
    p('v_mov_b32 v%d, v%d' % (vRS, GR)); p('v_mov_b32 v%d, v%d' % (vNM, GR + 1))
    p.stamp(15)
    for f in norm_items(p, 0, vT): f()
    p.wait(stok[0]); p('s_barrier')
    p.stamp(4)
    ftok = {}
    for f in tr_items(p, role, 0, variants, ftok): f()
    kvp_toks = []
    p.last_ds_writes = []
    phases = epilogue1_items(p, role, free_oct, kvp_toks)
    st = dict(cur=0, done=-1, kvp_S=0, flagged=False)
    dmaq = dmaq0
    for S in range(64):
        grp = 1 if S < 32 else 2
        tl = tiles_of(role, grp); G = len(tl); s = S & 31
        def mk(j, S=S, s=s, tl=tl, G=G, grp=grp):
            var, lo, rds, sw = tl[j]
            b = wf(S, j, G); Wr = 'a[%d:%d]' % (b, b + 3)
            if grp == 1: d = 'a[%d:%d]' % (ACC1 + 16 * j, ACC1 + 16 * j + 15)
            else: d = 'v[%d:%d]' % (ACC2 + 16 * j, ACC2 + 16 * j + 15)
            c0 = '0'
            if grp == 1 and role == 'AB' and j in (0, 1, 4, 5): c0 = 'a[%d:%d]' % (EPSB, EPSB + 15)
            c = c0 if s == 0 else d
            A, B = (xf(s), Wr) if sw else (Wr, xf(s))
            def f():
                h = G // 2
                tk = []
                if j % h == 0: tk += [t for jj in range(j, j + h) for t in ftok[(S, jj)]]
                p.wait(tk)
                p('v_mfma_f32_32x32x16_bf16 %s, %s, %s, %s' % (d, A, B, c))
            return f
        mf = [mk(j) for j in range(G)]
        if S == 32: p.stamp(5)
        p.stamp(100 + S)
        if S == 1: free_oct.extend([('a', EPSB), ('a', EPSB + 8)])
        if S == 33: free_oct.extend([('a', WF + 32), ('a', WF + 40)])
        def barrier_block(S=S):
            Tn = (S + 2) >> 2
            toks = list(stok[Tn]) if Tn <= 15 else []
            flag_kvp = (role == 'AB' and len(kvp_toks) == 2 and not st['flagged'] and est[S] >= est[st['kvp_S']] + 1300)
            if flag_kvp: toks += kvp_toks
            adv_phase = (st['done'] >= 0 and st['done'] < S and st['cur'] + 1 < len(phases))
            if adv_phase: toks += p.last_ds_writes
            p.wait(toks)
            p('s_barrier')
            if adv_phase: st['cur'] += 1; st['done'] = -1
            if flag_kvp:
                p('s_lshl_b32 s%d, s%d, 4' % (sT1, sU)); p('s_add_u32 s%d, s%d, s%d' % (sT1, sT1, sI))
                uniform_flag(p, FLG_KVP, sT1); st['flagged'] = True
            Td = (S >> 2) - 1 + NRING
            if NRING + 1 <= Td <= 15:
                it, stok[Td] = dma_stage_items(p, role, Td); dmaq.extend(it)
        mf[0]()
        L_tr = tr_items(p, role, S + 1, variants, ftok) if S + 1 < 64 else []
        L_misc = norm_items(p, s + 1, vT) if (grp == 1 and s + 1 < 32) else []
        if TOUCH and S == 5: L_misc = L_misc + [lambda: touch_g2(p)]
        if TOUCH and S == 9: L_misc = L_misc + [lambda: touch_wo(p)]
        if S == 31 and role == 'AB': L_misc = [T(p, 'v_mov_b32 v%d, s%d' % (vT + 7, sONES))]
        L_dma = []
        if dmaq: L_dma.append(dmaq.pop(0))
        if dmaq and len(dmaq) > 3: L_dma.append(dmaq.pop(0))
        if (len(L_dma) < 1 or ((grp == 1) or S >= 48) and len(L_dma) < 2):
            f = next_w2_item(S)
            if f is not None: L_dma.append(f)
        L_w2tr = staged_to_reg(S)
        L_epi = []
        if grp == 2 and st['cur'] < len(phases) and phases[st['cur']]:
            ph = phases[st['cur']]
            last = (45 if st['cur'] == 0 else 62) if role == 'AB' else 50
            left = max(1, last - S + 1)
            n = (len(ph) + left - 1) // left
            L_epi = ph[:n]; del ph[:n]
            if not ph: st['done'] = S
            if role == 'AB' and st['cur'] == 1 and len(kvp_toks) < 2: st['kvp_S'] = S
        Ls = [L_tr, L_misc, L_epi, L_w2tr, L_dma]
        if S % 4 == 2:
            h = G // 2
            part = lambda L, lo, hi, n: L[(len(L) * lo) // n:(len(L) * hi) // n]
            interleave(p, mf[1:h + 1], [part(L, 0, h, G - 1) for L in Ls])
            barrier_block()
            interleave(p, mf[h + 1:], [part(L, h, G - 1, G - 1) for L in Ls])
        else:
            interleave(p, mf[1:], Ls)
    for ph in phases: assert not ph, len(ph)
    assert not dmaq
    if role == 'AB': assert st['flagged']
    p.stamp(6)
    p('s_nop 7'); p('s_nop 3')
    hst = []
    for j in range(4):
        for f in mlp_epi_items(p, ACC2 + 16 * j, False, vT + 12 * (j & 1), sHST2, 1024 * j, hst): f()
    p.stamp(7)
    p.c('W2 state: pos=%d wo=%d loc=%s' % (W['pos'], wo_next[0], sorted(W['loc'].items())))
    return dict(W=W, free_oct=free_oct, wo_loc=wo_loc, wo_tok=wo_tok, hst=hst, next_w2_item=next_w2_item, tr4_items=tr4_items, slot_info=slot_info, staged_to_reg=staged_to_reg)

def phase2(p, role, info):
    W, free_oct = info['W'], info['free_oct']
    sH0, sH1, sPQ0, sPQ1, sKZ, sF = sL[0], sL[1], sL[2], sL[3], sL[4], sL[5]
    p.wait(info['hst'][-1]); p('s_barrier')
    p('s_lshl_b32 s%d, s%d, 4' % (sT1, sI)); p('s_add_u32 s%d, s%d, s%d' % (sT1, sT1, sC))
    uniform_flag(p, FLG_H, sT1)
    p.stamp(8)
    while True:
        f = info['next_w2_item'](64)
        if f is None:
            if W['pos'] == 28 and len(info['wo_loc']) == 8: break
            it = info['staged_to_reg'](64, force=True)
            if not it: break
            for g in it: g()
            continue
        f()
    if not (W['pos'] == 28 and len(info['wo_loc']) == 8):
        print(W['loc'], W['slot_owner'], info['wo_loc']); raise SystemExit('W2 overflow')
    vPH, vPZ, vPD = vT + 16, vT + 17, vT + 18
    p('v_and_b32 v%d, 3, v%d' % (vPH, vL)); p('v_lshlrev_b32 v%d, 7, v%d' % (vPH, vPH))
    p('s_lshr_b32 s%d, s%d, 1' % (sT0, sRT)); p('s_lshl_b32 s%d, s%d, 4' % (sT0, sT0)); p('s_lshl_b32 s%d, s%d, 2' % (sT1, sW)); p('s_add_u32 s%d, s%d, s%d' % (sT0, sT0, sT1))
    p('s_lshl_b32 s%d, s%d, 7' % (sT0, sT0)); p('s_add_u32 s%d, s%d, 0x%x' % (sG2[0], sT0, FLG_H))
    p('v_and_b32 v%d, 31, v%d' % (vPZ, vL)); p('v_lshlrev_b32 v%d, 7, v%d' % (vPZ, vPZ))
    p('s_lshl_b32 s%d, s%d, 12' % (sG2[1], sW)); p('s_add_u32 s%d, s%d, 0x%x' % (sG2[1], sG2[1], FLG_KVZ))
    p('s_mul_i32 s%d, s%d, %d' % (sH0, sRT, 2 * 112 * 1024)); p('s_mul_i32 s%d, s%d, %d' % (sT0, sW, 28 * 1024)); p('s_add_u32 s%d, s%d, s%d' % (sH0, sH0, sT0))
    p('s_and_b32 s%d, s%d, 3' % (sT0, sRT)); p('s_lshl_b32 s%d, s%d, 13' % (sT0, sT0)); p('s_add_u32 s%d, s%d, s%d' % (sH0, sH0, sT0))
    p('s_add_u32 s%d, s%d, %d' % (sH1, sH0, 112 * 1024))
    p('s_lshl_b32 s%d, s%d, 16' % (sPQ0, sRT)); p('s_lshl_b32 s%d, s%d, 13' % (sT0, sW)); p('s_add_u32 s%d, s%d, s%d' % (sPQ0, sPQ0, sT0)); p('s_add_u32 s%d, s%d, 0x%x' % (sPQ0, sPQ0, PQ_OFF))
    p('s_add_u32 s%d, s%d, 32768' % (sPQ1, sPQ0))
    p('s_add_u32 s%d, s%d, 0x%x' % (sKZ, sT0, KVZ_OFF))
    KR = vT + 8
    if role == 'CD':
        p('s_lshl_b32 s%d, s%d, 1' % (sU, sQD)); p('s_add_u32 s%d, s%d, s%d' % (sU, sU, sMEM)); p('s_sub_u32 s%d, s%d, 2' % (sU, sU))
        p('v_and_b32 v%d, 15, v%d' % (vT + 6, vL)); p('v_lshlrev_b32 v%d, 7, v%d' % (vT + 6, vT + 6))
        p('s_lshl_b32 s%d, s%d, 11' % (sF, sU)); p('s_add_u32 s%d, s%d, 0x%x' % (sF, sF, FLG_KVP))
        lw = p.newlabel('L_kp')
        p('s_cmp_lg_u32 s%d, 0' % sW); p('s_cbranch_scc1 %s' % lw)
        n_before = (p.vm_issued, p.vm_done)
        p('s_waitcnt vmcnt(0)')
        p('buffer_load_dword v%d, v%d, %s, s%d offen %s' % (vPD, vT + 6, srd(S_WS), sF, LD)); p('s_waitcnt vmcnt(0)')
        poll_check(p, None, vT + 6, sF, vPD)
        p.label(lw)
        p('s_barrier')
        p('v_lshrrev_b32 v%d, 3, v%d' % (vT + 6, vL)); p('v_lshlrev_b32 v%d, 12, v%d' % (vT + 6, vT + 6))
        p('v_bfe_u32 v%d, v%d, 2, 1' % (vT + 7, vL)); p('v_lshl_add_u32 v%d, v%d, 10, v%d' % (vT + 6, vT + 7, vT + 6))
        p('v_and_b32 v%d, 3, v%d' % (vT + 7, vL)); p('v_lshl_add_u32 v%d, v%d, 4, v%d' % (vT + 6, vT + 7, vT + 6))
        p('s_lshl_b32 s%d, s%d, 2' % (sF, sU)); p('s_add_u32 s%d, s%d, s%d' % (sF, sF, sW))
        p('s_lshl_b32 s%d, s%d, 15' % (sT0, sF)); p('s_lshl_b32 s%d, s%d, 6' % (sT1, sI)); p('s_add_u32 s%d, s%d, s%d' % (sT0, sT0, sT1)); p('s_add_u32 s%d, s%d, 0x%x' % (sT0, sT0, KVP_OFF))
        krt = [p.vm('buffer_load_dwordx4 v[%d:%d], v%d, %s, s%d offen %s%s' % (KR + 4 * k, KR + 4 * k + 3, vT + 6, srd(S_WS), sT0, 'offset:2048 ' if k else '', LD)) for k in range(2)]
        p.wait(krt)
        for r in range(4): p('v_add_f32 v%d, v%d, v%d' % (KR + r, KR + r, KR + 4 + r))
        for r in range(4): p('v_mov_b32 v%d, v%d' % (KR + 4 + r, KR + r))
        p('s_nop 1')
        for r in range(4): p('v_permlane32_swap_b32 v%d, v%d' % (KR + r, KR + 4 + r))
        p('s_nop 1')
        for r in range(4): p('v_add_f32 v%d, v%d, v%d' % (KR + r, KR + r, KR + 4 + r))
        for r in range(4): p('v_mov_b32 v%d, v%d' % (KR + 4 + r, KR + r))
        p('s_nop 1')
        for r in range(4): p('v_permlane16_swap_b32 v%d, v%d' % (KR + r, KR + 4 + r))
        p('s_nop 1')
        for r in range(4): p('v_add_f32 v%d, v%d, v%d' % (KR + r, KR + r, KR + 4 + r))
        p('s_nop 1')
        for r in range(4): p('v_add_f32_dpp v%d, v%d, v%d row_ror:8 row_mask:0xf bank_mask:0xf' % (KR + 4 + r, KR + r, KR + r))
        p('v_cvt_pk_bf16_f32 v%d, v%d, v%d' % (KR, KR + 4, KR + 5)); p('v_cvt_pk_bf16_f32 v%d, v%d, v%d' % (KR + 1, KR + 6, KR + 7))
        p('v_and_b32 v%d, 3, v%d' % (vT + 7, vL)); p('v_lshlrev_b32 v%d, 4, v%d' % (vT + 6, vT + 7))
        p('v_bfe_u32 v%d, v%d, 2, 1' % (vT + 7, vL)); p('v_lshl_add_u32 v%d, v%d, 3, v%d' % (vT + 6, vT + 7, vT + 6))
        p('s_lshl_b32 s%d, s%d, 10' % (sT0, sF)); p('s_lshl_b32 s%d, s%d, 6' % (sT1, sI)); p('s_add_u32 s%d, s%d, s%d' % (sT0, sT0, sT1)); p('s_add_u32 s%d, s%d, 0x%x' % (sT0, sT0, KVZ_OFF))
        p('s_mov_b64 s[%d:%d], exec' % (sEX, sEX + 1)); p('s_mov_b64 exec, 0xff')
        kzs = p.vm('buffer_store_dwordx2 v[%d:%d], v%d, %s, s%d offen %s' % (KR, KR + 1, vT + 6, srd(S_WS), sT0, ST))
        p('s_mov_b64 exec, s[%d:%d]' % (sEX, sEX + 1))
        p.wait(kzs); p('s_barrier')
        p('s_lshl_b32 s%d, s%d, 4' % (sT1, sU)); p('s_add_u32 s%d, s%d, s%d' % (sT1, sT1, sI))
        uniform_flag(p, FLG_KVZ, sT1)
    def to_reg(pos):
        kind, where = W['loc'][pos]
        oc = free_oct.pop(0)
        if kind == 'stage': _, _, regs, off = info['slot_info'](where)
        else: regs, off = (vR0, vR1), where
        W['loc'][pos] = ('reg', oc)
        for f in info['tr4_items'](pos, regs, off, oc, W['ttok'].setdefault(pos, [])): f()
    tk = poll_issue(p, vPH, sG2[0], vPD); poll_check(p, tk, vPH, sG2[0], vPD)
    p.stamp(9)
    NR = 16; ht = {}
    def hb(j, mt): return XF + 8 * (j % NR) + 4 * mt
    def ld_h(j):
        ht[j] = []
        for mt, so in enumerate((sH0, sH1)):
            r = hb(j, mt)
            ht[j].append(p.vm('buffer_load_dwordx4 v[%d:%d], v%d, %s, s%d offen %s%s' % (r, r + 3, vST, srd(S_WS), so, ('offset:%d ' % (1024 * (j & 3))) if j & 3 else '', LD)))
        if j & 3 == 3 and j < 27:
            p('s_movk_i32 s%d, 4096' % sT2); p('s_cmp_eq_u32 s%d, %d' % (sW2WRAP, j + 1)); p('s_cselect_b32 s%d, 0x%x, s%d' % (sT2, (4096 - 28 * 1024) & 0xffffffff, sT2))
            p('s_add_u32 s%d, s%d, s%d' % (sH0, sH0, sT2)); p('s_add_u32 s%d, s%d, s%d' % (sH1, sH1, sT2))
    for j in range(NR): ld_h(j)
    for pos in range(28):
        if W['loc'][pos][0] != 'reg': to_reg(pos)
    ACC = ACC2
    PQR, KZR = XF, XF + 96
    ND = vT + 0
    pqt, kzt = {}, {}
    XR = vT + 24; ga = vT + 22; zt = None
    for j in range(28):
        p.wait(ht[j] + W['ttok'][j])
        oc = W['loc'][j][1]
        for nt in range(2):
            for mt in range(2):
                d = ACC + 16 * (2 * nt + mt); r = hb(j, mt)
                p('v_mfma_f32_32x32x16_bf16 v[%d:%d], %s[%d:%d], v[%d:%d], %s' % (d, d + 15, oc[0], oc[1] + 4 * nt, oc[1] + 4 * nt + 3, r, r + 3, '0' if j == 0 else 'v[%d:%d]' % (d, d + 15)))
        if j + NR < 28: ld_h(j + NR)
        if 16 <= j < 24:
            hh = j - 16
            for mt, so in enumerate((sPQ0, sPQ1)):
                r = PQR + 8 * hh + 4 * mt
                pqt[(hh, mt)] = p.vm('buffer_load_dwordx4 v[%d:%d], v%d, %s, s%d offen %s%s' % (r, r + 3, vST, srd(S_WS), so, ('offset:%d ' % (1024 * (hh & 3))) if hh & 3 else '', LD))
            if hh == 3: p('s_add_u32 s%d, s%d, 4096' % (sPQ0, sPQ0)); p('s_add_u32 s%d, s%d, 4096' % (sPQ1, sPQ1))
        if j == 12: zt = poll_issue(p, vPZ, sG2[1], vPD)
        if j == 16:
            poll_check(p, zt, vPZ, sG2[1], vPD)
            for hh in range(8):
                kzt[hh] = p.vm('buffer_load_dwordx4 v[%d:%d], v%d, %s, s%d offen %s%s' % (KZR + 4 * hh, KZR + 4 * hh + 3, vST, srd(S_WS), sKZ, ('offset:%d ' % (1024 * (hh & 3))) if hh & 3 else '', LD))
                if hh == 3: p('s_add_u32 s%d, s%d, 4096' % (sKZ, sKZ))
        if j == 20:
            p('v_lshrrev_b32 v%d, 3, v0' % ga); p('v_lshlrev_b32 v%d, 10, v%d' % (ga, ga))
            p('v_and_b32 v%d, 7, v0' % (vT + 23)); p('v_lshl_add_u32 v%d, v%d, 4, v%d' % (ga, vT + 23, ga))
            p('s_lshl_b32 s%d, s%d, 16' % (sHST1, sRT)); p('s_lshl_b32 s%d, s%d, 7' % (sT1, sCT)); p('s_add_u32 s%d, s%d, s%d' % (sHST1, sHST1, sT1))
            p('s_add_u32 s%d, s%d, 32768' % (sHST2, sHST1))
            xt = [p.vm('buffer_load_dwordx4 v[%d:%d], v%d, %s, s%d offen' % (XR + 4 * k, XR + 4 * k + 3, ga, srd(S_X), (sHST1, sHST2)[k])) for k in range(2)]
    p.stamp(10)
    ND = XF + 64
    wfr = {}
    FBS = [0, 8, 16]
    def wo_tr(hh):
        p.wait(info['wo_tok'][hh]); t = []
        fb = FBS[hh % 3]; regs, off = info['wo_loc'][hh]
        for nt, reg in enumerate(regs):
            for rd in range(2):
                b = fb + 4 * nt + 2 * rd
                t.append(p.lg('ds_read_b64_tr_b16 a[%d:%d], v%d offset:%d' % (b, b + 1, reg, off + 1024 * rd)))
        wfr[hh] = t
    def nd_mfma(u):
        hh, mt = u >> 1, u & 1; d = ND + 16 * (u & 1)
        p.wait([kzt[hh], pqt[(hh, mt)]])
        p('v_mfma_f32_32x32x16_bf16 v[%d:%d], v[%d:%d], v[%d:%d], 0' % (d, d + 15, KZR + 4 * hh, KZR + 4 * hh + 3, PQR + 8 * hh + 4 * mt, PQR + 8 * hh + 4 * mt + 3))
    def o_valu(u):
        hh = u >> 1; d = ND + 16 * (u & 1)
        num, den = (d, d + 8) if hh % 2 == 0 else (d + 8, d)
        t = vT + 8 * (u & 1)
        p('v_add_f32 v%d, s%d, v%d' % (t + 4, sEPS, den)); p('v_rcp_f32 v%d, v%d' % (t + 4, t + 4)); p('s_nop 0')
        for r in range(8): p('v_mul_f32 v%d, v%d, v%d' % (num + r, num + r, t + 4))
        for q in range(4): p('v_cvt_pk_bf16_f32 v%d, v%d, v%d' % (t + q, num + 2 * q, num + 2 * q + 1))
    def wo_mfma(u):
        hh, mt = u >> 1, u & 1
        p.wait(wfr[hh])
        fb = FBS[hh % 3]; t = vT + 8 * (u & 1)
        for nt in range(2):
            d = ACC + 16 * (2 * nt + mt)
            p('v_mfma_f32_32x32x16_bf16 v[%d:%d], a[%d:%d], v[%d:%d], v[%d:%d]' % (d, d + 15, fb + 4 * nt, fb + 4 * nt + 3, t, t + 3, d, d + 15))
    p('s_nop 3')
    wo_tr(0); wo_tr(1)
    nd_mfma(0); nd_mfma(1)
    for u in range(16):
        o_valu(u)
        if u + 2 < 16: nd_mfma(u + 2)
        if u % 2 == 0 and (u >> 1) + 2 < 8: wo_tr((u >> 1) + 2)
        wo_mfma(u)
    p.stamp(11)
    p.wait_all(vm=False); p('s_barrier')
    wa = vT
    p('v_and_b32 v%d, 31, v%d' % (wa, vL)); p('v_mul_u32_u24 v%d, 272, v%d' % (wa, wa))
    p('v_lshrrev_b32 v%d, 5, v%d' % (wa + 1, vL)); p('v_lshl_add_u32 v%d, v%d, 4, v%d' % (wa, wa + 1, wa))
    p('s_mul_i32 s%d, s%d, 17408' % (sT0, sW)); p('v_add_u32 v%d, s%d, v%d' % (wa, sT0, wa))
    ra = vT + 2
    p('v_lshrrev_b32 v%d, 3, v0' % ra); p('v_mul_u32_u24 v%d, 272, v%d' % (ra, ra))
    p('v_and_b32 v%d, 7, v0' % (vT + 3)); p('v_lshl_add_u32 v%d, v%d, 5, v%d' % (ra, vT + 3, ra))
    p('s_nop 3')
    for mt in range(2):
        for nt in range(2):
            for q in range(4):
                r = ACC + 16 * (2 * nt + mt) + 4 * q
                p.lg('ds_write_b128 v%d, v[%d:%d] offset:%d' % (wa, r, r + 3, mt * 8704 + nt * 128 + q * 32))
    p.wait_all(vm=False); p('s_barrier')
    R = XF; rt = {}
    for j in range(2):
        for wv in range(4):
            for hh in range(2):
                r = R + 32 * j + 8 * wv + 4 * hh
                rt[(j, wv, hh)] = p.lg('ds_read_b128 v[%d:%d], v%d offset:%d' % (r, r + 3, ra, wv * 17408 + j * 8704 + hh * 16))
    for j in range(2):
        p.wait([rt[(j, wv, hh)] for wv in range(4) for hh in range(2)])
        b = R + 32 * j
        for r in range(8): p('v_add_f32 v%d, v%d, v%d' % (b + r, b + r, b + 8 + r))
        for r in range(8): p('v_add_f32 v%d, v%d, v%d' % (b + 16 + r, b + 16 + r, b + 24 + r))
        for r in range(8): p('v_add_f32 v%d, v%d, v%d' % (b + r, b + r, b + 16 + r))
        p.wait(xt[j])
        t = vT + 16
        for q in range(4):
            x = XR + 4 * j + q
            p('v_lshlrev_b32 v%d, 16, v%d' % (t, x)); p('v_and_b32 v%d, 0xffff0000, v%d' % (t + 1, x))
            p('v_add_f32 v%d, v%d, v%d' % (b + 2 * q, b + 2 * q, t)); p('v_add_f32 v%d, v%d, v%d' % (b + 2 * q + 1, b + 2 * q + 1, t + 1))
            p('v_cvt_pk_bf16_f32 v%d, v%d, v%d' % (x, b + 2 * q, b + 2 * q + 1))
        p.vm('buffer_store_dwordx4 v[%d:%d], v%d, %s, s%d offen' % (XR + 4 * j, XR + 4 * j + 3, ga, srd(S_OUT), (sHST1, sHST2)[j]))
    la = p.newlabel('L_ns')
    p('s_or_b32 s%d, s2, s%d' % (sT1, sW)); p('s_cmp_lg_u32 s%d, 0' % sT1); p('s_cbranch_scc1 %s' % la)
    p('s_barrier') if False else None
    p('v_mov_b32 v%d, s%d' % (vT + 4, sNONCE)); p('v_mov_b32 v%d, 0' % (vT + 5)); p('s_mov_b32 s%d, 0x%x' % (sT1, NONCE_OFF))
    p('s_mov_b64 exec, 1')
    p('buffer_store_dword v%d, v%d, %s, s%d offen %s' % (vT + 4, vT + 5, srd(S_WS), sT1, ST))
    p.label(la)
    p.stamp(12)
    if p.stamps_on:
        p('s_mov_b64 exec, -1')
        p('s_waitcnt vmcnt(0)'); p.stamp_rt(13)
        p.stamp_dump(srd(S_WS), 0x8000000, 14)

def build(stamps=None):
    p = Prog(); p.stamps_on = stamps is not None
    if stamps: p.stamp_map = {i: k for k, i in enumerate(stamps)}
    p('s_cmp_ge_u32 s2, 256'); p('s_cbranch_scc1 L_end')
    prologue(p)
    pro = list(p.ins)
    st = (p.vm_issued, p.vm_done, p.lg_issued, p.lg_done)
    paths = {}
    for role in ('AB', 'CD'):
        p.vm_issued, p.vm_done, p.lg_issued, p.lg_done = st
        n0 = len(p.ins)
        info = build_role(p, role)
        phase2(p, role, info)
        paths[role] = p.ins[n0:]
    probs = []
    head = pro + ['s_cmp_ge_u32 s%d, 2' % sMEM, 's_cbranch_scc1 L_cd']
    out = list(head)
    for role in ('AB', 'CD'):
        fixed, n = fix_hazards(head + paths[role])
        assert fixed[:len(head)] == head, 'hazard in prologue'
        body = fixed[len(head):]
        print(role, 'auto-inserted wait states:', n, 'instrs', len(body))
        probs += check_hazards(head + body, role) + check_waits(head + body, 'w' + role)
        if role == 'CD': out.append('L_cd:')
        out += body
        if role == 'AB': out.append('s_branch L_end')
        paths[role] = body
    out.append('L_end:')
    p.ins = out
    return p, probs, paths

if __name__ == '__main__':
    sys.path.insert(0, 'dev')
    from asmlib import make_file
    stamps = [int(x) for x in sys.argv[2].split(',')] if len(sys.argv) > 2 else None
    p, probs, paths = build(stamps)
    for x in probs[:30]: print(x)
    for l in p.ins:
        if l.startswith('; W2 state'): print(l[:700])
    print('problems:', len(probs), 'regs', maxregs(p.ins), 'n', len(p.ins))
    ks = [dict(name=NAME, body=p.text(), grid=(256, 1, 1), block=(256, 1, 1), lds=163840, vgpr=512, accum=256, sgpr=102)]
    open(sys.argv[1], 'w').write(make_file(ks, single=True))
```

```python
import sys, os
from fw import *

NAME = 'parallel_sum__linear_attn_block__glu_gated_reglu__prompt_kernel'
H_OFF, PQ_OFF, KVP_OFF, KVZ_OFF, STAT_OFF = 0x0, 0x800000, 0xA00000, 0xB00000, 0xD00000
FLG_H, FLG_KVP, FLG_KVZ, NONCE_OFF = 0xC00000, 0xC10000, 0xC20000, 0xC30000
WS_BYTES = 268435456
SPARE = 131072
ST = 'sc1'; LD = 'sc1'; DST = 'sc1'
TOUCH = int(os.environ.get('TOUCH', '1'))
NRING = 5
LAT = int(os.environ.get('LAT', '2600'))
SLEEP = 6
TCODE = int(os.environ.get('TCODE', '1'))
ROTMODE = int(os.environ.get('ROTMODE', '1'))
EARLY12 = int(os.environ.get('EARLY12', '0'))

S_X, S_WQ, S_WG, S_WU, S_WS, S_WD, S_WO, S_OUT = 4, 8, 12, 16, 20, 24, 28, 32
sW, sI, sMEM, sQD, sWB = 36, 37, 38, 39, 40
sLOG2E, sEPS, sONES = 41, 42, 43
sL = [44, 45, 46, 47, 48, 49]
sG2 = [50, 51]
sHST1, sHST1b, sHST2, sPQ, sKVP = 52, 53, 54, 55, 56
sT0, sT1, sT2 = 57, 58, 59
sNONCE, sSPIN = 60, 3
sRT, sCT = 61, 62
sWD0, sWD1, sWO0, sWO1 = 63, 64, 65, 66
sU, sS2, sWRAP = 67, 68, 69
sStepQ, sWrapQ, sStepG, sWrapG, sInc = 88, 89, 90, 91, 92
sC = 93
sEX = 94
sMASK, sROT = 96, 97
sXB, sKX, sIncX = 98, 99, 100
sW2WRAP = 101
def srd(b): return 's[%d:%d]' % (b, b + 3)

vL, vST, vD2 = 1, 2, 3
vWA, vWB, vWC, vWD = 4, 5, 6, 7
vS0, vS1 = 8, 9
vR0, vR1 = 10, 11
vTR = 12
vT = 24
vRS, vNM = 62, 63
ACC2 = 64
XF = 128
vX = [72, 73, 74, 75]
vXA = [76, 77, 78, 79]
vDUM = 80; vTA = 81
ACC1, WF, EPSB = 0, 96, 144
AOCT = [160 + 8 * k for k in range(12)]
def xf(s): return 'v[%d:%d]' % (XF + 4 * s, XF + 4 * s + 3)
def T(p, s): return lambda: p(s)
KVS = [4096, 10240, 16384, 22528]

class Mark:
    def __init__(self, fn): self.fn = fn
    def __call__(self): self.fn()

def slot_base_const(S):
    Tg = S >> 2
    if Tg == 0: return SPARE + 6144 * (S & 3)
    return 32768 * (S & 3) + 6144 * ((Tg - 1) % NRING)

def tiles_of(role, grp):
    if grp == 2: return [('m%d' % t, 0, 512, False) for t in range(4)]
    if role == 'AB':
        return [('q0', 0, 512, True), ('q1', 0, 512, True), ('q0', 2048, 512, True), ('q1', 2048, 512, True), ('q0', 4096, 512, False), ('q1', 4096, 512, False)]
    return [('m%d' % t, 0, 512, False) for t in range(4)] + [('h0', 4096, 256, False), ('h1', 4096, 256, False)]
def wf(S, j, G): return WF + (S & 1) * 4 * G + 4 * j

def tr_items(p, role, S, variants, ftok):
    tl = tiles_of(role, 1 if S < 32 else 2); G = len(tl)
    items = []; blk = slot_base_const(S)
    for j, (var, lo, rds, sw) in enumerate(tl):
        ftok[(S, j)] = []
        for rd in range(2):
            const = blk + lo + rd * rds
            win, off = const >> 16, const & 0xffff
            b = wf(S, j, G) + 2 * rd
            def f(b=b, reg=variants[var][win], off=off, key=(S, j)):
                ftok[key].append(p.lg('ds_read_b64_tr_b16 a[%d:%d], v%d offset:%d' % (b, b + 1, reg, off)))
            items.append(f)
    return items

def prologue(p):
    if p.stamps_on: p('s_memrealtime s[98:99]'); p('s_memtime s[100:101]')
    p('s_load_dwordx2 s[70:71], s[0:1], 0')
    p('s_load_dwordx2 s[86:87], s[0:1], 72')
    p('s_load_dwordx4 s[72:75], s[0:1], 8')
    p('s_load_dwordx4 s[76:79], s[0:1], 32')
    p('s_load_dwordx4 s[80:83], s[0:1], 48')
    p('v_and_b32 v%d, 63, v0' % vL)
    p('v_lshrrev_b32 v%d, 6, v0' % vT)
    p('s_and_b32 s%d, s2, 7' % sT0); p('s_lshr_b32 s%d, s2, 3' % sT1)
    p('v_readfirstlane_b32 s%d, v%d' % (sW, vT))
    p('s_lshr_b32 s%d, s%d, 1' % (sQD, sT0))
    p('s_lshl_b32 s%d, s%d, 2' % (sRT, sT0)); p('s_and_b32 s%d, s%d, 3' % (sT2, sT1)); p('s_add_u32 s%d, s%d, s%d' % (sRT, sRT, sT2))
    p('s_lshr_b32 s%d, s%d, 2' % (sCT, sT1))
    p('s_and_b32 s%d, s%d, 1' % (sT0, sT0)); p('s_lshl_b32 s%d, s%d, 3' % (sT0, sT0))
    p('s_and_b32 s%d, s%d, 7' % (sI, sT1)); p('s_add_u32 s%d, s%d, s%d' % (sI, sI, sT0))
    p('s_lshr_b32 s%d, s%d, 3' % (sMEM, sT1))
    p('s_lshl_b32 s%d, s%d, 2' % (sC, sQD)); p('s_add_u32 s%d, s%d, s%d' % (sC, sC, sMEM))
    if ROTMODE == 0:
        p('s_lshl_b32 s%d, s%d, 1' % (sROT, sMEM)); p('s_add_u32 s%d, s%d, s%d' % (sROT, sROT, sI)); p('s_and_b32 s%d, s%d, 7' % (sROT, sROT))
    else:
        p('s_and_b32 s%d, s%d, 1' % (sROT, sI)); p('s_lshl_b32 s%d, s%d, 1' % (sROT, sROT)); p('s_add_u32 s%d, s%d, s%d' % (sROT, sROT, sMEM)); p('s_lshl_b32 s%d, s%d, 1' % (sROT, sROT)); p('s_and_b32 s%d, s%d, 7' % (sROT, sROT))
    p('s_lshl_b32 s%d, s%d, 7' % (sT0, sI)); p('s_lshl_b32 s%d, s%d, 3' % (sT1, sC)); p('s_add_u32 s%d, s%d, s%d' % (sT0, sT0, sT1))
    p('s_lshl_b32 s%d, s%d, 1' % (sT1, sW)); p('s_add_u32 s%d, s%d, s%d' % (sT2, sT0, sT1)); p('s_lshl_b32 s%d, s%d, 10' % (sT0, sT2))
    p('v_lshrrev_b32 v%d, 5, v%d' % (vT, vL)); p('v_lshlrev_b32 v%d, 10, v%d' % (vT, vT))
    p('v_and_b32 v%d, 31, v%d' % (vT + 1, vL)); p('v_lshl_add_u32 v%d, v%d, 5, v%d' % (vT, vT + 1, vT))
    p('v_mov_b32 v%d, 0' % (vT + 2)); p('s_mov_b32 s%d, 0x%x' % (sT1, NONCE_OFF))
    p('s_lshl_b32 s%d, s%d, 4' % (sHST2, sT2)); p('s_add_u32 s%d, s%d, 0x%x' % (sHST2, sHST2, STAT_OFF))
    a, b, c = vT + 4, vT + 5, vT + 6
    p('v_lshrrev_b32 v%d, 3, v%d' % (a, vL)); p('v_lshlrev_b32 v%d, 10, v%d' % (a, a))
    p('v_and_b32 v%d, 7, v%d' % (b, vL)); p('v_lshrrev_b32 v%d, 4, v%d' % (c, vL)); p('v_xor_b32 v%d, v%d, v%d' % (b, b, c))
    p('v_lshl_add_u32 v%d, v%d, 4, v%d' % (vX[0], b, a))
    p('s_lshl_b32 s%d, s%d, 7' % (sT1, sROT)); p('v_add_u32 v%d, s%d, v%d' % (vX[0], sT1, vX[0]))
    p('v_xor_b32 v%d, 64, v%d' % (vX[1], vX[0])); p('v_add_u32 v%d, 14336, v%d' % (vX[2], vX[0])); p('v_add_u32 v%d, 7168, v%d' % (vX[1], vX[1]))
    p('v_add_u32 v%d, 14336, v%d' % (vX[3], vX[1]))
    p('s_mov_b32 s%d, 0x%x' % (sT1, NONCE_OFF))
    p('s_lshl_b32 s%d, s%d, 15' % (sWB, sW))
    p('s_waitcnt lgkmcnt(0)')
    if p.stamps_on: p('s_mov_b32 s88, s98'); p('s_mov_b32 s89, s100')
    def mk(base, src, n):
        p('s_mov_b32 s%d, s%d' % (base, src)); p('s_mov_b32 s%d, s%d' % (base + 1, src + 1))
        p('s_mov_b32 s%d, 0x%x' % (base + 2, n)); p('s_mov_b32 s%d, 0x00020000' % (base + 3))
    mk(S_X, 70, 2048 * 1024); mk(S_WS, 86, WS_BYTES)
    XR = vT + 8
    p.xl = [p.vm('buffer_load_dwordx4 v[%d:%d], v%d, %s, s%d offen %s' % (XR + 4 * k, XR + 4 * k + 3, vT, srd(S_X), sT0, 'offset:16' if k else '')) for k in range(2)]
    p.nl = p.vm('buffer_load_dword v%d, v%d, %s, s%d offen %s' % (vT + 3, vT + 2, srd(S_WS), sT1, LD))
    if TCODE: touch_code(p)
    p('s_lshl_b32 s%d, s%d, 2' % (sXB, sI)); p('s_add_u32 s%d, s%d, s%d' % (sXB, sXB, sW)); p('s_lshl_b32 s%d, s%d, 15' % (sXB, sXB))
    p('s_mov_b32 s%d, s%d' % (sKX, sROT))
    mk(S_WQ, 72, 512 * 3072); mk(S_WO, 74, 512 * 1024); mk(S_WG, 76, 512 * 3584); mk(S_WU, 78, 512 * 3584); mk(S_WD, 80, 1792 * 1024); mk(S_OUT, 82, 2048 * 1024)
    if p.stamps_on: p('s_mov_b32 s70, s88'); p('s_mov_b32 s72, s89')
    p('s_lshl_b32 s%d, s%d, 13' % (sS2, sW)); p('s_add_u32 s%d, s%d, %d' % (sS2, sS2, SPARE))
    p('s_sub_u32 s%d, 7, s%d' % (sWRAP, sROT))
    p('s_mov_b32 s%d, 0x3fb8aa3b' % sLOG2E); p('s_mov_b32 s%d, 0x358637bd' % sEPS); p('s_mov_b32 s%d, 0x3f803f80' % sONES); p('s_mov_b32 s%d, 0xffff0000' % sMASK)
    p('s_mov_b32 s%d, %d' % (sStepG, 64 * 3584)); p('s_mov_b32 s%d, 0x%x' % (sWrapG, (-448 * 3584) & 0xffffffff))
    p('s_mov_b32 s%d, %d' % (sStepQ, 64 * 3072)); p('s_mov_b32 s%d, 0x%x' % (sWrapQ, (-448 * 3072) & 0xffffffff))
    p('v_lshlrev_b32 v%d, 4, v%d' % (vST, vL))

def touch_code(p):
    a = vT + 30
    p('s_getpc_b64 s[%d:%d]' % (sEX, sEX + 1))
    p.label('L_pc_here')
    p('s_sub_u32 s%d, s%d, L_pc_here-%s' % (sEX, sEX, NAME)); p('s_subb_u32 s%d, s%d, 0' % (sEX + 1, sEX + 1))
    p('s_lshr_b32 s%d, s2, 3' % sT2); p('s_mul_i32 s%d, s%d, CODE_STRIDE' % (sT2, sT2))
    p('v_lshlrev_b32 v%d, 7, v%d' % (a, vL)); p('v_min_u32 v%d, CODE_STRIDE, v%d' % (a, a)); p('v_add_u32 v%d, s%d, v%d' % (a, sT2, a))
    p.vm('global_load_dword v%d, v%d, s[%d:%d]' % (a + 1, a, sEX, sEX + 1))

def x_dma_items(p):
    toks = [[] for _ in range(8)]; items = []
    for c in range(8):
        def f(c=c):
            p('s_add_u32 m0, s%d, %d' % (sWB, 4096 * c))
            p('s_add_u32 s%d, s%d, 1' % (sKX, sKX)); p('s_and_b32 s%d, s%d, 7' % (sKX, sKX))
            p('s_movk_i32 s%d, 128' % sIncX); p('s_cmp_eq_u32 s%d, 0' % sKX); p('s_cselect_b32 s%d, 0xfffffc80, s%d' % (sIncX, sIncX))
            for q in range(4):
                toks[c].append(p.vm('buffer_load_dwordx4 v%d, %s, s%d offen %slds' % (vX[q], srd(S_X), sXB, ('offset:%d ' % (1024 * q)) if q else '')))
            if c < 7:
                for q in range(4): p('v_add_u32 v%d, s%d, v%d' % (vX[q], sIncX, vX[q]))
        items.append(f)
    return items, toks

def setup(p, role):
    q = p
    a, b, c = vT + 16, vT + 17, vT + 18
    q('v_lshrrev_b32 v%d, 3, v%d' % (a, vL))
    q('v_lshrrev_b32 v%d, 2, v%d' % (c, vL)); q('v_and_b32 v%d, 4, v%d' % (c, c))
    q('v_and_b32 v%d, 7, v%d' % (b, vL)); q('v_xor_b32 v%d, v%d, v%d' % (b, b, c)); q('v_lshlrev_b32 v%d, 4, v%d' % (b, b))
    q('v_lshl_add_u32 v%d, v%d, 10, v%d' % (vD2, a, b))
    q('s_movk_i32 s%d, 3072' % sT1); q('s_movk_i32 s%d, 3584' % sT2)
    rot = sROT
    q('s_mul_i32 s%d, s%d, %d' % (sWO1, rot, 64 * 3072)); q('s_mul_i32 s%d, s%d, %d' % (sWD1, rot, 64 * 3584))
    if role == 'AB':
        q('v_mad_u32_u24 v%d, v%d, s%d, v%d' % (vWA, a, sT1, b)); q('v_mad_u32_u24 v%d, v%d, s%d, v%d' % (vWB, a, sT2, b))
        q('v_add_u32 v%d, s%d, v%d' % (vWA, sWO1, vWA)); q('v_add_u32 v%d, s%d, v%d' % (vWB, sWD1, vWB))
        q('v_xor_b32 v%d, 32, v%d' % (vWC, vWB))
    else:
        q('v_mad_u32_u24 v%d, v%d, s%d, v%d' % (vWA, a, sT2, b)); q('v_add_u32 v%d, s%d, v%d' % (vWA, sWD1, vWA))
        q('v_xor_b32 v%d, 32, v%d' % (vWB, vWA))
        q('v_lshrrev_b32 v%d, 2, v%d' % (a, vL)); q('v_and_b32 v%d, 3, v%d' % (b, vL)); q('v_lshlrev_b32 v%d, 4, v%d' % (b, b))
        q('v_mad_u32_u24 v%d, v%d, s%d, v%d' % (vWC, a, sT2, b)); q('v_add_u32 v%d, s%d, v%d' % (vWC, sWD1, vWC))
        q('v_xor_b32 v%d, 32, v%d' % (vWD, vWC))
    q('s_mul_i32 s%d, s%d, %d' % (sT1, sW, 16 * 3072)); q('s_mul_i32 s%d, s%d, %d' % (sT2, sW, 16 * 3584))
    q('s_lshl_b32 s%d, s%d, 2' % (sWO0, sI)); q('s_add_u32 s%d, s%d, s%d' % (sWO0, sWO0, sW))
    q('s_mul_i32 s%d, s%d, %d' % (sHST1, sWO0, 112 * 1024))
    q('s_lshl_b32 s%d, s%d, 15' % (sPQ, sWO0)); q('s_add_u32 s%d, s%d, 0x%x' % (sPQ, sPQ, PQ_OFF))
    if role == 'AB':
        q('s_lshl_b32 s%d, s%d, 1' % (sU, sQD)); q('s_add_u32 s%d, s%d, s%d' % (sU, sU, sMEM))
        q('s_lshl_b32 s%d, s%d, 12' % (sKVP, sU)); q('s_add_u32 s%d, s%d, s%d' % (sPQ, sPQ, sKVP))
        q('s_lshl_b32 s%d, s%d, 2' % (sKVP, sU)); q('s_add_u32 s%d, s%d, s%d' % (sKVP, sKVP, sW)); q('s_lshl_b32 s%d, s%d, 15' % (sKVP, sKVP))
        q('s_lshl_b32 s%d, s%d, 11' % (sHST2, sI)); q('s_add_u32 s%d, s%d, s%d' % (sKVP, sKVP, sHST2)); q('s_add_u32 s%d, s%d, 0x%x' % (sKVP, sKVP, KVP_OFF))
        q('s_lshl_b32 s%d, s%d, 7' % (sT0, sU)); q('s_add_u32 s%d, s%d, s%d' % (sT0, sT0, sT1))
        q('s_add_u32 s%d, s%d, %d' % (sL[0], sT0, 1024)); q('s_add_u32 s%d, s%d, %d' % (sL[1], sT0, 1024 + 8 * 3072 - 1024))
        q('s_add_u32 s%d, s%d, %d' % (sL[2], sT0, 2048 - 2048)); q('s_add_u32 s%d, s%d, %d' % (sL[3], sT0, 2048 + 8 * 3072 - 3072))
        q('s_add_u32 s%d, s%d, %d' % (sL[4], sT0, 0)); q('s_add_u32 s%d, s%d, %d' % (sL[5], sT0, 8 * 3072 - 1024))
        q('s_mul_i32 s%d, s%d, 7' % (sT0, sQD)); q('s_add_u32 s%d, s%d, s%d' % (sT0, sT0, sMEM))
        q('s_lshl_b32 s%d, s%d, 12' % (sHST2, sT0)); q('s_add_u32 s%d, s%d, s%d' % (sHST2, sHST2, sHST1))
        q('s_lshl_b32 s%d, s%d, 7' % (sT0, sT0)); q('s_add_u32 s%d, s%d, s%d' % (sG2[0], sT0, sT2)); q('s_add_u32 s%d, s%d, %d' % (sG2[1], sG2[0], 8 * 3584 - 1024))
    else:
        q('s_mul_i32 s%d, s%d, 7' % (sT0, sQD)); q('s_sub_u32 s%d, s%d, 2' % (sT1, sMEM))
        q('s_mul_i32 s%d, s%d, 3' % (sL[5], sT1)); q('s_add_u32 s%d, s%d, s%d' % (sL[5], sL[5], sT0)); q('s_add_u32 s%d, s%d, 2' % (sL[5], sL[5]))
        q('s_add_u32 s%d, s%d, 4' % (sL[4], sT0))
        q('s_lshl_b32 s%d, s%d, 12' % (sHST1b, sL[4])); q('s_lshl_b32 s%d, s%d, 11' % (sL[3], sT1)); q('s_add_u32 s%d, s%d, s%d' % (sHST1b, sHST1b, sL[3]))
        q('s_add_u32 s%d, s%d, s%d' % (sHST1b, sHST1b, sHST1))
        q('s_lshl_b32 s%d, s%d, 12' % (sL[3], sL[5])); q('s_add_u32 s%d, s%d, 4096' % (sHST2, sL[3])); q('s_add_u32 s%d, s%d, s%d' % (sHST2, sHST2, sHST1))
        q('s_add_u32 s%d, s%d, s%d' % (sHST1, sHST1, sL[3]))
        q('s_lshl_b32 s%d, s%d, 7' % (sL[2], sL[4])); q('s_lshl_b32 s%d, s%d, 6' % (sT1, sT1)); q('s_add_u32 s%d, s%d, s%d' % (sL[2], sL[2], sT1))
        q('s_add_u32 s%d, s%d, s%d' % (sL[2], sL[2], sT2))
        q('s_lshl_b32 s%d, s%d, 7' % (sL[0], sL[5])); q('s_add_u32 s%d, s%d, s%d' % (sL[0], sL[0], sT2)); q('s_add_u32 s%d, s%d, %d' % (sL[1], sL[0], 8 * 3584 - 1024))
        q('s_add_u32 s%d, s%d, 128' % (sG2[0], sL[0])); q('s_add_u32 s%d, s%d, 128' % (sG2[1], sL[1]))
    q('s_mul_i32 s%d, s%d, %d' % (sWD0, sW, 448 * 1024)); q('s_lshl_b32 s%d, s%d, 7' % (sT0, sCT)); q('s_add_u32 s%d, s%d, s%d' % (sWD0, sWD0, sT0))
    q('s_and_b32 s%d, s%d, 3' % (sT1, sRT)); q('s_lshl_b32 s%d, s%d, 3' % (sT1, sT1)); q('s_sub_u32 s%d, 28, s%d' % (sW2WRAP, sT1))
    q('s_lshl_b32 s%d, s%d, 14' % (sT1, sT1)); q('v_add_u32 v%d, s%d, v%d' % (vD2, sT1, vD2))
    q('s_add_u32 s%d, s%d, %d' % (sWD1, sWD0, 8192 - 1024))
    q('s_lshl_b32 s%d, s%d, 17' % (sWO0, sW)); q('s_add_u32 s%d, s%d, s%d' % (sWO0, sWO0, sT0)); q('s_add_u32 s%d, s%d, %d' % (sWO1, sWO0, 8192 - 1024))

def setup_tr(p, role):
    q = p
    t0, t1, t2, t3, t4, u0, u1, t5 = [vT + 16 + i for i in range(8)]
    q('v_lshrrev_b32 v%d, 5, v%d' % (t5, vL)); q('v_lshlrev_b32 v%d, 3, v%d' % (t0, t5))
    q('v_bfe_u32 v%d, v%d, 2, 2' % (t1, vL)); q('v_add_u32 v%d, v%d, v%d' % (t0, t0, t1))
    q('v_lshl_add_u32 v%d, v%d, 2, v%d' % (t5, t5, t1))
    q('v_bfe_u32 v%d, v%d, 4, 1' % (t1, vL)); q('v_bfe_u32 v%d, v%d, 1, 1' % (t2, vL)); q('v_bfe_u32 v%d, v%d, 3, 1' % (t3, vL))
    q('v_and_b32 v%d, 1, v%d' % (t4, vL)); q('v_lshlrev_b32 v%d, 3, v%d' % (t4, t4))
    variants = {}
    names = (['q0', 'q1', 'm0', 'm1', 'm2', 'm3'] if role == 'AB' else ['m0', 'm1', 'm2', 'm3', 'h0', 'h1'])
    def qvar(dst, th, rowreg):
        q('v_lshl_add_u32 v%d, v%d, 1, v%d' % (u0, t1, t2))
        q('v_lshlrev_b32 v%d, 2, v%d' % (u1, t3)); q('v_xor_b32 v%d, %d, v%d' % (u1, 4 * th, u1)); q('v_add_u32 v%d, v%d, v%d' % (u0, u0, u1))
        q('v_lshl_add_u32 v%d, v%d, 4, v%d' % (u0, u0, t4)); q('v_lshl_add_u32 v%d, v%d, 7, v%d' % (dst, rowreg, u0))
    for vi, nm in enumerate(names):
        r0 = vTR + 2 * vi
        if nm[0] == 'q': qvar(r0, int(nm[1]), t0)
        elif nm[0] == 'm':
            tt = int(nm[1])
            q('v_add_u32 v%d, %d, v%d' % (u0, 2 * tt, t2))
            q('v_lshlrev_b32 v%d, 2, v%d' % (u1, t3)); q('v_xor_b32 v%d, v%d, v%d' % (u0, u0, u1))
            q('v_lshlrev_b32 v%d, 1, v%d' % (u1, t1)); q('v_xor_b32 v%d, v%d, v%d' % (u0, u0, u1))
            q('v_lshl_add_u32 v%d, v%d, 4, v%d' % (u0, u0, t4)); q('v_lshl_add_u32 v%d, v%d, 7, v%d' % (u0, t0, u0)); q('v_lshl_add_u32 v%d, v%d, 11, v%d' % (r0, t1, u0))
        else:
            tt = int(nm[1])
            q('v_add_u32 v%d, %d, v%d' % (u0, 2 * tt, t2))
            q('v_lshlrev_b32 v%d, 1, v%d' % (u1, t1)); q('v_xor_b32 v%d, v%d, v%d' % (u0, u0, u1))
            q('v_lshl_add_u32 v%d, v%d, 4, v%d' % (u0, u0, t4)); q('v_lshl_add_u32 v%d, v%d, 6, v%d' % (u0, t0, u0)); q('v_lshl_add_u32 v%d, v%d, 10, v%d' % (r0, t1, u0))
        q('v_add_u32 v%d, 0x10000, v%d' % (r0 + 1, r0))
        q('v_add_u32 v%d, 0x20000, v%d' % (ACC2 + vi, r0))
        variants[nm] = {0: r0, 1: r0 + 1, 2: ACC2 + vi}
    qvar(vS0, 0, t5); qvar(vS1, 1, t5)
    q('v_add_u32 v%d, s%d, v%d' % (vR0, sWB, vS0)); q('v_add_u32 v%d, s%d, v%d' % (vR1, sWB, vS1))
    q('v_add_u32 v%d, s%d, v%d' % (vS0, sS2, vS0)); q('v_add_u32 v%d, s%d, v%d' % (vS1, sS2, vS1))
    return variants

def dma_stage_items(p, role, Tg):
    toks = []; items = []
    base = 6144 * ((Tg - 1) % NRING)
    def ld(v, s, so, off): toks.append(p.vm('buffer_load_dwordx4 v%d, %s, s%d offen %slds' % (v, srd(s), so, ('offset:%d ' % off) if off else '')))
    def inc(step, wrap):
        p('s_cmp_eq_u32 s%d, %d' % (sWRAP, Tg & 7)); p('s_cselect_b32 s%d, s%d, s%d' % (sInc, wrap, step))
    adv = lambda v: p('v_add_u32 v%d, s%d, v%d' % (v, sInc, v))
    m0 = lambda off: p('s_add_u32 m0, s%d, %d' % ((sT2, off) if Tg == 0 else (sWB, base + off)))
    if Tg < 8 and role == 'AB':
        def f0(): m0(0); inc(sStepQ, sWrapQ); ld(vWA, S_WQ, sL[0], 0); ld(vWA, S_WQ, sL[1], 1024)
        def f1(): pass
        def f01(): f0(); ld(vWA, S_WQ, sL[2], 2048); ld(vWA, S_WQ, sL[3], 3072)
        def f2():
            m0(4096); p('s_nop 0'); ld(vWA, S_WQ, sL[4], 0); ld(vWA, S_WQ, sL[5], 1024)
            if Tg < 7: adv(vWA)
        items = [f01, f2]
    elif Tg < 8:
        def f0(): m0(0); inc(sStepG, sWrapG); ld(vWA, S_WG, sL[0], 0); ld(vWA, S_WG, sL[1], 1024); adv(vWA)
        def f1(): m0(2048); p('s_nop 0'); ld(vWB, S_WU, sL[0], 0); ld(vWB, S_WU, sL[1], 1024); adv(vWB)
        def f2():
            m0(4096); p('s_nop 0'); ld(vWC, S_WG, sL[2], 0)
            if Tg < 7: adv(vWC)
            m0(5120); p('s_nop 0'); ld(vWD, S_WU, sL[2], 0)
            if Tg < 7: adv(vWD)
        items = [f0, f1, f2]
    else:
        g, u = (vWB, vWC) if role == 'AB' else (vWA, vWB)
        def f0():
            m0(0); inc(sStepG, sWrapG); ld(g, S_WG, sG2[0], 0); ld(g, S_WG, sG2[1], 1024)
            if Tg < 15: adv(g)
        def f1():
            m0(2048); p('s_nop 0'); ld(u, S_WU, sG2[0], 0); ld(u, S_WU, sG2[1], 1024)
            if Tg < 15: adv(u)
        items = [f0, f1]
    return items, toks

def store_item(p, reg, soff, off, keep=None):
    def f():
        t = p.vm('buffer_store_dwordx4 v[%d:%d], v%d, %s, s%d offen %s%s' % (reg, reg + 3, vST, srd(S_WS), soff, ('offset:%d ' % off) if off else '', DST))
        if keep is not None: keep.append(t)
    return f

def norm_items(p, s, t):
    it = []
    for pr in range(2):
        r0, r1 = XF + 4 * s + 2 * pr, XF + 4 * s + 2 * pr + 1
        a0, a1, b0, b1 = t + 4 * pr, t + 4 * pr + 1, t + 4 * pr + 2, t + 4 * pr + 3
        seq = ['v_lshlrev_b32 v%d, 16, v%d' % (a0, r0), 'v_and_b32 v%d, s%d, v%d' % (a1, sMASK, r0),
               'v_lshlrev_b32 v%d, 16, v%d' % (b0, r1), 'v_and_b32 v%d, s%d, v%d' % (b1, sMASK, r1),
               'v_fma_f32 v%d, v%d, v%d, v%d' % (a0, a0, vRS, vNM), 'v_fma_f32 v%d, v%d, v%d, v%d' % (a1, a1, vRS, vNM),
               'v_fma_f32 v%d, v%d, v%d, v%d' % (b0, b0, vRS, vNM), 'v_fma_f32 v%d, v%d, v%d, v%d' % (b1, b1, vRS, vNM),
               'v_cvt_pk_bf16_f32 v%d, v%d, v%d' % (r0, a0, a1), 'v_cvt_pk_bf16_f32 v%d, v%d, v%d' % (r1, b0, b1)]
        it += [T(p, x) for x in seq]
    return it

def mlp_epi_items(p, acc, in_agpr, t, soff, off, keep=None):
    it = []
    if in_agpr:
        for half in range(2):
            rr = range(4 * half, 4 * half + 4)
            for r in rr: it.append(T(p, 'v_accvgpr_read_b32 v%d, a%d' % (t + (r & 3), acc + r)))
            for r in rr: it.append(T(p, 'v_accvgpr_read_b32 v%d, a%d' % (t + 4 + (r & 3), acc + 8 + r)))
            for r in rr: it.append(T(p, 'v_max_f32 v%d, 0, v%d' % (t + (r & 3), t + (r & 3))))
            for r in rr: it.append(T(p, 'v_mul_f32 v%d, v%d, v%d' % (t + (r & 3), t + (r & 3), t + 4 + (r & 3))))
            for q in range(2): it.append(T(p, 'v_cvt_pk_bf16_f32 v%d, v%d, v%d' % (t + 8 + 2 * half + q, t + 2 * q, t + 2 * q + 1)))
    else:
        for r in range(8): it.append(T(p, 'v_max_f32 v%d, 0, v%d' % (acc + r, acc + r)))
        for r in range(8): it.append(T(p, 'v_mul_f32 v%d, v%d, v%d' % (acc + r, acc + r, acc + 8 + r)))
        for q in range(4): it.append(T(p, 'v_cvt_pk_bf16_f32 v%d, v%d, v%d' % (t + 8 + q, acc + 2 * q, acc + 2 * q + 1)))
    it.append(store_item(p, t + 8, soff, off, keep))
    return it

def phi_items(p, acc, t, dst):
    it = []
    for half in range(2):
        rr = list(range(4 * half, 4 * half + 4))
        for r in rr: it.append(T(p, 'v_accvgpr_read_b32 v%d, a%d' % (t + (r & 3), acc + r)))
        for r in rr: it.append(T(p, 'v_mul_f32 v%d, s%d, v%d' % (t + 4 + (r & 3), sLOG2E, t + (r & 3))))
        for r in rr: it.append(T(p, 'v_exp_f32 v%d, v%d clamp' % (t + 4 + (r & 3), t + 4 + (r & 3))))
        for r in rr: it.append(T(p, 'v_max_f32 v%d, s%d, v%d' % (t + (r & 3), sEPS, t + (r & 3))))
        for r in rr: it.append(T(p, 'v_add_f32 v%d, v%d, v%d' % (t + (r & 3), t + (r & 3), t + 4 + (r & 3))))
        for q in range(2): it.append(T(p, 'v_cvt_pk_bf16_f32 v%d, v%d, v%d' % (dst + 2 * half + q, t + 2 * q, t + 2 * q + 1)))
    return it

def pack_items(p, acc, t, dst):
    it = []
    for half in range(2):
        rr = list(range(4 * half, 4 * half + 4))
        for r in rr: it.append(T(p, 'v_accvgpr_read_b32 v%d, a%d' % (t + (r & 3), acc + r)))
        for q in range(2): it.append(T(p, 'v_cvt_pk_bf16_f32 v%d, v%d, v%d' % (dst + 2 * half + q, t + 2 * q, t + 2 * q + 1)))
    return it

def emit_flag(p, base, idx_sgpr):
    p('s_lshl_b32 s%d, s%d, 7' % (sT0, idx_sgpr)); p('s_add_u32 s%d, s%d, 0x%x' % (sT0, sT0, base))
    p('v_mov_b32 v%d, s%d' % (vT + 4, sNONCE)); p('v_mov_b32 v%d, 0' % (vT + 5))
    p('s_mov_b64 s[%d:%d], exec' % (sEX, sEX + 1)); p('s_mov_b64 exec, 1')
    p('buffer_store_dword v%d, v%d, %s, s%d offen %s' % (vT + 4, vT + 5, srd(S_WS), sT0, ST))
    p('s_mov_b64 exec, s[%d:%d]' % (sEX, sEX + 1))

def uniform_flag(p, base, idx_sgpr):
    la = p.newlabel('L_fa')
    p('s_cmp_lg_u32 s%d, 0' % sW); p('s_cbranch_scc1 %s' % la)
    emit_flag(p, base, idx_sgpr)
    p.label(la)

def poll_issue(p, vaddr, soff, vdst):
    return p.vm('buffer_load_dword v%d, v%d, %s, s%d offen %s' % (vdst, vaddr, srd(S_WS), soff, LD))

def poll_check(p, tok, vaddr, soff, vdst):
    if tok is not None: p.wait(tok)
    l0, l1 = p.newlabel('L_pc'), p.newlabel('L_pcok')
    p('v_cmp_eq_u32 vcc, s%d, v%d' % (sNONCE, vdst)); p('s_nop 1'); p('s_cmp_eq_u64 vcc, -1'); p('s_cbranch_scc1 %s' % l1)
    p('s_mov_b32 s%d, 0' % sSPIN)
    p.label(l0)
    p('buffer_load_dword v%d, v%d, %s, s%d offen %s' % (vdst, vaddr, srd(S_WS), soff, LD))
    p('s_waitcnt vmcnt(0)')
    p('v_cmp_eq_u32 vcc, s%d, v%d' % (sNONCE, vdst)); p('s_nop 1'); p('s_cmp_eq_u64 vcc, -1'); p('s_cbranch_scc1 %s' % l1)
    p('s_sleep %d' % SLEEP)
    p('s_add_u32 s%d, s%d, 1' % (sSPIN, sSPIN)); p('s_cmp_lt_u32 s%d, 20000' % sSPIN); p('s_cbranch_scc1 %s' % l0)
    p.label(l1)

def epilogue1_items(p, role, free_oct, kvp_toks):
    t = vT + 8
    if role == 'CD':
        pre = []
        for j in range(6):
            soff, off = (sHST1, 1024 * j) if j < 4 else (sHST1b, 1024 * (j - 4))
            pre += mlp_epi_items(p, ACC1 + 16 * j, True, t + (j & 1) * 12, soff, off)
            pre.append(Mark(lambda j=j: free_oct.extend([('a', ACC1 + 16 * j), ('a', ACC1 + 16 * j + 8)])))
        return [pre]
    PK = vT + 16; VV = vT + 24; BS = vT + 32
    pre = []
    for pr in range(2):
        pre += phi_items(p, ACC1 + 16 * pr, t, PK) + phi_items(p, ACC1 + 16 * pr + 8, t, PK + 4)
        pre += pack_items(p, ACC1 + 32 + 16 * pr, t, VV) + pack_items(p, ACC1 + 32 + 16 * pr + 8, t, VV + 4)
        da = ACC1 + 16 * pr; db = ACC1 + 32 + 16 * pr
        for hb, (d, msk) in enumerate(((da, 0x0000ffff), (db, 0xffff0000))):
            pre.append(T(p, 's_mov_b32 vcc_lo, 0x%x' % msk)); pre.append(T(p, 's_mov_b32 vcc_hi, 0x%x' % msk))
            for r in range(8): pre.append(T(p, 'v_cndmask_b32 v%d, v%d, v%d, vcc' % (BS + r, vT + 7, VV + r)))
            pre.append(T(p, 's_nop 1'))
            pre.append(T(p, 'v_mfma_f32_32x32x16_bf16 a[%d:%d], v[%d:%d], v[%d:%d], 0' % (d, d + 15, PK, PK + 3, BS, BS + 3)))
            pre.append(T(p, 'v_mfma_f32_32x32x16_bf16 a[%d:%d], v[%d:%d], v[%d:%d], a[%d:%d]' % (d, d + 15, PK + 4, PK + 7, BS + 4, BS + 7, d, d + 15)))
    def qhead(pr, hb):
        dst = PK + 4 * hb
        return phi_items(p, ACC1 + 64 + 16 * pr + 8 * hb, t, dst) + [store_item(p, dst, sPQ, 1024 * (2 * pr + hb)), Mark(lambda: free_oct.append(('a', ACC1 + 64 + 16 * pr + 8 * hb)))]
    pre += qhead(0, 0)
    KA = vT + 6
    pre.append(T(p, 'v_add_u32 v%d, s%d, v%d' % (KA, sWB, vST)))
    for hd in range(4):
        pr, hb = hd >> 1, hd & 1
        src = (ACC1 + 16 * pr) if hb == 0 else (ACC1 + 32 + 16 * pr + 8)
        for q in range(2):
            pre.append(lambda src=src, q=q, hd=hd: p.last_ds_writes.append(p.lg('ds_write_b128 v%d, a[%d:%d] offset:%d' % (KA, src + 4 * q, src + 4 * q + 3, KVS[hd] + q * 1024))))
    pre.append(Mark(lambda: free_oct.extend([('a', ACC1 + 8 * k) for k in range(8)])))
    post = []
    RA = vT + 6; RB = vT + 5; rtok = []
    post.append(T(p, 's_mul_i32 s%d, s%d, 6144' % (sT0, sW))); post.append(T(p, 's_add_u32 s%d, s%d, 4096' % (sT0, sT0)))
    post.append(T(p, 'v_add_u32 v%d, s%d, v%d' % (RA, sT0, vST))); post.append(T(p, 'v_add_u32 v%d, 0x10000, v%d' % (RB, RA)))
    R = vT + 8
    def rd(wv, q, dst): return lambda: rtok.append(p.lg('ds_read_b128 v[%d:%d], v%d offset:%d' % (dst, dst + 3, RA if wv < 2 else RB, (wv & 1) * 32768 + q * 1024)))
    for wv in range(4):
        for q in range(2): post.append(rd(wv, q, R + 8 * wv + 4 * q))
    post.append(lambda: p.wait(rtok))
    for wv in (1, 2, 3):
        for r in range(8): post.append(T(p, 'v_add_f32 v%d, v%d, v%d' % (R + r, R + r, R + 8 * wv + r)))
    for q in range(2): post.append(store_item(p, R + 4 * q, sKVP, 1024 * q, kvp_toks))
    post.append(T(p, 's_nop 1'))
    rest = []
    for (pr, hb) in ((0, 1), (1, 0), (1, 1)): rest += qhead(pr, hb)
    return [pre, post + rest]

def interleave(p, mf, lists):
    n = len(mf); idx = [0] * len(lists)
    for j, m in enumerate(mf):
        for k, L in enumerate(lists):
            upto = (len(L) * (j + 1) + n - 1) // n
            while idx[k] < min(upto, len(L)):
                L[idx[k]](); idx[k] += 1
        m()

def touch_wo(p):
    a = vT + 30
    p('s_lshr_b32 s%d, s2, 3' % sT0); p('s_lshl_b32 s%d, s%d, 2' % (sT0, sT0)); p('s_add_u32 s%d, s%d, s%d' % (sT0, sT0, sW)); p('s_lshl_b32 s%d, s%d, 12' % (sT0, sT0))
    p('v_and_b32 v%d, 31, v%d' % (a, vL)); p('v_lshlrev_b32 v%d, 7, v%d' % (a, a))
    p.vm('buffer_load_dword v%d, v%d, %s, s%d offen' % (vT + 31, a, srd(S_WO), sT0))
def touch_g2(p):
    a = vT + 30
    p('s_and_b32 s%d, s%d, 7' % (sT0, sI)); p('s_lshl_b32 s%d, s%d, 2' % (sT0, sT0)); p('s_mul_i32 s%d, s%d, %d' % (sT0, sT0, 16 * 3584))
    p('s_add_u32 s%d, s%d, s%d' % (sT0, sT0, sG2[0]))
    p('v_and_b32 v%d, 15, v%d' % (a, vL)); p('v_mul_u32_u24 v%d, 3584, v%d' % (a, a))
    p.vm('buffer_load_dword v%d, v%d, %s, s%d offen' % (vT + 31, a, srd(S_WG), sT0))
    p.vm('buffer_load_dword v%d, v%d, %s, s%d offen' % (vT + 31, a, srd(S_WU), sT0))
def build_role(p, role):
    stok = {}
    kc1, kc2 = 250, (210 if role == 'AB' else 160)
    est = [0]
    for S in range(64): est.append(est[-1] + (kc1 if S < 32 else kc2))
    free_oct = [('a', b) for b in AOCT]
    NSL = 5
    W = dict(pos=0, loc={}, dtok={}, ttok={}, dS={}, slot_owner=[None] * NSL)
    RES = [(51, o) for o in (0, 2048, 4096)] + [(55, o) for o in (6144, 8192, 10240)] + [(59, o) for o in (12288, 14336, 16384)] + [(63, o) for o in (18432, 20480, 22528)] + [(64, o) for o in (24576, 26624, 28672)]
    res_next = [0]; wo_loc, wo_tok = {}, {}; wo_next = [0]
    cur_S = [0]
    def slot_info(sl):
        if sl == 0: return sWB, 30720, (vR0, vR1), 30720
        return sS2, 2048 * (sl - 1), (vS0, vS1), 2048 * (sl - 1)
    def wd_dma(pos, breg, off, pre=None):
        toks = W['dtok'].setdefault(pos, [])
        def f():
            if pre: p.wait(pre)
            p('s_add_u32 m0, s%d, %d' % (breg, off))
            if pos > 0 and pos % 4 == 0:
                p('s_mov_b32 s%d, 0x4000' % sT2); p('s_cmp_eq_u32 s%d, %d' % (sW2WRAP, pos)); p('s_cselect_b32 s%d, 0x%x, s%d' % (sT2, (-27 * 0x4000) & 0xffffffff, sT2))
                p('v_add_u32 v%d, s%d, v%d' % (vD2, sT2, vD2))
            elif pos > 0: p('v_add_u32 v%d, 0x4000, v%d' % (vD2, vD2))
            else: p('s_nop 0')
            toks.append(p.vm('buffer_load_dwordx4 v%d, %s, s%d offen lds' % (vD2, srd(S_WD), sWD0)))
            toks.append(p.vm('buffer_load_dwordx4 v%d, %s, s%d offen offset:1024 lds' % (vD2, srd(S_WD), sWD1)))
        return f
    def wo_dma(hh, breg, off, pre=None):
        toks = wo_tok.setdefault(hh, [])
        def f():
            if pre: p.wait(pre)
            p('s_add_u32 m0, s%d, %d' % (breg, off))
            if hh == 0:
                p('v_and_b32 v%d, 0x3fff, v%d' % (vD2, vD2))
            else: p('v_add_u32 v%d, 0x4000, v%d' % (vD2, vD2))
            toks.append(p.vm('buffer_load_dwordx4 v%d, %s, s%d offen lds' % (vD2, srd(S_WO), sWO0)))
            toks.append(p.vm('buffer_load_dwordx4 v%d, %s, s%d offen offset:1024 lds' % (vD2, srd(S_WO), sWO1)))
        return f
    def tr4_items(pos, regs, off, oc, store):
        it = []
        for nt, reg in enumerate(regs):
            for rd in range(2):
                b = oc[1] + 4 * nt + 2 * rd
                def f(b=b, reg=reg, o=off + 1024 * rd, first=(nt == 0 and rd == 0)):
                    if first: p.wait(W['dtok'][pos])
                    store.append(p.lg('ds_read_b64_tr_b16 %s[%d:%d], v%d offset:%d' % (oc[0], b, b + 1, reg, o)))
                it.append(f)
        return it
    def slot_free(sl):
        own = W['slot_owner'][sl]
        if sl >= 1 and cur_S[0] < 7: return False
        return own is None or (own >= 0 and W['loc'][own][0] == 'reg' and len(W['ttok'].get(own, [])) == 4)
    def next_w2_item(S):
        cur_S[0] = S
        pos = W['pos']
        if pos < 28:
            for sl in range(NSL):
                if slot_free(sl):
                    own = W['slot_owner'][sl]
                    pre = W['ttok'][own] if own is not None else None
                    breg, moff, _, _ = slot_info(sl)
                    W['slot_owner'][sl] = pos; W['loc'][pos] = ('stage', sl); W['dS'][pos] = S; W['pos'] += 1
                    return wd_dma(pos, breg, moff, pre)
            if res_next[0] < len(RES) and S >= RES[res_next[0]][0]:
                off = RES[res_next[0]][1]; res_next[0] += 1
                W['loc'][pos] = ('res', off); W['dS'][pos] = S; W['pos'] += 1
                return wd_dma(pos, sWB, off)
            return None
        if wo_next[0] < 8:
            for sl in range(NSL):
                if slot_free(sl):
                    own = W['slot_owner'][sl]
                    pre = W['ttok'][own] if own is not None else None
                    W['slot_owner'][sl] = -1
                    breg, moff, regs, toff = slot_info(sl)
                    hh = wo_next[0]; wo_next[0] += 1; wo_loc[hh] = (regs, toff)
                    return wo_dma(hh, breg, moff, pre)
            if res_next[0] < len(RES) and S >= RES[res_next[0]][0]:
                off = RES[res_next[0]][1]; res_next[0] += 1
                hh = wo_next[0]; wo_next[0] += 1; wo_loc[hh] = ((vR0, vR1), off)
                return wo_dma(hh, sWB, off)
        return None
    def staged_to_reg(S_now, force=False):
        cand = [q for q in sorted(W['loc']) if W['loc'][q][0] == 'stage']
        if not cand or not free_oct: return []
        st = cand[0]
        if len(W['dtok'].get(st, [])) != 2: return []
        if not force and est[max(S_now, 0)] < est[max(W['dS'][st], 0)] + LAT and W['dS'][st] >= 0: return []
        oc = free_oct.pop(0); sl = W['loc'][st][1]; W['loc'][st] = ('reg', oc)
        _, _, regs, toff = slot_info(sl)
        return tr4_items(st, regs, toff, oc, W['ttok'].setdefault(st, []))
    xit, xt = x_dma_items(p)
    q = Prog(); setup(q, role); variants = setup_tr(q, role)
    t = vT + 16
    q('v_and_b32 v%d, 31, v%d' % (t, vL)); q('v_lshrrev_b32 v%d, 5, v%d' % (t + 1, vL)); q('v_bfe_u32 v%d, v%d, 1, 3' % (t + 2, vL))
    q('v_xor_b32 v%d, v%d, v%d' % (t + 1, t + 1, t + 2))
    q('v_lshlrev_b32 v%d, 7, v%d' % (t, t)); q('v_add_u32 v%d, s%d, v%d' % (t, sWB, t))
    for ss in range(4):
        q('v_xor_b32 v%d, %d, v%d' % (t + 2, 2 * ss, t + 1)); q('v_lshl_add_u32 v%d, v%d, 4, v%d' % (vXA[ss], t + 2, t))
    if role == 'AB':
        q('v_mov_b32 v%d, s%d' % (t, sEPS))
        for r in range(16): q('v_accvgpr_write_b32 a%d, v%d' % (EPSB + r, t))
    su = [T(p, x) for x in q.ins]
    p('s_mov_b32 s%d, s%d' % (sSPIN, sHST2))
    for c in range(4): xit[c]()
    XR = vT + 8
    vS, vQ = vT + 4, vT + 5
    p.wait(p.xl)
    p.stamp(14)
    p('v_mov_b32 v%d, 0' % vS); p('v_mov_b32 v%d, 0' % vQ)
    for r in range(8):
        p('v_dot2_f32_bf16 v%d, v%d, s%d, v%d' % (vS, XR + r, sONES, vS)); p('v_dot2_f32_bf16 v%d, v%d, v%d, v%d' % (vQ, XR + r, XR + r, vQ))
    for sh in (8, 4, 2, 1):
        p('s_nop 1')
        p('v_add_f32_dpp v%d, v%d, v%d row_ror:%d row_mask:0xf bank_mask:0xf' % (vS, vS, vS, sh))
        p('v_add_f32_dpp v%d, v%d, v%d row_ror:%d row_mask:0xf bank_mask:0xf' % (vQ, vQ, vQ, sh))
    p('v_mov_b32 v%d, v%d' % (vT + 6, vS)); p('v_mov_b32 v%d, v%d' % (vT + 7, vQ)); p('s_nop 1')
    p('v_permlane16_swap_b32 v%d, v%d' % (vS, vT + 6)); p('v_permlane16_swap_b32 v%d, v%d' % (vQ, vT + 7)); p('s_nop 1')
    p('v_add_f32 v%d, v%d, v%d' % (vS, vS, vT + 6)); p('v_add_f32 v%d, v%d, v%d' % (vQ, vQ, vT + 7))
    p('v_mul_f32 v%d, 0x3b000000, v%d' % (vS, vS)); p('v_mul_f32 v%d, 0x3b000000, v%d' % (vQ, vQ))
    p('v_fma_f32 v%d, -v%d, v%d, v%d' % (vQ, vS, vS, vQ))
    p('v_max_f32 v%d, 0, v%d' % (vQ, vQ)); p('v_add_f32 v%d, 0x3727c5ac, v%d' % (vQ, vQ))
    p('v_rsq_f32 v%d, v%d' % (vQ, vQ)); p('s_nop 0')
    p('v_mul_f32 v%d, v%d, v%d' % (vS, vS, vQ)); p('v_sub_f32 v%d, 0, v%d' % (vS, vS))
    p.wait(p.nl)
    p('v_add_u32 v%d, 64, v%d' % (vT + 3, vT + 3)); p('v_or_b32 v%d, 1, v%d' % (vT + 3, vT + 3))
    G = vT + 16
    p('v_mov_b32 v%d, v%d' % (G, vQ)); p('v_mov_b32 v%d, v%d' % (G + 1, vS)); p('v_mov_b32 v%d, v%d' % (G + 2, vT + 3)); p('v_mov_b32 v%d, v%d' % (G + 3, vT + 3))
    p('v_lshrrev_b32 v%d, 5, v%d' % (vT + 6, vL)); p('v_lshlrev_b32 v%d, 4, v%d' % (vT + 6, vT + 6))
    p('v_readfirstlane_b32 s%d, v%d' % (sNONCE, vT + 3))
    p('s_mov_b64 s[%d:%d], exec' % (sEX, sEX + 1)); p('s_mov_b32 exec_lo, 1'); p('s_mov_b32 exec_hi, 1')
    p.vm('buffer_store_dwordx4 v[%d:%d], v%d, %s, s%d offen %s' % (G, G + 3, vT + 6, srd(S_WS), sSPIN, ST))
    p('s_mov_b64 exec, s[%d:%d]' % (sEX, sEX + 1))
    p.stamp(3)
    k = 0
    for c in range(4, 8):
        xit[c]()
        upto = (len(su) * (c - 3)) // 4
        while k < upto: su[k](); k += 1
    p('s_mul_i32 s%d, s%d, 6144' % (sT2, sW)); p('s_add_u32 s%d, s%d, %d' % (sT2, sT2, SPARE))
    it, stok[0] = dma_stage_items(p, role, 0)
    for f in it: f()
    GR = vT + 8; vGA = vT + 12
    p('v_and_b32 v%d, 31, v%d' % (vGA, vL)); p('v_lshlrev_b32 v%d, 4, v%d' % (vGA, vGA))
    p('s_lshr_b32 s%d, s%d, 6' % (sT1, sXB)); p('s_add_u32 s%d, s%d, 0x%x' % (sT1, sT1, STAT_OFF))
    p('s_mov_b32 s%d, s%d' % (sKX, sT1))
    gt = p.vm('buffer_load_dwordx4 v[%d:%d], v%d, %s, s%d offen %s' % (GR, GR + 3, vGA, srd(S_WS), sKX, LD))
    p.stamp(2)
    free_after = {1: 1, 2: 2}
    rt = {}
    for c in range(8):
        p.wait(xt[c])
        rt[c] = [p.lg('ds_read_b128 %s, v%d offset:%d' % (xf(4 * c + ss), vXA[ss], 4096 * c)) for ss in range(4)]
        if EARLY12 and c - 1 in free_after:
            p.wait(rt[c - 1])
            it, stok[free_after[c - 1]] = dma_stage_items(p, role, free_after[c - 1])
            for f in it: f()
    p.wait([t for c in range(8) for t in rt[c]])
    p.stamp(14)
    if not EARLY12:
        for Tg in (1, 2):
            it, stok[Tg] = dma_stage_items(p, role, Tg)
            for f in it: f()
    dmaq0 = []
    for Tg in range(3, NRING + 1):
        it, stok[Tg] = dma_stage_items(p, role, Tg); dmaq0 += it
    p.wait(gt)
    l0, l1 = p.newlabel('L_g'), p.newlabel('L_gok')
    p('s_mov_b32 s%d, 0' % sSPIN)
    p.label(l0)
    p('v_cmp_eq_u32 vcc, s%d, v%d' % (sNONCE, GR + 2)); p('s_nop 1'); p('s_cmp_eq_u64 vcc, -1'); p('s_cbranch_scc1 %s' % l1)
    p('s_sleep 2')
    p('buffer_load_dwordx4 v[%d:%d], v%d, %s, s%d offen %s' % (GR, GR + 3, vGA, srd(S_WS), sKX, LD)); p('s_waitcnt vmcnt(0)')
    p('s_add_u32 s%d, s%d, 1' % (sSPIN, sSPIN)); p('s_cmp_lt_u32 s%d, 20000' % sSPIN); p('s_cbranch_scc1 %s' % l0)
    p.label(l1)
    p('v_mov_b32 v%d, v%d' % (vRS, GR)); p('v_mov_b32 v%d, v%d' % (vNM, GR + 1))
    p.stamp(15)
    for f in norm_items(p, 0, vT): f()
    p.wait(stok[0]); p('s_barrier')
    p.stamp(4)
    ftok = {}
    for f in tr_items(p, role, 0, variants, ftok): f()
    kvp_toks = []
    p.last_ds_writes = []
    phases = epilogue1_items(p, role, free_oct, kvp_toks)
    st = dict(cur=0, done=-1, kvp_S=0, flagged=False)
    dmaq = dmaq0
    for S in range(64):
        grp = 1 if S < 32 else 2
        tl = tiles_of(role, grp); G = len(tl); s = S & 31
        def mk(j, S=S, s=s, tl=tl, G=G, grp=grp):
            var, lo, rds, sw = tl[j]
            b = wf(S, j, G); Wr = 'a[%d:%d]' % (b, b + 3)
            if grp == 1: d = 'a[%d:%d]' % (ACC1 + 16 * j, ACC1 + 16 * j + 15)
            else: d = 'v[%d:%d]' % (ACC2 + 16 * j, ACC2 + 16 * j + 15)
            c0 = '0'
            if grp == 1 and role == 'AB' and j in (0, 1, 4, 5): c0 = 'a[%d:%d]' % (EPSB, EPSB + 15)
            c = c0 if s == 0 else d
            A, B = (xf(s), Wr) if sw else (Wr, xf(s))
            def f():
                h = G // 2
                tk = []
                if j % h == 0: tk += [t for jj in range(j, j + h) for t in ftok[(S, jj)]]
                p.wait(tk)
                p('v_mfma_f32_32x32x16_bf16 %s, %s, %s, %s' % (d, A, B, c))
            return f
        mf = [mk(j) for j in range(G)]
        if S == 32: p.stamp(5)
        p.stamp(100 + S)
        if S == 1: free_oct.extend([('a', EPSB), ('a', EPSB + 8)])
        if S == 33: free_oct.extend([('a', WF + 32), ('a', WF + 40)])
        def barrier_block(S=S):
            Tn = (S + 2) >> 2
            toks = list(stok[Tn]) if Tn <= 15 else []
            flag_kvp = (role == 'AB' and len(kvp_toks) == 2 and not st['flagged'] and est[S] >= est[st['kvp_S']] + 1300)
            if flag_kvp: toks += kvp_toks
            adv_phase = (st['done'] >= 0 and st['done'] < S and st['cur'] + 1 < len(phases))
            if adv_phase: toks += p.last_ds_writes
            p.wait(toks)
            p('s_barrier')
            if adv_phase: st['cur'] += 1; st['done'] = -1
            if flag_kvp:
                p('s_lshl_b32 s%d, s%d, 4' % (sT1, sU)); p('s_add_u32 s%d, s%d, s%d' % (sT1, sT1, sI))
                uniform_flag(p, FLG_KVP, sT1); st['flagged'] = True
            Td = (S >> 2) - 1 + NRING
            if NRING + 1 <= Td <= 15:
                it, stok[Td] = dma_stage_items(p, role, Td); dmaq.extend(it)
        mf[0]()
        L_tr = tr_items(p, role, S + 1, variants, ftok) if S + 1 < 64 else []
        L_misc = norm_items(p, s + 1, vT) if (grp == 1 and s + 1 < 32) else []
        if TOUCH and S == 5: L_misc = L_misc + [lambda: touch_g2(p)]
        if TOUCH and S == 9: L_misc = L_misc + [lambda: touch_wo(p)]
        if S == 31 and role == 'AB': L_misc = [T(p, 'v_mov_b32 v%d, s%d' % (vT + 7, sONES))]
        L_dma = []
        if dmaq: L_dma.append(dmaq.pop(0))
        if dmaq and len(dmaq) > 3: L_dma.append(dmaq.pop(0))
        if (len(L_dma) < 1 or ((grp == 1) or S >= 48) and len(L_dma) < 2):
            f = next_w2_item(S)
            if f is not None: L_dma.append(f)
        L_w2tr = staged_to_reg(S)
        L_epi = []
        if grp == 2 and st['cur'] < len(phases) and phases[st['cur']]:
            ph = phases[st['cur']]
            last = (45 if st['cur'] == 0 else 62) if role == 'AB' else 50
            left = max(1, last - S + 1)
            n = (len(ph) + left - 1) // left
            L_epi = ph[:n]; del ph[:n]
            if not ph: st['done'] = S
            if role == 'AB' and st['cur'] == 1 and len(kvp_toks) < 2: st['kvp_S'] = S
        Ls = [L_tr, L_misc, L_epi, L_w2tr, L_dma]
        if S % 4 == 2:
            h = G // 2
            part = lambda L, lo, hi, n: L[(len(L) * lo) // n:(len(L) * hi) // n]
            interleave(p, mf[1:h + 1], [part(L, 0, h, G - 1) for L in Ls])
            barrier_block()
            interleave(p, mf[h + 1:], [part(L, h, G - 1, G - 1) for L in Ls])
        else:
            interleave(p, mf[1:], Ls)
    for ph in phases: assert not ph, len(ph)
    assert not dmaq
    if role == 'AB': assert st['flagged']
    p.stamp(6)
    p('s_nop 7'); p('s_nop 3')
    hst = []
    for j in range(4):
        for f in mlp_epi_items(p, ACC2 + 16 * j, False, vT + 12 * (j & 1), sHST2, 1024 * j, hst): f()
    p.stamp(7)
    p.c('W2 state: pos=%d wo=%d loc=%s' % (W['pos'], wo_next[0], sorted(W['loc'].items())))
    return dict(W=W, free_oct=free_oct, wo_loc=wo_loc, wo_tok=wo_tok, hst=hst, next_w2_item=next_w2_item, tr4_items=tr4_items, slot_info=slot_info, staged_to_reg=staged_to_reg)

def phase2(p, role, info):
    W, free_oct = info['W'], info['free_oct']
    sH0, sH1, sPQ0, sPQ1, sKZ, sF = sL[0], sL[1], sL[2], sL[3], sL[4], sL[5]
    p.wait(info['hst'][-1]); p('s_barrier')
    p('s_lshl_b32 s%d, s%d, 4' % (sT1, sI)); p('s_add_u32 s%d, s%d, s%d' % (sT1, sT1, sC))
    uniform_flag(p, FLG_H, sT1)
    p.stamp(8)
    while True:
        f = info['next_w2_item'](64)
        if f is None:
            if W['pos'] == 28 and len(info['wo_loc']) == 8: break
            it = info['staged_to_reg'](64, force=True)
            if not it: break
            for g in it: g()
            continue
        f()
    if not (W['pos'] == 28 and len(info['wo_loc']) == 8):
        print(W['loc'], W['slot_owner'], info['wo_loc']); raise SystemExit('W2 overflow')
    vPH, vPZ, vPD = vT + 16, vT + 17, vT + 18
    p('v_and_b32 v%d, 3, v%d' % (vPH, vL)); p('v_lshlrev_b32 v%d, 7, v%d' % (vPH, vPH))
    p('s_lshr_b32 s%d, s%d, 1' % (sT0, sRT)); p('s_lshl_b32 s%d, s%d, 4' % (sT0, sT0)); p('s_lshl_b32 s%d, s%d, 2' % (sT1, sW)); p('s_add_u32 s%d, s%d, s%d' % (sT0, sT0, sT1))
    p('s_lshl_b32 s%d, s%d, 7' % (sT0, sT0)); p('s_add_u32 s%d, s%d, 0x%x' % (sG2[0], sT0, FLG_H))
    p('v_and_b32 v%d, 31, v%d' % (vPZ, vL)); p('v_lshlrev_b32 v%d, 7, v%d' % (vPZ, vPZ))
    p('s_lshl_b32 s%d, s%d, 12' % (sG2[1], sW)); p('s_add_u32 s%d, s%d, 0x%x' % (sG2[1], sG2[1], FLG_KVZ))
    p('s_mul_i32 s%d, s%d, %d' % (sH0, sRT, 2 * 112 * 1024)); p('s_mul_i32 s%d, s%d, %d' % (sT0, sW, 28 * 1024)); p('s_add_u32 s%d, s%d, s%d' % (sH0, sH0, sT0))
    p('s_and_b32 s%d, s%d, 3' % (sT0, sRT)); p('s_lshl_b32 s%d, s%d, 13' % (sT0, sT0)); p('s_add_u32 s%d, s%d, s%d' % (sH0, sH0, sT0))
    p('s_add_u32 s%d, s%d, %d' % (sH1, sH0, 112 * 1024))
    p('s_lshl_b32 s%d, s%d, 16' % (sPQ0, sRT)); p('s_lshl_b32 s%d, s%d, 13' % (sT0, sW)); p('s_add_u32 s%d, s%d, s%d' % (sPQ0, sPQ0, sT0)); p('s_add_u32 s%d, s%d, 0x%x' % (sPQ0, sPQ0, PQ_OFF))
    p('s_add_u32 s%d, s%d, 32768' % (sPQ1, sPQ0))
    p('s_add_u32 s%d, s%d, 0x%x' % (sKZ, sT0, KVZ_OFF))
    KR = vT + 8
    if role == 'CD':
        p('s_lshl_b32 s%d, s%d, 1' % (sU, sQD)); p('s_add_u32 s%d, s%d, s%d' % (sU, sU, sMEM)); p('s_sub_u32 s%d, s%d, 2' % (sU, sU))
        p('v_and_b32 v%d, 15, v%d' % (vT + 6, vL)); p('v_lshlrev_b32 v%d, 7, v%d' % (vT + 6, vT + 6))
        p('s_lshl_b32 s%d, s%d, 11' % (sF, sU)); p('s_add_u32 s%d, s%d, 0x%x' % (sF, sF, FLG_KVP))
        lw = p.newlabel('L_kp')
        p('s_cmp_lg_u32 s%d, 0' % sW); p('s_cbranch_scc1 %s' % lw)
        n_before = (p.vm_issued, p.vm_done)
        p('s_waitcnt vmcnt(0)')
        p('buffer_load_dword v%d, v%d, %s, s%d offen %s' % (vPD, vT + 6, srd(S_WS), sF, LD)); p('s_waitcnt vmcnt(0)')
        poll_check(p, None, vT + 6, sF, vPD)
        p.label(lw)
        p('s_barrier')
        p('v_lshrrev_b32 v%d, 3, v%d' % (vT + 6, vL)); p('v_lshlrev_b32 v%d, 12, v%d' % (vT + 6, vT + 6))
        p('v_bfe_u32 v%d, v%d, 2, 1' % (vT + 7, vL)); p('v_lshl_add_u32 v%d, v%d, 10, v%d' % (vT + 6, vT + 7, vT + 6))
        p('v_and_b32 v%d, 3, v%d' % (vT + 7, vL)); p('v_lshl_add_u32 v%d, v%d, 4, v%d' % (vT + 6, vT + 7, vT + 6))
        p('s_lshl_b32 s%d, s%d, 2' % (sF, sU)); p('s_add_u32 s%d, s%d, s%d' % (sF, sF, sW))
        p('s_lshl_b32 s%d, s%d, 15' % (sT0, sF)); p('s_lshl_b32 s%d, s%d, 6' % (sT1, sI)); p('s_add_u32 s%d, s%d, s%d' % (sT0, sT0, sT1)); p('s_add_u32 s%d, s%d, 0x%x' % (sT0, sT0, KVP_OFF))
        krt = [p.vm('buffer_load_dwordx4 v[%d:%d], v%d, %s, s%d offen %s%s' % (KR + 4 * k, KR + 4 * k + 3, vT + 6, srd(S_WS), sT0, 'offset:2048 ' if k else '', LD)) for k in range(2)]
        p.wait(krt)
        for r in range(4): p('v_add_f32 v%d, v%d, v%d' % (KR + r, KR + r, KR + 4 + r))
        for r in range(4): p('v_mov_b32 v%d, v%d' % (KR + 4 + r, KR + r))
        p('s_nop 1')
        for r in range(4): p('v_permlane32_swap_b32 v%d, v%d' % (KR + r, KR + 4 + r))
        p('s_nop 1')
        for r in range(4): p('v_add_f32 v%d, v%d, v%d' % (KR + r, KR + r, KR + 4 + r))
        for r in range(4): p('v_mov_b32 v%d, v%d' % (KR + 4 + r, KR + r))
        p('s_nop 1')
        for r in range(4): p('v_permlane16_swap_b32 v%d, v%d' % (KR + r, KR + 4 + r))
        p('s_nop 1')
        for r in range(4): p('v_add_f32 v%d, v%d, v%d' % (KR + r, KR + r, KR + 4 + r))
        p('s_nop 1')
        for r in range(4): p('v_add_f32_dpp v%d, v%d, v%d row_ror:8 row_mask:0xf bank_mask:0xf' % (KR + 4 + r, KR + r, KR + r))
        p('v_cvt_pk_bf16_f32 v%d, v%d, v%d' % (KR, KR + 4, KR + 5)); p('v_cvt_pk_bf16_f32 v%d, v%d, v%d' % (KR + 1, KR + 6, KR + 7))
        p('v_and_b32 v%d, 3, v%d' % (vT + 7, vL)); p('v_lshlrev_b32 v%d, 4, v%d' % (vT + 6, vT + 7))
        p('v_bfe_u32 v%d, v%d, 2, 1' % (vT + 7, vL)); p('v_lshl_add_u32 v%d, v%d, 3, v%d' % (vT + 6, vT + 7, vT + 6))
        p('s_lshl_b32 s%d, s%d, 10' % (sT0, sF)); p('s_lshl_b32 s%d, s%d, 6' % (sT1, sI)); p('s_add_u32 s%d, s%d, s%d' % (sT0, sT0, sT1)); p('s_add_u32 s%d, s%d, 0x%x' % (sT0, sT0, KVZ_OFF))
        p('s_mov_b64 s[%d:%d], exec' % (sEX, sEX + 1)); p('s_mov_b64 exec, 0xff')
        kzs = p.vm('buffer_store_dwordx2 v[%d:%d], v%d, %s, s%d offen %s' % (KR, KR + 1, vT + 6, srd(S_WS), sT0, ST))
        p('s_mov_b64 exec, s[%d:%d]' % (sEX, sEX + 1))
        p.wait(kzs); p('s_barrier')
        p('s_lshl_b32 s%d, s%d, 4' % (sT1, sU)); p('s_add_u32 s%d, s%d, s%d' % (sT1, sT1, sI))
        uniform_flag(p, FLG_KVZ, sT1)
    def to_reg(pos):
        kind, where = W['loc'][pos]
        oc = free_oct.pop(0)
        if kind == 'stage': _, _, regs, off = info['slot_info'](where)
        else: regs, off = (vR0, vR1), where
        W['loc'][pos] = ('reg', oc)
        for f in info['tr4_items'](pos, regs, off, oc, W['ttok'].setdefault(pos, [])): f()
    tk = poll_issue(p, vPH, sG2[0], vPD); poll_check(p, tk, vPH, sG2[0], vPD)
    p.stamp(9)
    NR = 16; ht = {}
    def hb(j, mt): return XF + 8 * (j % NR) + 4 * mt
    def ld_h(j):
        ht[j] = []
        for mt, so in enumerate((sH0, sH1)):
            r = hb(j, mt)
            ht[j].append(p.vm('buffer_load_dwordx4 v[%d:%d], v%d, %s, s%d offen %s%s' % (r, r + 3, vST, srd(S_WS), so, ('offset:%d ' % (1024 * (j & 3))) if j & 3 else '', LD)))
        if j & 3 == 3 and j < 27:
            p('s_movk_i32 s%d, 4096' % sT2); p('s_cmp_eq_u32 s%d, %d' % (sW2WRAP, j + 1)); p('s_cselect_b32 s%d, 0x%x, s%d' % (sT2, (4096 - 28 * 1024) & 0xffffffff, sT2))
            p('s_add_u32 s%d, s%d, s%d' % (sH0, sH0, sT2)); p('s_add_u32 s%d, s%d, s%d' % (sH1, sH1, sT2))
    for j in range(NR): ld_h(j)
    for pos in range(28):
        if W['loc'][pos][0] != 'reg': to_reg(pos)
    ACC = ACC2
    PQR, KZR = XF, XF + 96
    ND = vT + 0
    pqt, kzt = {}, {}
    XR = vT + 24; ga = vT + 22; zt = None
    for j in range(28):
        p.wait(ht[j] + W['ttok'][j])
        oc = W['loc'][j][1]
        for nt in range(2):
            for mt in range(2):
                d = ACC + 16 * (2 * nt + mt); r = hb(j, mt)
                p('v_mfma_f32_32x32x16_bf16 v[%d:%d], %s[%d:%d], v[%d:%d], %s' % (d, d + 15, oc[0], oc[1] + 4 * nt, oc[1] + 4 * nt + 3, r, r + 3, '0' if j == 0 else 'v[%d:%d]' % (d, d + 15)))
        if j + NR < 28: ld_h(j + NR)
        if 16 <= j < 24:
            hh = j - 16
            for mt, so in enumerate((sPQ0, sPQ1)):
                r = PQR + 8 * hh + 4 * mt
                pqt[(hh, mt)] = p.vm('buffer_load_dwordx4 v[%d:%d], v%d, %s, s%d offen %s%s' % (r, r + 3, vST, srd(S_WS), so, ('offset:%d ' % (1024 * (hh & 3))) if hh & 3 else '', LD))
            if hh == 3: p('s_add_u32 s%d, s%d, 4096' % (sPQ0, sPQ0)); p('s_add_u32 s%d, s%d, 4096' % (sPQ1, sPQ1))
        if j == 12: zt = poll_issue(p, vPZ, sG2[1], vPD)
        if j == 16:
            poll_check(p, zt, vPZ, sG2[1], vPD)
            for hh in range(8):
                kzt[hh] = p.vm('buffer_load_dwordx4 v[%d:%d], v%d, %s, s%d offen %s%s' % (KZR + 4 * hh, KZR + 4 * hh + 3, vST, srd(S_WS), sKZ, ('offset:%d ' % (1024 * (hh & 3))) if hh & 3 else '', LD))
                if hh == 3: p('s_add_u32 s%d, s%d, 4096' % (sKZ, sKZ))
        if j == 20:
            p('v_lshrrev_b32 v%d, 3, v0' % ga); p('v_lshlrev_b32 v%d, 10, v%d' % (ga, ga))
            p('v_and_b32 v%d, 7, v0' % (vT + 23)); p('v_lshl_add_u32 v%d, v%d, 4, v%d' % (ga, vT + 23, ga))
            p('s_lshl_b32 s%d, s%d, 16' % (sHST1, sRT)); p('s_lshl_b32 s%d, s%d, 7' % (sT1, sCT)); p('s_add_u32 s%d, s%d, s%d' % (sHST1, sHST1, sT1))
            p('s_add_u32 s%d, s%d, 32768' % (sHST2, sHST1))
            xt = [p.vm('buffer_load_dwordx4 v[%d:%d], v%d, %s, s%d offen' % (XR + 4 * k, XR + 4 * k + 3, ga, srd(S_X), (sHST1, sHST2)[k])) for k in range(2)]
    p.stamp(10)
    ND = XF + 64
    wfr = {}
    FBS = [0, 8, 16]
    def wo_tr(hh):
        p.wait(info['wo_tok'][hh]); t = []
        fb = FBS[hh % 3]; regs, off = info['wo_loc'][hh]
        for nt, reg in enumerate(regs):
            for rd in range(2):
                b = fb + 4 * nt + 2 * rd
                t.append(p.lg('ds_read_b64_tr_b16 a[%d:%d], v%d offset:%d' % (b, b + 1, reg, off + 1024 * rd)))
        wfr[hh] = t
    def nd_mfma(u):
        hh, mt = u >> 1, u & 1; d = ND + 16 * (u & 1)
        p.wait([kzt[hh], pqt[(hh, mt)]])
        p('v_mfma_f32_32x32x16_bf16 v[%d:%d], v[%d:%d], v[%d:%d], 0' % (d, d + 15, KZR + 4 * hh, KZR + 4 * hh + 3, PQR + 8 * hh + 4 * mt, PQR + 8 * hh + 4 * mt + 3))
    def o_valu(u):
        hh = u >> 1; d = ND + 16 * (u & 1)
        num, den = (d, d + 8) if hh % 2 == 0 else (d + 8, d)
        t = vT + 8 * (u & 1)
        p('v_add_f32 v%d, s%d, v%d' % (t + 4, sEPS, den)); p('v_rcp_f32 v%d, v%d' % (t + 4, t + 4)); p('s_nop 0')
        for r in range(8): p('v_mul_f32 v%d, v%d, v%d' % (num + r, num + r, t + 4))
        for q in range(4): p('v_cvt_pk_bf16_f32 v%d, v%d, v%d' % (t + q, num + 2 * q, num + 2 * q + 1))
    def wo_mfma(u):
        hh, mt = u >> 1, u & 1
        p.wait(wfr[hh])
        fb = FBS[hh % 3]; t = vT + 8 * (u & 1)
        for nt in range(2):
            d = ACC + 16 * (2 * nt + mt)
            p('v_mfma_f32_32x32x16_bf16 v[%d:%d], a[%d:%d], v[%d:%d], v[%d:%d]' % (d, d + 15, fb + 4 * nt, fb + 4 * nt + 3, t, t + 3, d, d + 15))
    p('s_nop 3')
    wo_tr(0); wo_tr(1)
    nd_mfma(0); nd_mfma(1)
    for u in range(16):
        o_valu(u)
        if u + 2 < 16: nd_mfma(u + 2)
        if u % 2 == 0 and (u >> 1) + 2 < 8: wo_tr((u >> 1) + 2)
        wo_mfma(u)
    p.stamp(11)
    p.wait_all(vm=False); p('s_barrier')
    wa = vT
    p('v_and_b32 v%d, 31, v%d' % (wa, vL)); p('v_mul_u32_u24 v%d, 272, v%d' % (wa, wa))
    p('v_lshrrev_b32 v%d, 5, v%d' % (wa + 1, vL)); p('v_lshl_add_u32 v%d, v%d, 4, v%d' % (wa, wa + 1, wa))
    p('s_mul_i32 s%d, s%d, 17408' % (sT0, sW)); p('v_add_u32 v%d, s%d, v%d' % (wa, sT0, wa))
    ra = vT + 2
    p('v_lshrrev_b32 v%d, 3, v0' % ra); p('v_mul_u32_u24 v%d, 272, v%d' % (ra, ra))
    p('v_and_b32 v%d, 7, v0' % (vT + 3)); p('v_lshl_add_u32 v%d, v%d, 5, v%d' % (ra, vT + 3, ra))
    p('s_nop 3')
    for mt in range(2):
        for nt in range(2):
            for q in range(4):
                r = ACC + 16 * (2 * nt + mt) + 4 * q
                p.lg('ds_write_b128 v%d, v[%d:%d] offset:%d' % (wa, r, r + 3, mt * 8704 + nt * 128 + q * 32))
    p.wait_all(vm=False); p('s_barrier')
    R = XF; rt = {}
    for j in range(2):
        for wv in range(4):
            for hh in range(2):
                r = R + 32 * j + 8 * wv + 4 * hh
                rt[(j, wv, hh)] = p.lg('ds_read_b128 v[%d:%d], v%d offset:%d' % (r, r + 3, ra, wv * 17408 + j * 8704 + hh * 16))
    for j in range(2):
        p.wait([rt[(j, wv, hh)] for wv in range(4) for hh in range(2)])
        b = R + 32 * j
        for r in range(8): p('v_add_f32 v%d, v%d, v%d' % (b + r, b + r, b + 8 + r))
        for r in range(8): p('v_add_f32 v%d, v%d, v%d' % (b + 16 + r, b + 16 + r, b + 24 + r))
        for r in range(8): p('v_add_f32 v%d, v%d, v%d' % (b + r, b + r, b + 16 + r))
        p.wait(xt[j])
        t = vT + 16
        for q in range(4):
            x = XR + 4 * j + q
            p('v_lshlrev_b32 v%d, 16, v%d' % (t, x)); p('v_and_b32 v%d, 0xffff0000, v%d' % (t + 1, x))
            p('v_add_f32 v%d, v%d, v%d' % (b + 2 * q, b + 2 * q, t)); p('v_add_f32 v%d, v%d, v%d' % (b + 2 * q + 1, b + 2 * q + 1, t + 1))
            p('v_cvt_pk_bf16_f32 v%d, v%d, v%d' % (x, b + 2 * q, b + 2 * q + 1))
        p.vm('buffer_store_dwordx4 v[%d:%d], v%d, %s, s%d offen' % (XR + 4 * j, XR + 4 * j + 3, ga, srd(S_OUT), (sHST1, sHST2)[j]))
    la = p.newlabel('L_ns')
    p('s_or_b32 s%d, s2, s%d' % (sT1, sW)); p('s_cmp_lg_u32 s%d, 0' % sT1); p('s_cbranch_scc1 %s' % la)
    p('s_barrier') if False else None
    p('v_mov_b32 v%d, s%d' % (vT + 4, sNONCE)); p('v_mov_b32 v%d, 0' % (vT + 5)); p('s_mov_b32 s%d, 0x%x' % (sT1, NONCE_OFF))
    p('s_mov_b64 exec, 1')
    p('buffer_store_dword v%d, v%d, %s, s%d offen %s' % (vT + 4, vT + 5, srd(S_WS), sT1, ST))
    p.label(la)
    p.stamp(12)
    if p.stamps_on:
        p('s_mov_b64 exec, -1')
        p('s_waitcnt vmcnt(0)'); p.stamp_rt(13)
        p.stamp_dump(srd(S_WS), 0x8000000, 14)

def build(stamps=None):
    p = Prog(); p.stamps_on = stamps is not None
    if stamps: p.stamp_map = {i: k for k, i in enumerate(stamps)}
    p('s_cmp_ge_u32 s2, 256'); p('s_cbranch_scc1 L_end')
    prologue(p)
    pro = list(p.ins)
    st = (p.vm_issued, p.vm_done, p.lg_issued, p.lg_done)
    paths = {}
    for role in ('AB', 'CD'):
        p.vm_issued, p.vm_done, p.lg_issued, p.lg_done = st
        n0 = len(p.ins)
        info = build_role(p, role)
        phase2(p, role, info)
        paths[role] = p.ins[n0:]
    probs = []
    head = pro + ['s_cmp_ge_u32 s%d, 2' % sMEM, 's_cbranch_scc1 L_cd']
    out = list(head)
    for role in ('AB', 'CD'):
        fixed, n = fix_hazards(head + paths[role])
        assert fixed[:len(head)] == head, 'hazard in prologue'
        body = fixed[len(head):]
        print(role, 'auto-inserted wait states:', n, 'instrs', len(body))
        probs += check_hazards(head + body, role) + check_waits(head + body, 'w' + role)
        if role == 'CD': out.append('L_cd:')
        out += body
        if role == 'AB': out.append('s_branch L_end')
        paths[role] = body
    out.append('L_end:')
    p.ins = out
    return p, probs, paths

if __name__ == '__main__':
    sys.path.insert(0, 'dev')
    from asmlib import make_file
    stamps = [int(x) for x in sys.argv[2].split(',')] if len(sys.argv) > 2 else None
    p, probs, paths = build(stamps)
    for x in probs[:30]: print(x)
    for l in p.ins:
        if l.startswith('; W2 state'): print(l[:700])
    print('problems:', len(probs), 'regs', maxregs(p.ins), 'n', len(p.ins))
    ks = [dict(name=NAME, body=p.text(), grid=(256, 1, 1), block=(256, 1, 1), lds=163840, vgpr=512, accum=256, sgpr=102)]
    txt = make_file(ks, single=True)
    if 'CODE_STRIDE' in txt:
        import subprocess, re as _re
        tmp = txt.replace('CODE_STRIDE', '0x780')
        open('_cs.s', 'w').write(tmp)
        subprocess.run(['clang', '-x', 'assembler', '-target', 'amdgcn-amd-amdhsa', '-mcpu=gfx950', '-c', '_cs.s', '-o', '_cs.o'], check=True)
        sym = subprocess.run(['llvm-readelf', '-s', '_cs.o'], capture_output=True, text=True).stdout
        addr = {}
        for l in sym.splitlines():
            f = l.split()
            if len(f) >= 8 and f[7] in ('L_end', NAME): addr[f[7]] = int(f[1], 16)
        size = addr['L_end'] - addr[NAME]
        stride = (size // 33) & ~127
        print('code size', size, 'stride', stride)
        assert 31 * stride + stride + 4 <= size
        txt = txt.replace('CODE_STRIDE', '0x%x' % stride)
    open(sys.argv[1], 'w').write(txt)
```

```python
import sys, os
from fw import *

NAME = 'parallel_sum__linear_attn_block__glu_gated_reglu__prompt_kernel'
H_OFF, PQ_OFF, KVP_OFF, KVZ_OFF, STAT_OFF = 0x0, 0x800000, 0xA00000, 0xB00000, 0xD00000
FLG_H, FLG_KVP, FLG_KVZ, NONCE_OFF = 0xC00000, 0xC10000, 0xC20000, 0xC30000
WS_BYTES = 268435456
SPARE = 131072
ST = 'sc1'; LD = 'sc1'; DST = 'sc1'
TOUCH = int(os.environ.get('TOUCH', '1'))
NRING = 5
LAT = int(os.environ.get('LAT', '2600'))
SLEEP = 6
TCODE = int(os.environ.get('TCODE', '1'))
ROTMODE = int(os.environ.get('ROTMODE', '0'))
EARLY12 = int(os.environ.get('EARLY12', '0'))

S_X, S_WQ, S_WG, S_WU, S_WS, S_WD, S_WO, S_OUT = 4, 8, 12, 16, 20, 24, 28, 32
sW, sI, sMEM, sQD, sWB = 36, 37, 38, 39, 40
sLOG2E, sEPS, sONES = 41, 42, 43
sL = [44, 45, 46, 47, 48, 49]
sG2 = [50, 51]
sHST1, sHST1b, sHST2, sPQ, sKVP = 52, 53, 54, 55, 56
sT0, sT1, sT2 = 57, 58, 59
sNONCE, sSPIN = 60, 3
sRT, sCT = 61, 62
sWD0, sWD1, sWO0, sWO1 = 63, 64, 65, 66
sU, sS2, sWRAP = 67, 68, 69
sStepQ, sWrapQ, sStepG, sWrapG, sInc = 88, 89, 90, 91, 92
sC = 93
sEX = 94
sMASK, sROT = 96, 97
sXB, sKX, sIncX = 98, 99, 100
sW2WRAP = 101
def srd(b): return 's[%d:%d]' % (b, b + 3)

vL, vST, vD2 = 1, 2, 3
vWA, vWB, vWC, vWD = 4, 5, 6, 7
vS0, vS1 = 8, 9
vR0, vR1 = 10, 11
vTR = 12
vT = 24
vRS, vNM = 62, 63
ACC2 = 64
XF = 128
vX = [72, 73, 74, 75]
vXA = [76, 77, 78, 79]
vDUM = 80; vTA = 81
ACC1, WF, EPSB = 0, 96, 144
AOCT = [160 + 8 * k for k in range(12)]
def xf(s): return 'v[%d:%d]' % (XF + 4 * s, XF + 4 * s + 3)
def T(p, s): return lambda: p(s)
KVS = [4096, 10240, 16384, 22528]

class Mark:
    def __init__(self, fn): self.fn = fn
    def __call__(self): self.fn()

def slot_base_const(S):
    Tg = S >> 2
    if Tg == 0: return SPARE + 6144 * (S & 3)
    return 32768 * (S & 3) + 6144 * ((Tg - 1) % NRING)

def tiles_of(role, grp):
    if grp == 2: return [('m%d' % t, 0, 512, False) for t in range(4)]
    if role == 'AB':
        return [('q0', 0, 512, True), ('q1', 0, 512, True), ('q0', 2048, 512, True), ('q1', 2048, 512, True), ('q0', 4096, 512, False), ('q1', 4096, 512, False)]
    return [('m%d' % t, 0, 512, False) for t in range(4)] + [('h0', 4096, 256, False), ('h1', 4096, 256, False)]
def wf(S, j, G): return WF + (S & 1) * 4 * G + 4 * j

def tr_items(p, role, S, variants, ftok):
    tl = tiles_of(role, 1 if S < 32 else 2); G = len(tl)
    items = []; blk = slot_base_const(S)
    for j, (var, lo, rds, sw) in enumerate(tl):
        ftok[(S, j)] = []
        for rd in range(2):
            const = blk + lo + rd * rds
            win, off = const >> 16, const & 0xffff
            b = wf(S, j, G) + 2 * rd
            def f(b=b, reg=variants[var][win], off=off, key=(S, j)):
                ftok[key].append(p.lg('ds_read_b64_tr_b16 a[%d:%d], v%d offset:%d' % (b, b + 1, reg, off)))
            items.append(f)
    return items

def prologue(p):
    if p.stamps_on: p('s_memrealtime s[98:99]'); p('s_memtime s[100:101]')
    p('s_load_dwordx2 s[70:71], s[0:1], 0')
    p('s_load_dwordx2 s[86:87], s[0:1], 72')
    p('s_load_dwordx4 s[72:75], s[0:1], 8')
    p('s_load_dwordx4 s[76:79], s[0:1], 32')
    p('s_load_dwordx4 s[80:83], s[0:1], 48')
    p('v_and_b32 v%d, 63, v0' % vL)
    p('v_lshrrev_b32 v%d, 6, v0' % vT)
    p('s_and_b32 s%d, s2, 7' % sT0); p('s_lshr_b32 s%d, s2, 3' % sT1)
    p('v_readfirstlane_b32 s%d, v%d' % (sW, vT))
    p('s_lshr_b32 s%d, s%d, 1' % (sQD, sT0))
    p('s_lshl_b32 s%d, s%d, 2' % (sRT, sT0)); p('s_and_b32 s%d, s%d, 3' % (sT2, sT1)); p('s_add_u32 s%d, s%d, s%d' % (sRT, sRT, sT2))
    p('s_lshr_b32 s%d, s%d, 2' % (sCT, sT1))
    p('s_and_b32 s%d, s%d, 1' % (sT0, sT0)); p('s_lshl_b32 s%d, s%d, 3' % (sT0, sT0))
    p('s_and_b32 s%d, s%d, 7' % (sI, sT1)); p('s_add_u32 s%d, s%d, s%d' % (sI, sI, sT0))
    p('s_lshr_b32 s%d, s%d, 3' % (sMEM, sT1))
    p('s_lshl_b32 s%d, s%d, 2' % (sC, sQD)); p('s_add_u32 s%d, s%d, s%d' % (sC, sC, sMEM))
    if ROTMODE == 0:
        p('s_lshl_b32 s%d, s%d, 1' % (sROT, sMEM)); p('s_add_u32 s%d, s%d, s%d' % (sROT, sROT, sI)); p('s_and_b32 s%d, s%d, 7' % (sROT, sROT))
    else:
        p('s_and_b32 s%d, s%d, 1' % (sROT, sI)); p('s_lshl_b32 s%d, s%d, 1' % (sROT, sROT)); p('s_add_u32 s%d, s%d, s%d' % (sROT, sROT, sMEM)); p('s_lshl_b32 s%d, s%d, 1' % (sROT, sROT)); p('s_and_b32 s%d, s%d, 7' % (sROT, sROT))
    p('s_lshl_b32 s%d, s%d, 7' % (sT0, sI)); p('s_lshl_b32 s%d, s%d, 3' % (sT1, sC)); p('s_add_u32 s%d, s%d, s%d' % (sT0, sT0, sT1))
    p('s_lshl_b32 s%d, s%d, 1' % (sT1, sW)); p('s_add_u32 s%d, s%d, s%d' % (sT2, sT0, sT1)); p('s_lshl_b32 s%d, s%d, 10' % (sT0, sT2))
    p('v_lshrrev_b32 v%d, 5, v%d' % (vT, vL)); p('v_lshlrev_b32 v%d, 10, v%d' % (vT, vT))
    p('v_and_b32 v%d, 31, v%d' % (vT + 1, vL)); p('v_lshl_add_u32 v%d, v%d, 5, v%d' % (vT, vT + 1, vT))
    p('v_mov_b32 v%d, 0' % (vT + 2)); p('s_mov_b32 s%d, 0x%x' % (sT1, NONCE_OFF))
    p('s_lshl_b32 s%d, s%d, 4' % (sHST2, sT2)); p('s_add_u32 s%d, s%d, 0x%x' % (sHST2, sHST2, STAT_OFF))
    a, b, c = vT + 4, vT + 5, vT + 6
    p('v_lshrrev_b32 v%d, 3, v%d' % (a, vL)); p('v_lshlrev_b32 v%d, 10, v%d' % (a, a))
    p('v_and_b32 v%d, 7, v%d' % (b, vL)); p('v_lshrrev_b32 v%d, 4, v%d' % (c, vL)); p('v_xor_b32 v%d, v%d, v%d' % (b, b, c))
    p('v_lshl_add_u32 v%d, v%d, 4, v%d' % (vX[0], b, a))
    p('s_lshl_b32 s%d, s%d, 7' % (sT1, sROT)); p('v_add_u32 v%d, s%d, v%d' % (vX[0], sT1, vX[0]))
    p('v_xor_b32 v%d, 64, v%d' % (vX[1], vX[0])); p('v_add_u32 v%d, 14336, v%d' % (vX[2], vX[0])); p('v_add_u32 v%d, 7168, v%d' % (vX[1], vX[1]))
    p('v_add_u32 v%d, 14336, v%d' % (vX[3], vX[1]))
    p('s_mov_b32 s%d, 0x%x' % (sT1, NONCE_OFF))
    p('s_lshl_b32 s%d, s%d, 15' % (sWB, sW))
    p('s_waitcnt lgkmcnt(0)')
    if p.stamps_on: p('s_mov_b32 s88, s98'); p('s_mov_b32 s89, s100')
    def mk(base, src, n):
        p('s_mov_b32 s%d, s%d' % (base, src)); p('s_mov_b32 s%d, s%d' % (base + 1, src + 1))
        p('s_mov_b32 s%d, 0x%x' % (base + 2, n)); p('s_mov_b32 s%d, 0x00020000' % (base + 3))
    mk(S_X, 70, 2048 * 1024); mk(S_WS, 86, WS_BYTES)
    XR = vT + 8
    p.xl = [p.vm('buffer_load_dwordx4 v[%d:%d], v%d, %s, s%d offen %s' % (XR + 4 * k, XR + 4 * k + 3, vT, srd(S_X), sT0, 'offset:16' if k else '')) for k in range(2)]
    p.nl = p.vm('buffer_load_dword v%d, v%d, %s, s%d offen %s' % (vT + 3, vT + 2, srd(S_WS), sT1, LD))
    if TCODE: touch_code(p)
    p('s_lshl_b32 s%d, s%d, 2' % (sXB, sI)); p('s_add_u32 s%d, s%d, s%d' % (sXB, sXB, sW)); p('s_lshl_b32 s%d, s%d, 15' % (sXB, sXB))
    p('s_mov_b32 s%d, s%d' % (sKX, sROT))
    mk(S_WQ, 72, 512 * 3072); mk(S_WO, 74, 512 * 1024); mk(S_WG, 76, 512 * 3584); mk(S_WU, 78, 512 * 3584); mk(S_WD, 80, 1792 * 1024); mk(S_OUT, 82, 2048 * 1024)
    if p.stamps_on: p('s_mov_b32 s70, s88'); p('s_mov_b32 s72, s89')
    p('s_lshl_b32 s%d, s%d, 13' % (sS2, sW)); p('s_add_u32 s%d, s%d, %d' % (sS2, sS2, SPARE))
    p('s_sub_u32 s%d, 7, s%d' % (sWRAP, sROT))
    p('s_mov_b32 s%d, 0x3fb8aa3b' % sLOG2E); p('s_mov_b32 s%d, 0x358637bd' % sEPS); p('s_mov_b32 s%d, 0x3f803f80' % sONES); p('s_mov_b32 s%d, 0xffff0000' % sMASK)
    p('s_mov_b32 s%d, %d' % (sStepG, 64 * 3584)); p('s_mov_b32 s%d, 0x%x' % (sWrapG, (-448 * 3584) & 0xffffffff))
    p('s_mov_b32 s%d, %d' % (sStepQ, 64 * 3072)); p('s_mov_b32 s%d, 0x%x' % (sWrapQ, (-448 * 3072) & 0xffffffff))
    p('v_lshlrev_b32 v%d, 4, v%d' % (vST, vL))

def touch_code(p):
    a = vT + 30
    p('s_getpc_b64 s[%d:%d]' % (sEX, sEX + 1))
    p.label('L_pc_here')
    p('s_sub_u32 s%d, s%d, L_pc_here-%s' % (sEX, sEX, NAME)); p('s_subb_u32 s%d, s%d, 0' % (sEX + 1, sEX + 1))
    p('s_lshr_b32 s%d, s2, 3' % sT2); p('s_mul_i32 s%d, s%d, CODE_STRIDE' % (sT2, sT2))
    p('v_lshlrev_b32 v%d, 7, v%d' % (a, vL)); p('v_min_u32 v%d, CODE_STRIDE, v%d' % (a, a)); p('v_add_u32 v%d, s%d, v%d' % (a, sT2, a))
    p.vm('global_load_dword v%d, v%d, s[%d:%d]' % (a + 1, a, sEX, sEX + 1))

def x_dma_items(p):
    toks = [[] for _ in range(8)]; items = []
    for c in range(8):
        def f(c=c):
            p('s_add_u32 m0, s%d, %d' % (sWB, 4096 * c))
            p('s_add_u32 s%d, s%d, 1' % (sKX, sKX)); p('s_and_b32 s%d, s%d, 7' % (sKX, sKX))
            p('s_movk_i32 s%d, 128' % sIncX); p('s_cmp_eq_u32 s%d, 0' % sKX); p('s_cselect_b32 s%d, 0xfffffc80, s%d' % (sIncX, sIncX))
            for q in range(4):
                toks[c].append(p.vm('buffer_load_dwordx4 v%d, %s, s%d offen %slds' % (vX[q], srd(S_X), sXB, ('offset:%d ' % (1024 * q)) if q else '')))
            if c < 7:
                for q in range(4): p('v_add_u32 v%d, s%d, v%d' % (vX[q], sIncX, vX[q]))
        items.append(f)
    return items, toks

def setup(p, role):
    q = p
    a, b, c = vT + 16, vT + 17, vT + 18
    q('v_lshrrev_b32 v%d, 3, v%d' % (a, vL))
    q('v_lshrrev_b32 v%d, 2, v%d' % (c, vL)); q('v_and_b32 v%d, 4, v%d' % (c, c))
    q('v_and_b32 v%d, 7, v%d' % (b, vL)); q('v_xor_b32 v%d, v%d, v%d' % (b, b, c)); q('v_lshlrev_b32 v%d, 4, v%d' % (b, b))
    q('v_lshl_add_u32 v%d, v%d, 10, v%d' % (vD2, a, b))
    q('s_movk_i32 s%d, 3072' % sT1); q('s_movk_i32 s%d, 3584' % sT2)
    rot = sROT
    q('s_mul_i32 s%d, s%d, %d' % (sWO1, rot, 64 * 3072)); q('s_mul_i32 s%d, s%d, %d' % (sWD1, rot, 64 * 3584))
    if role == 'AB':
        q('v_mad_u32_u24 v%d, v%d, s%d, v%d' % (vWA, a, sT1, b)); q('v_mad_u32_u24 v%d, v%d, s%d, v%d' % (vWB, a, sT2, b))
        q('v_add_u32 v%d, s%d, v%d' % (vWA, sWO1, vWA)); q('v_add_u32 v%d, s%d, v%d' % (vWB, sWD1, vWB))
        q('v_xor_b32 v%d, 32, v%d' % (vWC, vWB))
    else:
        q('v_mad_u32_u24 v%d, v%d, s%d, v%d' % (vWA, a, sT2, b)); q('v_add_u32 v%d, s%d, v%d' % (vWA, sWD1, vWA))
        q('v_xor_b32 v%d, 32, v%d' % (vWB, vWA))
        q('v_lshrrev_b32 v%d, 2, v%d' % (a, vL)); q('v_and_b32 v%d, 3, v%d' % (b, vL)); q('v_lshlrev_b32 v%d, 4, v%d' % (b, b))
        q('v_mad_u32_u24 v%d, v%d, s%d, v%d' % (vWC, a, sT2, b)); q('v_add_u32 v%d, s%d, v%d' % (vWC, sWD1, vWC))
        q('v_xor_b32 v%d, 32, v%d' % (vWD, vWC))
    q('s_mul_i32 s%d, s%d, %d' % (sT1, sW, 16 * 3072)); q('s_mul_i32 s%d, s%d, %d' % (sT2, sW, 16 * 3584))
    q('s_lshl_b32 s%d, s%d, 2' % (sWO0, sI)); q('s_add_u32 s%d, s%d, s%d' % (sWO0, sWO0, sW))
    q('s_mul_i32 s%d, s%d, %d' % (sHST1, sWO0, 112 * 1024))
    q('s_lshl_b32 s%d, s%d, 15' % (sPQ, sWO0)); q('s_add_u32 s%d, s%d, 0x%x' % (sPQ, sPQ, PQ_OFF))
    if role == 'AB':
        q('s_lshl_b32 s%d, s%d, 1' % (sU, sQD)); q('s_add_u32 s%d, s%d, s%d' % (sU, sU, sMEM))
        q('s_lshl_b32 s%d, s%d, 12' % (sKVP, sU)); q('s_add_u32 s%d, s%d, s%d' % (sPQ, sPQ, sKVP))
        q('s_lshl_b32 s%d, s%d, 2' % (sKVP, sU)); q('s_add_u32 s%d, s%d, s%d' % (sKVP, sKVP, sW)); q('s_lshl_b32 s%d, s%d, 15' % (sKVP, sKVP))
        q('s_lshl_b32 s%d, s%d, 11' % (sHST2, sI)); q('s_add_u32 s%d, s%d, s%d' % (sKVP, sKVP, sHST2)); q('s_add_u32 s%d, s%d, 0x%x' % (sKVP, sKVP, KVP_OFF))
        q('s_lshl_b32 s%d, s%d, 7' % (sT0, sU)); q('s_add_u32 s%d, s%d, s%d' % (sT0, sT0, sT1))
        q('s_add_u32 s%d, s%d, %d' % (sL[0], sT0, 1024)); q('s_add_u32 s%d, s%d, %d' % (sL[1], sT0, 1024 + 8 * 3072 - 1024))
        q('s_add_u32 s%d, s%d, %d' % (sL[2], sT0, 2048 - 2048)); q('s_add_u32 s%d, s%d, %d' % (sL[3], sT0, 2048 + 8 * 3072 - 3072))
        q('s_add_u32 s%d, s%d, %d' % (sL[4], sT0, 0)); q('s_add_u32 s%d, s%d, %d' % (sL[5], sT0, 8 * 3072 - 1024))
        q('s_mul_i32 s%d, s%d, 7' % (sT0, sQD)); q('s_add_u32 s%d, s%d, s%d' % (sT0, sT0, sMEM))
        q('s_lshl_b32 s%d, s%d, 12' % (sHST2, sT0)); q('s_add_u32 s%d, s%d, s%d' % (sHST2, sHST2, sHST1))
        q('s_lshl_b32 s%d, s%d, 7' % (sT0, sT0)); q('s_add_u32 s%d, s%d, s%d' % (sG2[0], sT0, sT2)); q('s_add_u32 s%d, s%d, %d' % (sG2[1], sG2[0], 8 * 3584 - 1024))
    else:
        q('s_mul_i32 s%d, s%d, 7' % (sT0, sQD)); q('s_sub_u32 s%d, s%d, 2' % (sT1, sMEM))
        q('s_mul_i32 s%d, s%d, 3' % (sL[5], sT1)); q('s_add_u32 s%d, s%d, s%d' % (sL[5], sL[5], sT0)); q('s_add_u32 s%d, s%d, 2' % (sL[5], sL[5]))
        q('s_add_u32 s%d, s%d, 4' % (sL[4], sT0))
        q('s_lshl_b32 s%d, s%d, 12' % (sHST1b, sL[4])); q('s_lshl_b32 s%d, s%d, 11' % (sL[3], sT1)); q('s_add_u32 s%d, s%d, s%d' % (sHST1b, sHST1b, sL[3]))
        q('s_add_u32 s%d, s%d, s%d' % (sHST1b, sHST1b, sHST1))
        q('s_lshl_b32 s%d, s%d, 12' % (sL[3], sL[5])); q('s_add_u32 s%d, s%d, 4096' % (sHST2, sL[3])); q('s_add_u32 s%d, s%d, s%d' % (sHST2, sHST2, sHST1))
        q('s_add_u32 s%d, s%d, s%d' % (sHST1, sHST1, sL[3]))
        q('s_lshl_b32 s%d, s%d, 7' % (sL[2], sL[4])); q('s_lshl_b32 s%d, s%d, 6' % (sT1, sT1)); q('s_add_u32 s%d, s%d, s%d' % (sL[2], sL[2], sT1))
        q('s_add_u32 s%d, s%d, s%d' % (sL[2], sL[2], sT2))
        q('s_lshl_b32 s%d, s%d, 7' % (sL[0], sL[5])); q('s_add_u32 s%d, s%d, s%d' % (sL[0], sL[0], sT2)); q('s_add_u32 s%d, s%d, %d' % (sL[1], sL[0], 8 * 3584 - 1024))
        q('s_add_u32 s%d, s%d, 128' % (sG2[0], sL[0])); q('s_add_u32 s%d, s%d, 128' % (sG2[1], sL[1]))
    q('s_mul_i32 s%d, s%d, %d' % (sWD0, sW, 448 * 1024)); q('s_lshl_b32 s%d, s%d, 7' % (sT0, sCT)); q('s_add_u32 s%d, s%d, s%d' % (sWD0, sWD0, sT0))
    q('s_and_b32 s%d, s%d, 3' % (sT1, sRT)); q('s_lshl_b32 s%d, s%d, 3' % (sT1, sT1)); q('s_sub_u32 s%d, 28, s%d' % (sW2WRAP, sT1))
    q('s_lshl_b32 s%d, s%d, 14' % (sT1, sT1)); q('v_add_u32 v%d, s%d, v%d' % (vD2, sT1, vD2))
    q('s_add_u32 s%d, s%d, %d' % (sWD1, sWD0, 8192 - 1024))
    q('s_lshl_b32 s%d, s%d, 17' % (sWO0, sW)); q('s_add_u32 s%d, s%d, s%d' % (sWO0, sWO0, sT0)); q('s_add_u32 s%d, s%d, %d' % (sWO1, sWO0, 8192 - 1024))

def setup_tr(p, role):
    q = p
    t0, t1, t2, t3, t4, u0, u1, t5 = [vT + 16 + i for i in range(8)]
    q('v_lshrrev_b32 v%d, 5, v%d' % (t5, vL)); q('v_lshlrev_b32 v%d, 3, v%d' % (t0, t5))
    q('v_bfe_u32 v%d, v%d, 2, 2' % (t1, vL)); q('v_add_u32 v%d, v%d, v%d' % (t0, t0, t1))
    q('v_lshl_add_u32 v%d, v%d, 2, v%d' % (t5, t5, t1))
    q('v_bfe_u32 v%d, v%d, 4, 1' % (t1, vL)); q('v_bfe_u32 v%d, v%d, 1, 1' % (t2, vL)); q('v_bfe_u32 v%d, v%d, 3, 1' % (t3, vL))
    q('v_and_b32 v%d, 1, v%d' % (t4, vL)); q('v_lshlrev_b32 v%d, 3, v%d' % (t4, t4))
    variants = {}
    names = (['q0', 'q1', 'm0', 'm1', 'm2', 'm3'] if role == 'AB' else ['m0', 'm1', 'm2', 'm3', 'h0', 'h1'])
    def qvar(dst, th, rowreg):
        q('v_lshl_add_u32 v%d, v%d, 1, v%d' % (u0, t1, t2))
        q('v_lshlrev_b32 v%d, 2, v%d' % (u1, t3)); q('v_xor_b32 v%d, %d, v%d' % (u1, 4 * th, u1)); q('v_add_u32 v%d, v%d, v%d' % (u0, u0, u1))
        q('v_lshl_add_u32 v%d, v%d, 4, v%d' % (u0, u0, t4)); q('v_lshl_add_u32 v%d, v%d, 7, v%d' % (dst, rowreg, u0))
    for vi, nm in enumerate(names):
        r0 = vTR + 2 * vi
        if nm[0] == 'q': qvar(r0, int(nm[1]), t0)
        elif nm[0] == 'm':
            tt = int(nm[1])
            q('v_add_u32 v%d, %d, v%d' % (u0, 2 * tt, t2))
            q('v_lshlrev_b32 v%d, 2, v%d' % (u1, t3)); q('v_xor_b32 v%d, v%d, v%d' % (u0, u0, u1))
            q('v_lshlrev_b32 v%d, 1, v%d' % (u1, t1)); q('v_xor_b32 v%d, v%d, v%d' % (u0, u0, u1))
            q('v_lshl_add_u32 v%d, v%d, 4, v%d' % (u0, u0, t4)); q('v_lshl_add_u32 v%d, v%d, 7, v%d' % (u0, t0, u0)); q('v_lshl_add_u32 v%d, v%d, 11, v%d' % (r0, t1, u0))
        else:
            tt = int(nm[1])
            q('v_add_u32 v%d, %d, v%d' % (u0, 2 * tt, t2))
            q('v_lshlrev_b32 v%d, 1, v%d' % (u1, t1)); q('v_xor_b32 v%d, v%d, v%d' % (u0, u0, u1))
            q('v_lshl_add_u32 v%d, v%d, 4, v%d' % (u0, u0, t4)); q('v_lshl_add_u32 v%d, v%d, 6, v%d' % (u0, t0, u0)); q('v_lshl_add_u32 v%d, v%d, 10, v%d' % (r0, t1, u0))
        q('v_add_u32 v%d, 0x10000, v%d' % (r0 + 1, r0))
        q('v_add_u32 v%d, 0x20000, v%d' % (ACC2 + vi, r0))
        variants[nm] = {0: r0, 1: r0 + 1, 2: ACC2 + vi}
    qvar(vS0, 0, t5); qvar(vS1, 1, t5)
    q('v_add_u32 v%d, s%d, v%d' % (vR0, sWB, vS0)); q('v_add_u32 v%d, s%d, v%d' % (vR1, sWB, vS1))
    q('v_add_u32 v%d, s%d, v%d' % (vS0, sS2, vS0)); q('v_add_u32 v%d, s%d, v%d' % (vS1, sS2, vS1))
    return variants

def dma_stage_items(p, role, Tg):
    toks = []; items = []
    base = 6144 * ((Tg - 1) % NRING)
    def ld(v, s, so, off): toks.append(p.vm('buffer_load_dwordx4 v%d, %s, s%d offen %slds' % (v, srd(s), so, ('offset:%d ' % off) if off else '')))
    def inc(step, wrap):
        p('s_cmp_eq_u32 s%d, %d' % (sWRAP, Tg & 7)); p('s_cselect_b32 s%d, s%d, s%d' % (sInc, wrap, step))
    adv = lambda v: p('v_add_u32 v%d, s%d, v%d' % (v, sInc, v))
    m0 = lambda off: p('s_add_u32 m0, s%d, %d' % ((sT2, off) if Tg == 0 else (sWB, base + off)))
    if Tg < 8 and role == 'AB':
        def f0(): m0(0); inc(sStepQ, sWrapQ); ld(vWA, S_WQ, sL[0], 0); ld(vWA, S_WQ, sL[1], 1024)
        def f1(): pass
        def f01(): f0(); ld(vWA, S_WQ, sL[2], 2048); ld(vWA, S_WQ, sL[3], 3072)
        def f2():
            m0(4096); p('s_nop 0'); ld(vWA, S_WQ, sL[4], 0); ld(vWA, S_WQ, sL[5], 1024)
            if Tg < 7: adv(vWA)
        items = [f01, f2]
    elif Tg < 8:
        def f0(): m0(0); inc(sStepG, sWrapG); ld(vWA, S_WG, sL[0], 0); ld(vWA, S_WG, sL[1], 1024); adv(vWA)
        def f1(): m0(2048); p('s_nop 0'); ld(vWB, S_WU, sL[0], 0); ld(vWB, S_WU, sL[1], 1024); adv(vWB)
        def f2():
            m0(4096); p('s_nop 0'); ld(vWC, S_WG, sL[2], 0)
            if Tg < 7: adv(vWC)
            m0(5120); p('s_nop 0'); ld(vWD, S_WU, sL[2], 0)
            if Tg < 7: adv(vWD)
        items = [f0, f1, f2]
    else:
        g, u = (vWB, vWC) if role == 'AB' else (vWA, vWB)
        def f0():
            m0(0); inc(sStepG, sWrapG); ld(g, S_WG, sG2[0], 0); ld(g, S_WG, sG2[1], 1024)
            if Tg < 15: adv(g)
        def f1():
            m0(2048); p('s_nop 0'); ld(u, S_WU, sG2[0], 0); ld(u, S_WU, sG2[1], 1024)
            if Tg < 15: adv(u)
        items = [f0, f1]
    return items, toks

def store_item(p, reg, soff, off, keep=None):
    def f():
        t = p.vm('buffer_store_dwordx4 v[%d:%d], v%d, %s, s%d offen %s%s' % (reg, reg + 3, vST, srd(S_WS), soff, ('offset:%d ' % off) if off else '', DST))
        if keep is not None: keep.append(t)
    return f

def norm_items(p, s, t):
    it = []
    for pr in range(2):
        r0, r1 = XF + 4 * s + 2 * pr, XF + 4 * s + 2 * pr + 1
        a0, a1, b0, b1 = t + 4 * pr, t + 4 * pr + 1, t + 4 * pr + 2, t + 4 * pr + 3
        seq = ['v_lshlrev_b32 v%d, 16, v%d' % (a0, r0), 'v_and_b32 v%d, s%d, v%d' % (a1, sMASK, r0),
               'v_lshlrev_b32 v%d, 16, v%d' % (b0, r1), 'v_and_b32 v%d, s%d, v%d' % (b1, sMASK, r1),
               'v_fma_f32 v%d, v%d, v%d, v%d' % (a0, a0, vRS, vNM), 'v_fma_f32 v%d, v%d, v%d, v%d' % (a1, a1, vRS, vNM),
               'v_fma_f32 v%d, v%d, v%d, v%d' % (b0, b0, vRS, vNM), 'v_fma_f32 v%d, v%d, v%d, v%d' % (b1, b1, vRS, vNM),
               'v_cvt_pk_bf16_f32 v%d, v%d, v%d' % (r0, a0, a1), 'v_cvt_pk_bf16_f32 v%d, v%d, v%d' % (r1, b0, b1)]
        it += [T(p, x) for x in seq]
    return it

def mlp_epi_items(p, acc, in_agpr, t, soff, off, keep=None):
    it = []
    if in_agpr:
        for half in range(2):
            rr = range(4 * half, 4 * half + 4)
            for r in rr: it.append(T(p, 'v_accvgpr_read_b32 v%d, a%d' % (t + (r & 3), acc + r)))
            for r in rr: it.append(T(p, 'v_accvgpr_read_b32 v%d, a%d' % (t + 4 + (r & 3), acc + 8 + r)))
            for r in rr: it.append(T(p, 'v_max_f32 v%d, 0, v%d' % (t + (r & 3), t + (r & 3))))
            for r in rr: it.append(T(p, 'v_mul_f32 v%d, v%d, v%d' % (t + (r & 3), t + (r & 3), t + 4 + (r & 3))))
            for q in range(2): it.append(T(p, 'v_cvt_pk_bf16_f32 v%d, v%d, v%d' % (t + 8 + 2 * half + q, t + 2 * q, t + 2 * q + 1)))
    else:
        for r in range(8): it.append(T(p, 'v_max_f32 v%d, 0, v%d' % (acc + r, acc + r)))
        for r in range(8): it.append(T(p, 'v_mul_f32 v%d, v%d, v%d' % (acc + r, acc + r, acc + 8 + r)))
        for q in range(4): it.append(T(p, 'v_cvt_pk_bf16_f32 v%d, v%d, v%d' % (t + 8 + q, acc + 2 * q, acc + 2 * q + 1)))
    it.append(store_item(p, t + 8, soff, off, keep))
    return it

def phi_items(p, acc, t, dst):
    it = []
    for half in range(2):
        rr = list(range(4 * half, 4 * half + 4))
        for r in rr: it.append(T(p, 'v_accvgpr_read_b32 v%d, a%d' % (t + (r & 3), acc + r)))
        for r in rr: it.append(T(p, 'v_mul_f32 v%d, s%d, v%d' % (t + 4 + (r & 3), sLOG2E, t + (r & 3))))
        for r in rr: it.append(T(p, 'v_exp_f32 v%d, v%d clamp' % (t + 4 + (r & 3), t + 4 + (r & 3))))
        for r in rr: it.append(T(p, 'v_max_f32 v%d, s%d, v%d' % (t + (r & 3), sEPS, t + (r & 3))))
        for r in rr: it.append(T(p, 'v_add_f32 v%d, v%d, v%d' % (t + (r & 3), t + (r & 3), t + 4 + (r & 3))))
        for q in range(2): it.append(T(p, 'v_cvt_pk_bf16_f32 v%d, v%d, v%d' % (dst + 2 * half + q, t + 2 * q, t + 2 * q + 1)))
    return it

def pack_items(p, acc, t, dst):
    it = []
    for half in range(2):
        rr = list(range(4 * half, 4 * half + 4))
        for r in rr: it.append(T(p, 'v_accvgpr_read_b32 v%d, a%d' % (t + (r & 3), acc + r)))
        for q in range(2): it.append(T(p, 'v_cvt_pk_bf16_f32 v%d, v%d, v%d' % (dst + 2 * half + q, t + 2 * q, t + 2 * q + 1)))
    return it

def emit_flag(p, base, idx_sgpr):
    p('s_lshl_b32 s%d, s%d, 7' % (sT0, idx_sgpr)); p('s_add_u32 s%d, s%d, 0x%x' % (sT0, sT0, base))
    p('v_mov_b32 v%d, s%d' % (vT + 4, sNONCE)); p('v_mov_b32 v%d, 0' % (vT + 5))
    p('s_mov_b64 s[%d:%d], exec' % (sEX, sEX + 1)); p('s_mov_b64 exec, 1')
    p('buffer_store_dword v%d, v%d, %s, s%d offen %s' % (vT + 4, vT + 5, srd(S_WS), sT0, ST))
    p('s_mov_b64 exec, s[%d:%d]' % (sEX, sEX + 1))

def uniform_flag(p, base, idx_sgpr):
    la = p.newlabel('L_fa')
    p('s_cmp_lg_u32 s%d, 0' % sW); p('s_cbranch_scc1 %s' % la)
    emit_flag(p, base, idx_sgpr)
    p.label(la)

def poll_issue(p, vaddr, soff, vdst):
    return p.vm('buffer_load_dword v%d, v%d, %s, s%d offen %s' % (vdst, vaddr, srd(S_WS), soff, LD))

def poll_check(p, tok, vaddr, soff, vdst):
    if tok is not None: p.wait(tok)
    l0, l1 = p.newlabel('L_pc'), p.newlabel('L_pcok')
    p('v_cmp_eq_u32 vcc, s%d, v%d' % (sNONCE, vdst)); p('s_nop 1'); p('s_cmp_eq_u64 vcc, -1'); p('s_cbranch_scc1 %s' % l1)
    p('s_mov_b32 s%d, 0' % sSPIN)
    p.label(l0)
    p('buffer_load_dword v%d, v%d, %s, s%d offen %s' % (vdst, vaddr, srd(S_WS), soff, LD))
    p('s_waitcnt vmcnt(0)')
    p('v_cmp_eq_u32 vcc, s%d, v%d' % (sNONCE, vdst)); p('s_nop 1'); p('s_cmp_eq_u64 vcc, -1'); p('s_cbranch_scc1 %s' % l1)
    p('s_sleep %d' % SLEEP)
    p('s_add_u32 s%d, s%d, 1' % (sSPIN, sSPIN)); p('s_cmp_lt_u32 s%d, 20000' % sSPIN); p('s_cbranch_scc1 %s' % l0)
    p.label(l1)

def epilogue1_items(p, role, free_oct, kvp_toks):
    t = vT + 8
    if role == 'CD':
        pre = []
        for j in range(6):
            soff, off = (sHST1, 1024 * j) if j < 4 else (sHST1b, 1024 * (j - 4))
            pre += mlp_epi_items(p, ACC1 + 16 * j, True, t + (j & 1) * 12, soff, off)
            pre.append(Mark(lambda j=j: free_oct.extend([('a', ACC1 + 16 * j), ('a', ACC1 + 16 * j + 8)])))
        return [pre]
    PK = vT + 16; VV = vT + 24; BS = vT + 32
    pre = []
    for pr in range(2):
        pre += phi_items(p, ACC1 + 16 * pr, t, PK) + phi_items(p, ACC1 + 16 * pr + 8, t, PK + 4)
        pre += pack_items(p, ACC1 + 32 + 16 * pr, t, VV) + pack_items(p, ACC1 + 32 + 16 * pr + 8, t, VV + 4)
        da = ACC1 + 16 * pr; db = ACC1 + 32 + 16 * pr
        for hb, (d, msk) in enumerate(((da, 0x0000ffff), (db, 0xffff0000))):
            pre.append(T(p, 's_mov_b32 vcc_lo, 0x%x' % msk)); pre.append(T(p, 's_mov_b32 vcc_hi, 0x%x' % msk))
            for r in range(8): pre.append(T(p, 'v_cndmask_b32 v%d, v%d, v%d, vcc' % (BS + r, vT + 7, VV + r)))
            pre.append(T(p, 's_nop 1'))
            pre.append(T(p, 'v_mfma_f32_32x32x16_bf16 a[%d:%d], v[%d:%d], v[%d:%d], 0' % (d, d + 15, PK, PK + 3, BS, BS + 3)))
            pre.append(T(p, 'v_mfma_f32_32x32x16_bf16 a[%d:%d], v[%d:%d], v[%d:%d], a[%d:%d]' % (d, d + 15, PK + 4, PK + 7, BS + 4, BS + 7, d, d + 15)))
    def qhead(pr, hb):
        dst = PK + 4 * hb
        return phi_items(p, ACC1 + 64 + 16 * pr + 8 * hb, t, dst) + [store_item(p, dst, sPQ, 1024 * (2 * pr + hb)), Mark(lambda: free_oct.append(('a', ACC1 + 64 + 16 * pr + 8 * hb)))]
    pre += qhead(0, 0)
    KA = vT + 6
    pre.append(T(p, 'v_add_u32 v%d, s%d, v%d' % (KA, sWB, vST)))
    for hd in range(4):
        pr, hb = hd >> 1, hd & 1
        src = (ACC1 + 16 * pr) if hb == 0 else (ACC1 + 32 + 16 * pr + 8)
        for q in range(2):
            pre.append(lambda src=src, q=q, hd=hd: p.last_ds_writes.append(p.lg('ds_write_b128 v%d, a[%d:%d] offset:%d' % (KA, src + 4 * q, src + 4 * q + 3, KVS[hd] + q * 1024))))
    pre.append(Mark(lambda: free_oct.extend([('a', ACC1 + 8 * k) for k in range(8)])))
    post = []
    RA = vT + 6; RB = vT + 5; rtok = []
    post.append(T(p, 's_mul_i32 s%d, s%d, 6144' % (sT0, sW))); post.append(T(p, 's_add_u32 s%d, s%d, 4096' % (sT0, sT0)))
    post.append(T(p, 'v_add_u32 v%d, s%d, v%d' % (RA, sT0, vST))); post.append(T(p, 'v_add_u32 v%d, 0x10000, v%d' % (RB, RA)))
    R = vT + 8
    def rd(wv, q, dst): return lambda: rtok.append(p.lg('ds_read_b128 v[%d:%d], v%d offset:%d' % (dst, dst + 3, RA if wv < 2 else RB, (wv & 1) * 32768 + q * 1024)))
    for wv in range(4):
        for q in range(2): post.append(rd(wv, q, R + 8 * wv + 4 * q))
    post.append(lambda: p.wait(rtok))
    for wv in (1, 2, 3):
        for r in range(8): post.append(T(p, 'v_add_f32 v%d, v%d, v%d' % (R + r, R + r, R + 8 * wv + r)))
    for q in range(2): post.append(store_item(p, R + 4 * q, sKVP, 1024 * q, kvp_toks))
    post.append(T(p, 's_nop 1'))
    rest = []
    for (pr, hb) in ((0, 1), (1, 0), (1, 1)): rest += qhead(pr, hb)
    return [pre, post + rest]

def interleave(p, mf, lists):
    n = len(mf); idx = [0] * len(lists)
    for j, m in enumerate(mf):
        for k, L in enumerate(lists):
            upto = (len(L) * (j + 1) + n - 1) // n
            while idx[k] < min(upto, len(L)):
                L[idx[k]](); idx[k] += 1
        m()

def touch_wo(p):
    a = vT + 30
    p('s_lshr_b32 s%d, s2, 3' % sT0); p('s_lshl_b32 s%d, s%d, 2' % (sT0, sT0)); p('s_add_u32 s%d, s%d, s%d' % (sT0, sT0, sW)); p('s_lshl_b32 s%d, s%d, 12' % (sT0, sT0))
    p('v_and_b32 v%d, 31, v%d' % (a, vL)); p('v_lshlrev_b32 v%d, 7, v%d' % (a, a))
    p.vm('buffer_load_dword v%d, v%d, %s, s%d offen' % (vT + 31, a, srd(S_WO), sT0))
def touch_g2(p):
    a = vT + 30
    p('s_and_b32 s%d, s%d, 7' % (sT0, sI)); p('s_lshl_b32 s%d, s%d, 2' % (sT0, sT0)); p('s_mul_i32 s%d, s%d, %d' % (sT0, sT0, 16 * 3584))
    p('s_add_u32 s%d, s%d, s%d' % (sT0, sT0, sG2[0]))
    p('v_and_b32 v%d, 15, v%d' % (a, vL)); p('v_mul_u32_u24 v%d, 3584, v%d' % (a, a))
    p.vm('buffer_load_dword v%d, v%d, %s, s%d offen' % (vT + 31, a, srd(S_WG), sT0))
    p.vm('buffer_load_dword v%d, v%d, %s, s%d offen' % (vT + 31, a, srd(S_WU), sT0))
def build_role(p, role):
    stok = {}
    kc1, kc2 = 250, (210 if role == 'AB' else 160)
    est = [0]
    for S in range(64): est.append(est[-1] + (kc1 if S < 32 else kc2))
    free_oct = [('a', b) for b in AOCT]
    NSL = 5
    W = dict(pos=0, loc={}, dtok={}, ttok={}, dS={}, slot_owner=[None] * NSL)
    RES = [(51, o) for o in (0, 2048, 4096)] + [(55, o) for o in (6144, 8192, 10240)] + [(59, o) for o in (12288, 14336, 16384)] + [(63, o) for o in (18432, 20480, 22528)] + [(64, o) for o in (24576, 26624, 28672)]
    res_next = [0]; wo_loc, wo_tok = {}, {}; wo_next = [0]
    cur_S = [0]
    def slot_info(sl):
        if sl == 0: return sWB, 30720, (vR0, vR1), 30720
        return sS2, 2048 * (sl - 1), (vS0, vS1), 2048 * (sl - 1)
    def wd_dma(pos, breg, off, pre=None):
        toks = W['dtok'].setdefault(pos, [])
        def f():
            if pre: p.wait(pre)
            p('s_add_u32 m0, s%d, %d' % (breg, off))
            if pos > 0 and pos % 4 == 0:
                p('s_mov_b32 s%d, 0x4000' % sT2); p('s_cmp_eq_u32 s%d, %d' % (sW2WRAP, pos)); p('s_cselect_b32 s%d, 0x%x, s%d' % (sT2, (-27 * 0x4000) & 0xffffffff, sT2))
                p('v_add_u32 v%d, s%d, v%d' % (vD2, sT2, vD2))
            elif pos > 0: p('v_add_u32 v%d, 0x4000, v%d' % (vD2, vD2))
            else: p('s_nop 0')
            toks.append(p.vm('buffer_load_dwordx4 v%d, %s, s%d offen lds' % (vD2, srd(S_WD), sWD0)))
            toks.append(p.vm('buffer_load_dwordx4 v%d, %s, s%d offen offset:1024 lds' % (vD2, srd(S_WD), sWD1)))
        return f
    def wo_dma(hh, breg, off, pre=None):
        toks = wo_tok.setdefault(hh, [])
        def f():
            if pre: p.wait(pre)
            p('s_add_u32 m0, s%d, %d' % (breg, off))
            if hh == 0:
                p('v_and_b32 v%d, 0x3fff, v%d' % (vD2, vD2))
            else: p('v_add_u32 v%d, 0x4000, v%d' % (vD2, vD2))
            toks.append(p.vm('buffer_load_dwordx4 v%d, %s, s%d offen lds' % (vD2, srd(S_WO), sWO0)))
            toks.append(p.vm('buffer_load_dwordx4 v%d, %s, s%d offen offset:1024 lds' % (vD2, srd(S_WO), sWO1)))
        return f
    def tr4_items(pos, regs, off, oc, store):
        it = []
        for nt, reg in enumerate(regs):
            for rd in range(2):
                b = oc[1] + 4 * nt + 2 * rd
                def f(b=b, reg=reg, o=off + 1024 * rd, first=(nt == 0 and rd == 0)):
                    if first: p.wait(W['dtok'][pos])
                    store.append(p.lg('ds_read_b64_tr_b16 %s[%d:%d], v%d offset:%d' % (oc[0], b, b + 1, reg, o)))
                it.append(f)
        return it
    def slot_free(sl):
        own = W['slot_owner'][sl]
        if sl >= 1 and cur_S[0] < 7: return False
        return own is None or (own >= 0 and W['loc'][own][0] == 'reg' and len(W['ttok'].get(own, [])) == 4)
    def next_w2_item(S):
        cur_S[0] = S
        pos = W['pos']
        if pos < 28:
            for sl in range(NSL):
                if slot_free(sl):
                    own = W['slot_owner'][sl]
                    pre = W['ttok'][own] if own is not None else None
                    breg, moff, _, _ = slot_info(sl)
                    W['slot_owner'][sl] = pos; W['loc'][pos] = ('stage', sl); W['dS'][pos] = S; W['pos'] += 1
                    return wd_dma(pos, breg, moff, pre)
            if res_next[0] < len(RES) and S >= RES[res_next[0]][0]:
                off = RES[res_next[0]][1]; res_next[0] += 1
                W['loc'][pos] = ('res', off); W['dS'][pos] = S; W['pos'] += 1
                return wd_dma(pos, sWB, off)
            return None
        if wo_next[0] < 8:
            for sl in range(NSL):
                if slot_free(sl):
                    own = W['slot_owner'][sl]
                    pre = W['ttok'][own] if own is not None else None
                    W['slot_owner'][sl] = -1
                    breg, moff, regs, toff = slot_info(sl)
                    hh = wo_next[0]; wo_next[0] += 1; wo_loc[hh] = (regs, toff)
                    return wo_dma(hh, breg, moff, pre)
            if res_next[0] < len(RES) and S >= RES[res_next[0]][0]:
                off = RES[res_next[0]][1]; res_next[0] += 1
                hh = wo_next[0]; wo_next[0] += 1; wo_loc[hh] = ((vR0, vR1), off)
                return wo_dma(hh, sWB, off)
        return None
    def staged_to_reg(S_now, force=False):
        cand = [q for q in sorted(W['loc']) if W['loc'][q][0] == 'stage']
        if not cand or not free_oct: return []
        st = cand[0]
        if len(W['dtok'].get(st, [])) != 2: return []
        if not force and est[max(S_now, 0)] < est[max(W['dS'][st], 0)] + LAT and W['dS'][st] >= 0: return []
        oc = free_oct.pop(0); sl = W['loc'][st][1]; W['loc'][st] = ('reg', oc)
        _, _, regs, toff = slot_info(sl)
        return tr4_items(st, regs, toff, oc, W['ttok'].setdefault(st, []))
    xit, xt = x_dma_items(p)
    q = Prog(); setup(q, role); variants = setup_tr(q, role)
    t = vT + 16
    q('v_and_b32 v%d, 31, v%d' % (t, vL)); q('v_lshrrev_b32 v%d, 5, v%d' % (t + 1, vL)); q('v_bfe_u32 v%d, v%d, 1, 3' % (t + 2, vL))
    q('v_xor_b32 v%d, v%d, v%d' % (t + 1, t + 1, t + 2))
    q('v_lshlrev_b32 v%d, 7, v%d' % (t, t)); q('v_add_u32 v%d, s%d, v%d' % (t, sWB, t))
    for ss in range(4):
        q('v_xor_b32 v%d, %d, v%d' % (t + 2, 2 * ss, t + 1)); q('v_lshl_add_u32 v%d, v%d, 4, v%d' % (vXA[ss], t + 2, t))
    if role == 'AB':
        q('v_mov_b32 v%d, s%d' % (t, sEPS))
        for r in range(16): q('v_accvgpr_write_b32 a%d, v%d' % (EPSB + r, t))
    su = [T(p, x) for x in q.ins]
    p('s_mov_b32 s%d, s%d' % (sSPIN, sHST2))
    for c in range(4): xit[c]()
    XR = vT + 8
    vS, vQ = vT + 4, vT + 5
    p.wait(p.xl)
    p.stamp(14)
    p('v_mov_b32 v%d, 0' % vS); p('v_mov_b32 v%d, 0' % vQ)
    for r in range(8):
        p('v_dot2_f32_bf16 v%d, v%d, s%d, v%d' % (vS, XR + r, sONES, vS)); p('v_dot2_f32_bf16 v%d, v%d, v%d, v%d' % (vQ, XR + r, XR + r, vQ))
    for sh in (8, 4, 2, 1):
        p('s_nop 1')
        p('v_add_f32_dpp v%d, v%d, v%d row_ror:%d row_mask:0xf bank_mask:0xf' % (vS, vS, vS, sh))
        p('v_add_f32_dpp v%d, v%d, v%d row_ror:%d row_mask:0xf bank_mask:0xf' % (vQ, vQ, vQ, sh))
    p('v_mov_b32 v%d, v%d' % (vT + 6, vS)); p('v_mov_b32 v%d, v%d' % (vT + 7, vQ)); p('s_nop 1')
    p('v_permlane16_swap_b32 v%d, v%d' % (vS, vT + 6)); p('v_permlane16_swap_b32 v%d, v%d' % (vQ, vT + 7)); p('s_nop 1')
    p('v_add_f32 v%d, v%d, v%d' % (vS, vS, vT + 6)); p('v_add_f32 v%d, v%d, v%d' % (vQ, vQ, vT + 7))
    p('v_mul_f32 v%d, 0x3b000000, v%d' % (vS, vS)); p('v_mul_f32 v%d, 0x3b000000, v%d' % (vQ, vQ))
    p('v_fma_f32 v%d, -v%d, v%d, v%d' % (vQ, vS, vS, vQ))
    p('v_max_f32 v%d, 0, v%d' % (vQ, vQ)); p('v_add_f32 v%d, 0x3727c5ac, v%d' % (vQ, vQ))
    p('v_rsq_f32 v%d, v%d' % (vQ, vQ)); p('s_nop 0')
    p('v_mul_f32 v%d, v%d, v%d' % (vS, vS, vQ)); p('v_sub_f32 v%d, 0, v%d' % (vS, vS))
    p.wait(p.nl)
    p('v_add_u32 v%d, 64, v%d' % (vT + 3, vT + 3)); p('v_or_b32 v%d, 1, v%d' % (vT + 3, vT + 3))
    G = vT + 16
    p('v_mov_b32 v%d, v%d' % (G, vQ)); p('v_mov_b32 v%d, v%d' % (G + 1, vT + 3)); p('v_mov_b32 v%d, v%d' % (G + 2, vS)); p('v_mov_b32 v%d, v%d' % (G + 3, vT + 3))
    p('v_lshrrev_b32 v%d, 5, v%d' % (vT + 6, vL)); p('v_lshlrev_b32 v%d, 4, v%d' % (vT + 6, vT + 6))
    p('v_readfirstlane_b32 s%d, v%d' % (sNONCE, vT + 3))
    p('s_mov_b64 s[%d:%d], exec' % (sEX, sEX + 1)); p('s_mov_b32 exec_lo, 1'); p('s_mov_b32 exec_hi, 1')
    p.vm('buffer_store_dwordx4 v[%d:%d], v%d, %s, s%d offen %s' % (G, G + 3, vT + 6, srd(S_WS), sSPIN, ST))
    p('s_mov_b64 exec, s[%d:%d]' % (sEX, sEX + 1))
    p.stamp(3)
    k = 0
    for c in range(4, 8):
        xit[c]()
        upto = (len(su) * (c - 3)) // 4
        while k < upto: su[k](); k += 1
    p('s_mul_i32 s%d, s%d, 6144' % (sT2, sW)); p('s_add_u32 s%d, s%d, %d' % (sT2, sT2, SPARE))
    it, stok[0] = dma_stage_items(p, role, 0)
    for f in it: f()
    GR = vT + 8; vGA = vT + 12
    p('v_and_b32 v%d, 31, v%d' % (vGA, vL)); p('v_lshlrev_b32 v%d, 4, v%d' % (vGA, vGA))
    p('s_lshr_b32 s%d, s%d, 6' % (sT1, sXB)); p('s_add_u32 s%d, s%d, 0x%x' % (sT1, sT1, STAT_OFF))
    p('s_mov_b32 s%d, s%d' % (sKX, sT1))
    gt = p.vm('buffer_load_dwordx4 v[%d:%d], v%d, %s, s%d offen %s' % (GR, GR + 3, vGA, srd(S_WS), sKX, LD))
    p.stamp(2)
    free_after = {1: 1, 2: 2}
    rt = {}
    for c in range(8):
        p.wait(xt[c])
        rt[c] = [p.lg('ds_read_b128 %s, v%d offset:%d' % (xf(4 * c + ss), vXA[ss], 4096 * c)) for ss in range(4)]
        if EARLY12 and c - 1 in free_after:
            p.wait(rt[c - 1])
            it, stok[free_after[c - 1]] = dma_stage_items(p, role, free_after[c - 1])
            for f in it: f()
    p.wait([t for c in range(8) for t in rt[c]])
    p.stamp(14)
    if not EARLY12:
        for Tg in (1, 2):
            it, stok[Tg] = dma_stage_items(p, role, Tg)
            for f in it: f()
    dmaq0 = []
    for Tg in range(3, NRING + 1):
        it, stok[Tg] = dma_stage_items(p, role, Tg); dmaq0 += it
    p.wait(gt)
    l0, l1 = p.newlabel('L_g'), p.newlabel('L_gok')
    p('s_mov_b32 s%d, 0' % sSPIN)
    p.label(l0)
    p('v_xor_b32 v%d, s%d, v%d' % (vGA + 1, sNONCE, GR + 1)); p('v_xor_b32 v%d, s%d, v%d' % (vGA + 2, sNONCE, GR + 3)); p('v_or_b32 v%d, v%d, v%d' % (vGA + 1, vGA + 1, vGA + 2))
    p('v_cmp_eq_u32 vcc, 0, v%d' % (vGA + 1)); p('s_nop 1'); p('s_cmp_eq_u64 vcc, -1'); p('s_cbranch_scc1 %s' % l1)
    p('s_sleep 2')
    p('buffer_load_dwordx4 v[%d:%d], v%d, %s, s%d offen %s' % (GR, GR + 3, vGA, srd(S_WS), sKX, LD)); p('s_waitcnt vmcnt(0)')
    p('s_add_u32 s%d, s%d, 1' % (sSPIN, sSPIN)); p('s_cmp_lt_u32 s%d, 20000' % sSPIN); p('s_cbranch_scc1 %s' % l0)
    p.label(l1)
    p('v_mov_b32 v%d, v%d' % (vRS, GR)); p('v_mov_b32 v%d, v%d' % (vNM, GR + 2))
    p.stamp(15)
    for f in norm_items(p, 0, vT): f()
    p.wait(stok[0]); p('s_barrier')
    p.stamp(4)
    ftok = {}
    for f in tr_items(p, role, 0, variants, ftok): f()
    kvp_toks = []
    p.last_ds_writes = []
    phases = epilogue1_items(p, role, free_oct, kvp_toks)
    st = dict(cur=0, done=-1, kvp_S=0, flagged=False)
    dmaq = dmaq0
    for S in range(64):
        grp = 1 if S < 32 else 2
        tl = tiles_of(role, grp); G = len(tl); s = S & 31
        def mk(j, S=S, s=s, tl=tl, G=G, grp=grp):
            var, lo, rds, sw = tl[j]
            b = wf(S, j, G); Wr = 'a[%d:%d]' % (b, b + 3)
            if grp == 1: d = 'a[%d:%d]' % (ACC1 + 16 * j, ACC1 + 16 * j + 15)
            else: d = 'v[%d:%d]' % (ACC2 + 16 * j, ACC2 + 16 * j + 15)
            c0 = '0'
            if grp == 1 and role == 'AB' and j in (0, 1, 4, 5): c0 = 'a[%d:%d]' % (EPSB, EPSB + 15)
            c = c0 if s == 0 else d
            A, B = (xf(s), Wr) if sw else (Wr, xf(s))
            def f():
                h = G // 2
                tk = []
                if j % h == 0: tk += [t for jj in range(j, j + h) for t in ftok[(S, jj)]]
                p.wait(tk)
                p('v_mfma_f32_32x32x16_bf16 %s, %s, %s, %s' % (d, A, B, c))
            return f
        mf = [mk(j) for j in range(G)]
        if S == 32: p.stamp(5)
        p.stamp(100 + S)
        if S == 1: free_oct.extend([('a', EPSB), ('a', EPSB + 8)])
        if S == 33: free_oct.extend([('a', WF + 32), ('a', WF + 40)])
        def barrier_block(S=S):
            Tn = (S + 2) >> 2
            toks = list(stok[Tn]) if Tn <= 15 else []
            flag_kvp = (role == 'AB' and len(kvp_toks) == 2 and not st['flagged'] and est[S] >= est[st['kvp_S']] + 1300)
            if flag_kvp: toks += kvp_toks
            adv_phase = (st['done'] >= 0 and st['done'] < S and st['cur'] + 1 < len(phases))
            if adv_phase: toks += p.last_ds_writes
            p.wait(toks)
            p('s_barrier')
            if adv_phase: st['cur'] += 1; st['done'] = -1
            if flag_kvp:
                p('s_lshl_b32 s%d, s%d, 4' % (sT1, sU)); p('s_add_u32 s%d, s%d, s%d' % (sT1, sT1, sI))
                uniform_flag(p, FLG_KVP, sT1); st['flagged'] = True
            Td = (S >> 2) - 1 + NRING
            if NRING + 1 <= Td <= 15:
                it, stok[Td] = dma_stage_items(p, role, Td); dmaq.extend(it)
        mf[0]()
        L_tr = tr_items(p, role, S + 1, variants, ftok) if S + 1 < 64 else []
        L_misc = norm_items(p, s + 1, vT) if (grp == 1 and s + 1 < 32) else []
        if TOUCH and S == 5: L_misc = L_misc + [lambda: touch_g2(p)]
        if TOUCH and S == 9: L_misc = L_misc + [lambda: touch_wo(p)]
        if S == 31 and role == 'AB': L_misc = [T(p, 'v_mov_b32 v%d, s%d' % (vT + 7, sONES))]
        L_dma = []
        if dmaq: L_dma.append(dmaq.pop(0))
        if dmaq and len(dmaq) > 3: L_dma.append(dmaq.pop(0))
        if (len(L_dma) < 1 or ((grp == 1) or S >= 48) and len(L_dma) < 2):
            f = next_w2_item(S)
            if f is not None: L_dma.append(f)
        L_w2tr = staged_to_reg(S)
        L_epi = []
        if grp == 2 and st['cur'] < len(phases) and phases[st['cur']]:
            ph = phases[st['cur']]
            last = (45 if st['cur'] == 0 else 62) if role == 'AB' else 50
            left = max(1, last - S + 1)
            n = (len(ph) + left - 1) // left
            L_epi = ph[:n]; del ph[:n]
            if not ph: st['done'] = S
            if role == 'AB' and st['cur'] == 1 and len(kvp_toks) < 2: st['kvp_S'] = S
        Ls = [L_tr, L_misc, L_epi, L_w2tr, L_dma]
        if S % 4 == 2:
            h = G // 2
            part = lambda L, lo, hi, n: L[(len(L) * lo) // n:(len(L) * hi) // n]
            interleave(p, mf[1:h + 1], [part(L, 0, h, G - 1) for L in Ls])
            barrier_block()
            interleave(p, mf[h + 1:], [part(L, h, G - 1, G - 1) for L in Ls])
        else:
            interleave(p, mf[1:], Ls)
    for ph in phases: assert not ph, len(ph)
    assert not dmaq
    if role == 'AB': assert st['flagged']
    p.stamp(6)
    p('s_nop 7'); p('s_nop 3')
    hst = []
    for j in range(4):
        for f in mlp_epi_items(p, ACC2 + 16 * j, False, vT + 12 * (j & 1), sHST2, 1024 * j, hst): f()
    p.stamp(7)
    p.c('W2 state: pos=%d wo=%d loc=%s' % (W['pos'], wo_next[0], sorted(W['loc'].items())))
    return dict(W=W, free_oct=free_oct, wo_loc=wo_loc, wo_tok=wo_tok, hst=hst, next_w2_item=next_w2_item, tr4_items=tr4_items, slot_info=slot_info, staged_to_reg=staged_to_reg)

def phase2(p, role, info):
    W, free_oct = info['W'], info['free_oct']
    sH0, sH1, sPQ0, sPQ1, sKZ, sF = sL[0], sL[1], sL[2], sL[3], sL[4], sL[5]
    p.wait(info['hst'][-1]); p('s_barrier')
    p('s_lshl_b32 s%d, s%d, 4' % (sT1, sI)); p('s_add_u32 s%d, s%d, s%d' % (sT1, sT1, sC))
    uniform_flag(p, FLG_H, sT1)
    p.stamp(8)
    while True:
        f = info['next_w2_item'](64)
        if f is None:
            if W['pos'] == 28 and len(info['wo_loc']) == 8: break
            it = info['staged_to_reg'](64, force=True)
            if not it: break
            for g in it: g()
            continue
        f()
    if not (W['pos'] == 28 and len(info['wo_loc']) == 8):
        print(W['loc'], W['slot_owner'], info['wo_loc']); raise SystemExit('W2 overflow')
    vPH, vPZ, vPD = vT + 16, vT + 17, vT + 18
    p('v_and_b32 v%d, 3, v%d' % (vPH, vL)); p('v_lshlrev_b32 v%d, 7, v%d' % (vPH, vPH))
    p('s_lshr_b32 s%d, s%d, 1' % (sT0, sRT)); p('s_lshl_b32 s%d, s%d, 4' % (sT0, sT0)); p('s_lshl_b32 s%d, s%d, 2' % (sT1, sW)); p('s_add_u32 s%d, s%d, s%d' % (sT0, sT0, sT1))
    p('s_lshl_b32 s%d, s%d, 7' % (sT0, sT0)); p('s_add_u32 s%d, s%d, 0x%x' % (sG2[0], sT0, FLG_H))
    p('v_and_b32 v%d, 31, v%d' % (vPZ, vL)); p('v_lshlrev_b32 v%d, 7, v%d' % (vPZ, vPZ))
    p('s_lshl_b32 s%d, s%d, 12' % (sG2[1], sW)); p('s_add_u32 s%d, s%d, 0x%x' % (sG2[1], sG2[1], FLG_KVZ))
    p('s_mul_i32 s%d, s%d, %d' % (sH0, sRT, 2 * 112 * 1024)); p('s_mul_i32 s%d, s%d, %d' % (sT0, sW, 28 * 1024)); p('s_add_u32 s%d, s%d, s%d' % (sH0, sH0, sT0))
    p('s_and_b32 s%d, s%d, 3' % (sT0, sRT)); p('s_lshl_b32 s%d, s%d, 13' % (sT0, sT0)); p('s_add_u32 s%d, s%d, s%d' % (sH0, sH0, sT0))
    p('s_add_u32 s%d, s%d, %d' % (sH1, sH0, 112 * 1024))
    p('s_lshl_b32 s%d, s%d, 16' % (sPQ0, sRT)); p('s_lshl_b32 s%d, s%d, 13' % (sT0, sW)); p('s_add_u32 s%d, s%d, s%d' % (sPQ0, sPQ0, sT0)); p('s_add_u32 s%d, s%d, 0x%x' % (sPQ0, sPQ0, PQ_OFF))
    p('s_add_u32 s%d, s%d, 32768' % (sPQ1, sPQ0))
    p('s_add_u32 s%d, s%d, 0x%x' % (sKZ, sT0, KVZ_OFF))
    KR = vT + 8
    if role == 'CD':
        p('s_lshl_b32 s%d, s%d, 1' % (sU, sQD)); p('s_add_u32 s%d, s%d, s%d' % (sU, sU, sMEM)); p('s_sub_u32 s%d, s%d, 2' % (sU, sU))
        p('v_and_b32 v%d, 15, v%d' % (vT + 6, vL)); p('v_lshlrev_b32 v%d, 7, v%d' % (vT + 6, vT + 6))
        p('s_lshl_b32 s%d, s%d, 11' % (sF, sU)); p('s_add_u32 s%d, s%d, 0x%x' % (sF, sF, FLG_KVP))
        lw = p.newlabel('L_kp')
        p('s_cmp_lg_u32 s%d, 0' % sW); p('s_cbranch_scc1 %s' % lw)
        n_before = (p.vm_issued, p.vm_done)
        p('s_waitcnt vmcnt(0)')
        p('buffer_load_dword v%d, v%d, %s, s%d offen %s' % (vPD, vT + 6, srd(S_WS), sF, LD)); p('s_waitcnt vmcnt(0)')
        poll_check(p, None, vT + 6, sF, vPD)
        p.label(lw)
        p('s_barrier')
        p('v_lshrrev_b32 v%d, 3, v%d' % (vT + 6, vL)); p('v_lshlrev_b32 v%d, 12, v%d' % (vT + 6, vT + 6))
        p('v_bfe_u32 v%d, v%d, 2, 1' % (vT + 7, vL)); p('v_lshl_add_u32 v%d, v%d, 10, v%d' % (vT + 6, vT + 7, vT + 6))
        p('v_and_b32 v%d, 3, v%d' % (vT + 7, vL)); p('v_lshl_add_u32 v%d, v%d, 4, v%d' % (vT + 6, vT + 7, vT + 6))
        p('s_lshl_b32 s%d, s%d, 2' % (sF, sU)); p('s_add_u32 s%d, s%d, s%d' % (sF, sF, sW))
        p('s_lshl_b32 s%d, s%d, 15' % (sT0, sF)); p('s_lshl_b32 s%d, s%d, 6' % (sT1, sI)); p('s_add_u32 s%d, s%d, s%d' % (sT0, sT0, sT1)); p('s_add_u32 s%d, s%d, 0x%x' % (sT0, sT0, KVP_OFF))
        krt = [p.vm('buffer_load_dwordx4 v[%d:%d], v%d, %s, s%d offen %s%s' % (KR + 4 * k, KR + 4 * k + 3, vT + 6, srd(S_WS), sT0, 'offset:2048 ' if k else '', LD)) for k in range(2)]
        p.wait(krt)
        for r in range(4): p('v_add_f32 v%d, v%d, v%d' % (KR + r, KR + r, KR + 4 + r))
        for r in range(4): p('v_mov_b32 v%d, v%d' % (KR + 4 + r, KR + r))
        p('s_nop 1')
        for r in range(4): p('v_permlane32_swap_b32 v%d, v%d' % (KR + r, KR + 4 + r))
        p('s_nop 1')
        for r in range(4): p('v_add_f32 v%d, v%d, v%d' % (KR + r, KR + r, KR + 4 + r))
        for r in range(4): p('v_mov_b32 v%d, v%d' % (KR + 4 + r, KR + r))
        p('s_nop 1')
        for r in range(4): p('v_permlane16_swap_b32 v%d, v%d' % (KR + r, KR + 4 + r))
        p('s_nop 1')
        for r in range(4): p('v_add_f32 v%d, v%d, v%d' % (KR + r, KR + r, KR + 4 + r))
        p('s_nop 1')
        for r in range(4): p('v_add_f32_dpp v%d, v%d, v%d row_ror:8 row_mask:0xf bank_mask:0xf' % (KR + 4 + r, KR + r, KR + r))
        p('v_cvt_pk_bf16_f32 v%d, v%d, v%d' % (KR, KR + 4, KR + 5)); p('v_cvt_pk_bf16_f32 v%d, v%d, v%d' % (KR + 1, KR + 6, KR + 7))
        p('v_and_b32 v%d, 3, v%d' % (vT + 7, vL)); p('v_lshlrev_b32 v%d, 4, v%d' % (vT + 6, vT + 7))
        p('v_bfe_u32 v%d, v%d, 2, 1' % (vT + 7, vL)); p('v_lshl_add_u32 v%d, v%d, 3, v%d' % (vT + 6, vT + 7, vT + 6))
        p('s_lshl_b32 s%d, s%d, 10' % (sT0, sF)); p('s_lshl_b32 s%d, s%d, 6' % (sT1, sI)); p('s_add_u32 s%d, s%d, s%d' % (sT0, sT0, sT1)); p('s_add_u32 s%d, s%d, 0x%x' % (sT0, sT0, KVZ_OFF))
        p('s_mov_b64 s[%d:%d], exec' % (sEX, sEX + 1)); p('s_mov_b64 exec, 0xff')
        kzs = p.vm('buffer_store_dwordx2 v[%d:%d], v%d, %s, s%d offen %s' % (KR, KR + 1, vT + 6, srd(S_WS), sT0, ST))
        p('s_mov_b64 exec, s[%d:%d]' % (sEX, sEX + 1))
        p.wait(kzs); p('s_barrier')
        p('s_lshl_b32 s%d, s%d, 4' % (sT1, sU)); p('s_add_u32 s%d, s%d, s%d' % (sT1, sT1, sI))
        uniform_flag(p, FLG_KVZ, sT1)
    def to_reg(pos):
        kind, where = W['loc'][pos]
        oc = free_oct.pop(0)
        if kind == 'stage': _, _, regs, off = info['slot_info'](where)
        else: regs, off = (vR0, vR1), where
        W['loc'][pos] = ('reg', oc)
        for f in info['tr4_items'](pos, regs, off, oc, W['ttok'].setdefault(pos, [])): f()
    tk = poll_issue(p, vPH, sG2[0], vPD); poll_check(p, tk, vPH, sG2[0], vPD)
    p.stamp(9)
    NR = 16; ht = {}
    def hb(j, mt): return XF + 8 * (j % NR) + 4 * mt
    def ld_h(j):
        ht[j] = []
        for mt, so in enumerate((sH0, sH1)):
            r = hb(j, mt)
            ht[j].append(p.vm('buffer_load_dwordx4 v[%d:%d], v%d, %s, s%d offen %s%s' % (r, r + 3, vST, srd(S_WS), so, ('offset:%d ' % (1024 * (j & 3))) if j & 3 else '', LD)))
        if j & 3 == 3 and j < 27:
            p('s_movk_i32 s%d, 4096' % sT2); p('s_cmp_eq_u32 s%d, %d' % (sW2WRAP, j + 1)); p('s_cselect_b32 s%d, 0x%x, s%d' % (sT2, (4096 - 28 * 1024) & 0xffffffff, sT2))
            p('s_add_u32 s%d, s%d, s%d' % (sH0, sH0, sT2)); p('s_add_u32 s%d, s%d, s%d' % (sH1, sH1, sT2))
    for j in range(NR): ld_h(j)
    for pos in range(28):
        if W['loc'][pos][0] != 'reg': to_reg(pos)
    ACC = ACC2
    PQR, KZR = XF, XF + 96
    ND = vT + 0
    pqt, kzt = {}, {}
    XR = vT + 24; ga = vT + 22; zt = None
    for j in range(28):
        p.wait(ht[j] + W['ttok'][j])
        oc = W['loc'][j][1]
        for nt in range(2):
            for mt in range(2):
                d = ACC + 16 * (2 * nt + mt); r = hb(j, mt)
                p('v_mfma_f32_32x32x16_bf16 v[%d:%d], %s[%d:%d], v[%d:%d], %s' % (d, d + 15, oc[0], oc[1] + 4 * nt, oc[1] + 4 * nt + 3, r, r + 3, '0' if j == 0 else 'v[%d:%d]' % (d, d + 15)))
        if j + NR < 28: ld_h(j + NR)
        if 16 <= j < 24:
            hh = j - 16
            for mt, so in enumerate((sPQ0, sPQ1)):
                r = PQR + 8 * hh + 4 * mt
                pqt[(hh, mt)] = p.vm('buffer_load_dwordx4 v[%d:%d], v%d, %s, s%d offen %s%s' % (r, r + 3, vST, srd(S_WS), so, ('offset:%d ' % (1024 * (hh & 3))) if hh & 3 else '', LD))
            if hh == 3: p('s_add_u32 s%d, s%d, 4096' % (sPQ0, sPQ0)); p('s_add_u32 s%d, s%d, 4096' % (sPQ1, sPQ1))
        if j == 12: zt = poll_issue(p, vPZ, sG2[1], vPD)
        if j == 16:
            poll_check(p, zt, vPZ, sG2[1], vPD)
            for hh in range(8):
                kzt[hh] = p.vm('buffer_load_dwordx4 v[%d:%d], v%d, %s, s%d offen %s%s' % (KZR + 4 * hh, KZR + 4 * hh + 3, vST, srd(S_WS), sKZ, ('offset:%d ' % (1024 * (hh & 3))) if hh & 3 else '', LD))
                if hh == 3: p('s_add_u32 s%d, s%d, 4096' % (sKZ, sKZ))
        if j == 20:
            p('v_lshrrev_b32 v%d, 3, v0' % ga); p('v_lshlrev_b32 v%d, 10, v%d' % (ga, ga))
            p('v_and_b32 v%d, 7, v0' % (vT + 23)); p('v_lshl_add_u32 v%d, v%d, 4, v%d' % (ga, vT + 23, ga))
            p('s_lshl_b32 s%d, s%d, 16' % (sHST1, sRT)); p('s_lshl_b32 s%d, s%d, 7' % (sT1, sCT)); p('s_add_u32 s%d, s%d, s%d' % (sHST1, sHST1, sT1))
            p('s_add_u32 s%d, s%d, 32768' % (sHST2, sHST1))
            xt = [p.vm('buffer_load_dwordx4 v[%d:%d], v%d, %s, s%d offen' % (XR + 4 * k, XR + 4 * k + 3, ga, srd(S_X), (sHST1, sHST2)[k])) for k in range(2)]
    p.stamp(10)
    ND = XF + 64
    wfr = {}
    FBS = [0, 8, 16]
    def wo_tr(hh):
        p.wait(info['wo_tok'][hh]); t = []
        fb = FBS[hh % 3]; regs, off = info['wo_loc'][hh]
        for nt, reg in enumerate(regs):
            for rd in range(2):
                b = fb + 4 * nt + 2 * rd
                t.append(p.lg('ds_read_b64_tr_b16 a[%d:%d], v%d offset:%d' % (b, b + 1, reg, off + 1024 * rd)))
        wfr[hh] = t
    def nd_mfma(u):
        hh, mt = u >> 1, u & 1; d = ND + 16 * (u & 1)
        p.wait([kzt[hh], pqt[(hh, mt)]])
        p('v_mfma_f32_32x32x16_bf16 v[%d:%d], v[%d:%d], v[%d:%d], 0' % (d, d + 15, KZR + 4 * hh, KZR + 4 * hh + 3, PQR + 8 * hh + 4 * mt, PQR + 8 * hh + 4 * mt + 3))
    def o_valu(u):
        hh = u >> 1; d = ND + 16 * (u & 1)
        num, den = (d, d + 8) if hh % 2 == 0 else (d + 8, d)
        t = vT + 8 * (u & 1)
        p('v_add_f32 v%d, s%d, v%d' % (t + 4, sEPS, den)); p('v_rcp_f32 v%d, v%d' % (t + 4, t + 4)); p('s_nop 0')
        for r in range(8): p('v_mul_f32 v%d, v%d, v%d' % (num + r, num + r, t + 4))
        for q in range(4): p('v_cvt_pk_bf16_f32 v%d, v%d, v%d' % (t + q, num + 2 * q, num + 2 * q + 1))
    def wo_mfma(u):
        hh, mt = u >> 1, u & 1
        p.wait(wfr[hh])
        fb = FBS[hh % 3]; t = vT + 8 * (u & 1)
        for nt in range(2):
            d = ACC + 16 * (2 * nt + mt)
            p('v_mfma_f32_32x32x16_bf16 v[%d:%d], a[%d:%d], v[%d:%d], v[%d:%d]' % (d, d + 15, fb + 4 * nt, fb + 4 * nt + 3, t, t + 3, d, d + 15))
    p('s_nop 3')
    wo_tr(0); wo_tr(1)
    nd_mfma(0); nd_mfma(1)
    for u in range(16):
        o_valu(u)
        if u + 2 < 16: nd_mfma(u + 2)
        if u % 2 == 0 and (u >> 1) + 2 < 8: wo_tr((u >> 1) + 2)
        wo_mfma(u)
    p.stamp(11)
    p.wait_all(vm=False)
    wa = vT
    p('v_and_b32 v%d, 31, v%d' % (wa, vL)); p('v_mul_u32_u24 v%d, 272, v%d' % (wa, wa))
    p('v_lshrrev_b32 v%d, 5, v%d' % (wa + 1, vL)); p('v_lshl_add_u32 v%d, v%d, 4, v%d' % (wa, wa + 1, wa))
    p('v_add_u32 v%d, s%d, v%d' % (wa, sWB, wa))
    ra = vT + 2
    p('v_lshrrev_b32 v%d, 3, v0' % ra); p('v_mul_u32_u24 v%d, 272, v%d' % (ra, ra))
    p('v_and_b32 v%d, 7, v0' % (vT + 3)); p('v_lshl_add_u32 v%d, v%d, 5, v%d' % (ra, vT + 3, ra))
    p('v_add_u32 v%d, 0x10000, v%d' % (ra + 1, ra))
    p('s_nop 3')
    for mt in range(2):
        for nt in range(2):
            for q in range(4):
                r = ACC + 16 * (2 * nt + mt) + 4 * q
                p.lg('ds_write_b128 v%d, v[%d:%d] offset:%d' % (wa, r, r + 3, mt * 8704 + nt * 128 + q * 32))
    p.wait_all(vm=False); p('s_barrier')
    R = XF; rt = {}
    for j in range(2):
        for wv in range(4):
            for hh in range(2):
                r = R + 32 * j + 8 * wv + 4 * hh
                rt[(j, wv, hh)] = p.lg('ds_read_b128 v[%d:%d], v%d offset:%d' % (r, r + 3, ra if wv < 2 else ra + 1, (wv & 1) * 32768 + j * 8704 + hh * 16))
    for j in range(2):
        p.wait([rt[(j, wv, hh)] for wv in range(4) for hh in range(2)])
        b = R + 32 * j
        for r in range(8): p('v_add_f32 v%d, v%d, v%d' % (b + r, b + r, b + 8 + r))
        for r in range(8): p('v_add_f32 v%d, v%d, v%d' % (b + 16 + r, b + 16 + r, b + 24 + r))
        for r in range(8): p('v_add_f32 v%d, v%d, v%d' % (b + r, b + r, b + 16 + r))
        p.wait(xt[j])
        t = vT + 16
        for q in range(4):
            x = XR + 4 * j + q
            p('v_lshlrev_b32 v%d, 16, v%d' % (t, x)); p('v_and_b32 v%d, 0xffff0000, v%d' % (t + 1, x))
            p('v_add_f32 v%d, v%d, v%d' % (b + 2 * q, b + 2 * q, t)); p('v_add_f32 v%d, v%d, v%d' % (b + 2 * q + 1, b + 2 * q + 1, t + 1))
            p('v_cvt_pk_bf16_f32 v%d, v%d, v%d' % (x, b + 2 * q, b + 2 * q + 1))
        p.vm('buffer_store_dwordx4 v[%d:%d], v%d, %s, s%d offen' % (XR + 4 * j, XR + 4 * j + 3, ga, srd(S_OUT), (sHST1, sHST2)[j]))
    la = p.newlabel('L_ns')
    p('s_or_b32 s%d, s2, s%d' % (sT1, sW)); p('s_cmp_lg_u32 s%d, 0' % sT1); p('s_cbranch_scc1 %s' % la)
    p('s_barrier') if False else None
    p('v_mov_b32 v%d, s%d' % (vT + 4, sNONCE)); p('v_mov_b32 v%d, 0' % (vT + 5)); p('s_mov_b32 s%d, 0x%x' % (sT1, NONCE_OFF))
    p('s_mov_b64 exec, 1')
    p('buffer_store_dword v%d, v%d, %s, s%d offen %s' % (vT + 4, vT + 5, srd(S_WS), sT1, ST))
    p.label(la)
    p.stamp(12)
    if p.stamps_on:
        p('s_mov_b64 exec, -1')
        p('s_waitcnt vmcnt(0)'); p.stamp_rt(13)
        p.stamp_dump(srd(S_WS), 0x8000000, 14)

def build(stamps=None):
    p = Prog(); p.stamps_on = stamps is not None
    if stamps: p.stamp_map = {i: k for k, i in enumerate(stamps)}
    p('s_cmp_ge_u32 s2, 256'); p('s_cbranch_scc1 L_end')
    prologue(p)
    pro = list(p.ins)
    st = (p.vm_issued, p.vm_done, p.lg_issued, p.lg_done)
    paths = {}
    for role in ('AB', 'CD'):
        p.vm_issued, p.vm_done, p.lg_issued, p.lg_done = st
        n0 = len(p.ins)
        info = build_role(p, role)
        phase2(p, role, info)
        paths[role] = p.ins[n0:]
    probs = []
    head = pro + ['s_cmp_ge_u32 s%d, 2' % sMEM, 's_cbranch_scc1 L_cd']
    out = list(head)
    for role in ('AB', 'CD'):
        fixed, n = fix_hazards(head + paths[role])
        assert fixed[:len(head)] == head, 'hazard in prologue'
        body = fixed[len(head):]
        print(role, 'auto-inserted wait states:', n, 'instrs', len(body))
        probs += check_hazards(head + body, role) + check_waits(head + body, 'w' + role)
        if role == 'CD': out.append('L_cd:')
        out += body
        if role == 'AB': out.append('s_branch L_end')
        paths[role] = body
    out.append('L_end:')
    p.ins = out
    return p, probs, paths

if __name__ == '__main__':
    sys.path.insert(0, 'dev')
    from asmlib import make_file
    stamps = [int(x) for x in sys.argv[2].split(',')] if len(sys.argv) > 2 else None
    p, probs, paths = build(stamps)
    for x in probs[:30]: print(x)
    for l in p.ins:
        if l.startswith('; W2 state'): print(l[:700])
    print('problems:', len(probs), 'regs', maxregs(p.ins), 'n', len(p.ins))
    ks = [dict(name=NAME, body=p.text(), grid=(256, 1, 1), block=(256, 1, 1), lds=163840, vgpr=512, accum=256, sgpr=102)]
    txt = make_file(ks, single=True)
    if 'CODE_STRIDE' in txt:
        import subprocess, re as _re
        tmp = txt.replace('CODE_STRIDE', '0x780')
        open('_cs.s', 'w').write(tmp)
        subprocess.run(['clang', '-x', 'assembler', '-target', 'amdgcn-amd-amdhsa', '-mcpu=gfx950', '-c', '_cs.s', '-o', '_cs.o'], check=True)
        sym = subprocess.run(['llvm-readelf', '-s', '_cs.o'], capture_output=True, text=True).stdout
        addr = {}
        for l in sym.splitlines():
            f = l.split()
            if len(f) >= 8 and f[7] in ('L_end', NAME): addr[f[7]] = int(f[1], 16)
        size = addr['L_end'] - addr[NAME]
        stride = (size // 33) & ~127
        print('code size', size, 'stride', stride)
        assert 31 * stride + stride + 4 <= size
        txt = txt.replace('CODE_STRIDE', '0x%x' % stride)
    open(sys.argv[1], 'w').write(txt)
```

```python
import sys, os
from fw import *

NAME = 'parallel_sum__linear_attn_block__glu_gated_reglu__prompt_kernel'
H_OFF, PQ_OFF, KVP_OFF, KVZ_OFF, STAT_OFF = 0x0, 0x800000, 0xA00000, 0xB00000, 0xD00000
FLG_H, FLG_KVP, FLG_KVZ, NONCE_OFF = 0xC00000, 0xC10000, 0xC20000, 0xC30000
WS_BYTES = 268435456
SPARE = 131072
ST = 'sc1'; LD = 'sc1'; DST = 'sc1'
TOUCH = int(os.environ.get('TOUCH', '1'))
NRING = 5
LAT = int(os.environ.get('LAT', '2600'))
SLEEP = 6
TTLB = int(os.environ.get('TTLB', '0'))
TCODE = int(os.environ.get('TCODE', '1'))
ROTMODE = int(os.environ.get('ROTMODE', '0'))
EARLY12 = int(os.environ.get('EARLY12', '0'))

S_X, S_WQ, S_WG, S_WU, S_WS, S_WD, S_WO, S_OUT = 4, 8, 12, 16, 20, 24, 28, 32
sW, sI, sMEM, sQD, sWB = 36, 37, 38, 39, 40
sLOG2E, sEPS, sONES = 41, 42, 43
sL = [44, 45, 46, 47, 48, 49]
sG2 = [50, 51]
sHST1, sHST1b, sHST2, sPQ, sKVP = 52, 53, 54, 55, 56
sT0, sT1, sT2 = 57, 58, 59
sNONCE, sSPIN = 60, 3
sRT, sCT = 61, 62
sWD0, sWD1, sWO0, sWO1 = 63, 64, 65, 66
sU, sS2, sWRAP = 67, 68, 69
sStepQ, sWrapQ, sStepG, sWrapG, sInc = 88, 89, 90, 91, 92
sC = 93
sEX = 94
sMASK, sROT = 96, 97
sXB, sKX, sIncX = 98, 99, 100
sW2WRAP = 101
def srd(b): return 's[%d:%d]' % (b, b + 3)

vL, vST, vD2 = 1, 2, 3
vWA, vWB, vWC, vWD = 4, 5, 6, 7
vS0, vS1 = 8, 9
vR0, vR1 = 10, 11
vTR = 12
vT = 24
vRS, vNM = 62, 63
ACC2 = 64
XF = 128
vX = [72, 73, 74, 75]
vXA = [76, 77, 78, 79]
vDUM = 80; vTA = 81
ACC1, WF, EPSB = 0, 96, 144
AOCT = [160 + 8 * k for k in range(12)]
def xf(s): return 'v[%d:%d]' % (XF + 4 * s, XF + 4 * s + 3)
def T(p, s): return lambda: p(s)
KVS = [4096, 10240, 16384, 22528]

class Mark:
    def __init__(self, fn): self.fn = fn
    def __call__(self): self.fn()

def slot_base_const(S):
    Tg = S >> 2
    if Tg == 0: return SPARE + 6144 * (S & 3)
    return 32768 * (S & 3) + 6144 * ((Tg - 1) % NRING)

def tiles_of(role, grp):
    if grp == 2: return [('m%d' % t, 0, 512, False) for t in range(4)]
    if role == 'AB':
        return [('q0', 0, 512, True), ('q1', 0, 512, True), ('q0', 2048, 512, True), ('q1', 2048, 512, True), ('q0', 4096, 512, False), ('q1', 4096, 512, False)]
    return [('m%d' % t, 0, 512, False) for t in range(4)] + [('h0', 4096, 256, False), ('h1', 4096, 256, False)]
def wf(S, j, G): return WF + (S & 1) * 4 * G + 4 * j

def tr_items(p, role, S, variants, ftok):
    tl = tiles_of(role, 1 if S < 32 else 2); G = len(tl)
    items = []; blk = slot_base_const(S)
    for j, (var, lo, rds, sw) in enumerate(tl):
        ftok[(S, j)] = []
        for rd in range(2):
            const = blk + lo + rd * rds
            win, off = const >> 16, const & 0xffff
            b = wf(S, j, G) + 2 * rd
            def f(b=b, reg=variants[var][win], off=off, key=(S, j)):
                ftok[key].append(p.lg('ds_read_b64_tr_b16 a[%d:%d], v%d offset:%d' % (b, b + 1, reg, off)))
            items.append(f)
    return items

def prologue(p):
    if p.stamps_on: p('s_memrealtime s[98:99]'); p('s_memtime s[100:101]')
    p('s_load_dwordx2 s[70:71], s[0:1], 0')
    p('s_load_dwordx2 s[86:87], s[0:1], 72')
    p('s_load_dwordx4 s[72:75], s[0:1], 8')
    p('s_load_dwordx4 s[76:79], s[0:1], 32')
    p('s_load_dwordx4 s[80:83], s[0:1], 48')
    p('v_and_b32 v%d, 63, v0' % vL)
    p('v_lshrrev_b32 v%d, 6, v0' % vT)
    p('s_and_b32 s%d, s2, 7' % sT0); p('s_lshr_b32 s%d, s2, 3' % sT1)
    p('v_readfirstlane_b32 s%d, v%d' % (sW, vT))
    p('s_lshr_b32 s%d, s%d, 1' % (sQD, sT0))
    p('s_lshl_b32 s%d, s%d, 2' % (sRT, sT0)); p('s_and_b32 s%d, s%d, 3' % (sT2, sT1)); p('s_add_u32 s%d, s%d, s%d' % (sRT, sRT, sT2))
    p('s_lshr_b32 s%d, s%d, 2' % (sCT, sT1))
    p('s_and_b32 s%d, s%d, 1' % (sT0, sT0)); p('s_lshl_b32 s%d, s%d, 3' % (sT0, sT0))
    p('s_and_b32 s%d, s%d, 7' % (sI, sT1)); p('s_add_u32 s%d, s%d, s%d' % (sI, sI, sT0))
    p('s_lshr_b32 s%d, s%d, 3' % (sMEM, sT1))
    p('s_lshl_b32 s%d, s%d, 2' % (sC, sQD)); p('s_add_u32 s%d, s%d, s%d' % (sC, sC, sMEM))
    if ROTMODE == 0:
        p('s_lshl_b32 s%d, s%d, 1' % (sROT, sMEM)); p('s_add_u32 s%d, s%d, s%d' % (sROT, sROT, sI)); p('s_and_b32 s%d, s%d, 7' % (sROT, sROT))
    else:
        p('s_and_b32 s%d, s%d, 1' % (sROT, sI)); p('s_lshl_b32 s%d, s%d, 1' % (sROT, sROT)); p('s_add_u32 s%d, s%d, s%d' % (sROT, sROT, sMEM)); p('s_lshl_b32 s%d, s%d, 1' % (sROT, sROT)); p('s_and_b32 s%d, s%d, 7' % (sROT, sROT))
    p('s_lshl_b32 s%d, s%d, 7' % (sT0, sI)); p('s_lshl_b32 s%d, s%d, 3' % (sT1, sC)); p('s_add_u32 s%d, s%d, s%d' % (sT0, sT0, sT1))
    p('s_lshl_b32 s%d, s%d, 1' % (sT1, sW)); p('s_add_u32 s%d, s%d, s%d' % (sT2, sT0, sT1)); p('s_lshl_b32 s%d, s%d, 10' % (sT0, sT2))
    p('v_lshrrev_b32 v%d, 5, v%d' % (vT, vL)); p('v_lshlrev_b32 v%d, 10, v%d' % (vT, vT))
    p('v_and_b32 v%d, 31, v%d' % (vT + 1, vL)); p('v_lshl_add_u32 v%d, v%d, 5, v%d' % (vT, vT + 1, vT))
    p('v_mov_b32 v%d, 0' % (vT + 2)); p('s_mov_b32 s%d, 0x%x' % (sT1, NONCE_OFF))
    p('s_lshl_b32 s%d, s%d, 4' % (sHST2, sT2)); p('s_add_u32 s%d, s%d, 0x%x' % (sHST2, sHST2, STAT_OFF))
    a, b, c = vT + 4, vT + 5, vT + 6
    p('v_lshrrev_b32 v%d, 3, v%d' % (a, vL)); p('v_lshlrev_b32 v%d, 10, v%d' % (a, a))
    p('v_and_b32 v%d, 7, v%d' % (b, vL)); p('v_lshrrev_b32 v%d, 4, v%d' % (c, vL)); p('v_xor_b32 v%d, v%d, v%d' % (b, b, c))
    p('v_lshl_add_u32 v%d, v%d, 4, v%d' % (vX[0], b, a))
    p('s_lshl_b32 s%d, s%d, 7' % (sT1, sROT)); p('v_add_u32 v%d, s%d, v%d' % (vX[0], sT1, vX[0]))
    p('v_xor_b32 v%d, 64, v%d' % (vX[1], vX[0])); p('v_add_u32 v%d, 14336, v%d' % (vX[2], vX[0])); p('v_add_u32 v%d, 7168, v%d' % (vX[1], vX[1]))
    p('v_add_u32 v%d, 14336, v%d' % (vX[3], vX[1]))
    p('s_mov_b32 s%d, 0x%x' % (sT1, NONCE_OFF))
    p('s_lshl_b32 s%d, s%d, 15' % (sWB, sW))
    p('s_waitcnt lgkmcnt(0)')
    if p.stamps_on: p('s_mov_b32 s88, s98'); p('s_mov_b32 s89, s100')
    def mk(base, src, n):
        p('s_mov_b32 s%d, s%d' % (base, src)); p('s_mov_b32 s%d, s%d' % (base + 1, src + 1))
        p('s_mov_b32 s%d, 0x%x' % (base + 2, n)); p('s_mov_b32 s%d, 0x00020000' % (base + 3))
    mk(S_X, 70, 2048 * 1024); mk(S_WS, 86, WS_BYTES)
    XR = vT + 8
    p.xl = [p.vm('buffer_load_dwordx4 v[%d:%d], v%d, %s, s%d offen %s' % (XR + 4 * k, XR + 4 * k + 3, vT, srd(S_X), sT0, 'offset:16' if k else '')) for k in range(2)]
    p.nl = p.vm('buffer_load_dword v%d, v%d, %s, s%d offen %s' % (vT + 3, vT + 2, srd(S_WS), sT1, LD))
    if TCODE: touch_code(p)
    p('s_lshl_b32 s%d, s%d, 2' % (sXB, sI)); p('s_add_u32 s%d, s%d, s%d' % (sXB, sXB, sW)); p('s_lshl_b32 s%d, s%d, 15' % (sXB, sXB))
    p('s_mov_b32 s%d, s%d' % (sKX, sROT))
    mk(S_WQ, 72, 512 * 3072); mk(S_WO, 74, 512 * 1024); mk(S_WG, 76, 512 * 3584); mk(S_WU, 78, 512 * 3584); mk(S_WD, 80, 1792 * 1024); mk(S_OUT, 82, 2048 * 1024)
    if p.stamps_on: p('s_mov_b32 s70, s88'); p('s_mov_b32 s72, s89')
    p('s_lshl_b32 s%d, s%d, 13' % (sS2, sW)); p('s_add_u32 s%d, s%d, %d' % (sS2, sS2, SPARE))
    p('s_sub_u32 s%d, 7, s%d' % (sWRAP, sROT))
    p('s_mov_b32 s%d, 0x3fb8aa3b' % sLOG2E); p('s_mov_b32 s%d, 0x358637bd' % sEPS); p('s_mov_b32 s%d, 0x3f803f80' % sONES); p('s_mov_b32 s%d, 0xffff0000' % sMASK)
    p('s_mov_b32 s%d, %d' % (sStepG, 64 * 3584)); p('s_mov_b32 s%d, 0x%x' % (sWrapG, (-448 * 3584) & 0xffffffff))
    p('s_mov_b32 s%d, %d' % (sStepQ, 64 * 3072)); p('s_mov_b32 s%d, 0x%x' % (sWrapQ, (-448 * 3072) & 0xffffffff))
    p('v_lshlrev_b32 v%d, 4, v%d' % (vST, vL))

def touch_code(p):
    a = vT + 30
    p('s_getpc_b64 s[%d:%d]' % (sEX, sEX + 1))
    p.label('L_pc_here')
    p('s_sub_u32 s%d, s%d, L_pc_here-%s' % (sEX, sEX, NAME)); p('s_subb_u32 s%d, s%d, 0' % (sEX + 1, sEX + 1))
    p('s_lshr_b32 s%d, s2, 3' % sT2); p('s_mul_i32 s%d, s%d, CODE_STRIDE' % (sT2, sT2))
    p('v_lshlrev_b32 v%d, 7, v%d' % (a, vL)); p('v_min_u32 v%d, CODE_STRIDE, v%d' % (a, a)); p('v_add_u32 v%d, s%d, v%d' % (a, sT2, a))
    p.vm('global_load_dword v%d, v%d, s[%d:%d]' % (a + 1, a, sEX, sEX + 1))

def touch_tlb(p):
    a = vT + 32
    p('v_mul_u32_u24 v%d, 0x3c000, v%d' % (a, vL))
    p.vm('buffer_load_dword v%d, v%d, %s, 0 offen' % (a + 1, a, srd(S_WS)))
    p('v_lshlrev_b32 v%d, 15, v%d' % (a + 2, vL))
    p.vm('buffer_load_dword v%d, v%d, %s, 0 offen' % (a + 1, a + 2, srd(S_OUT)))
    p.vm('buffer_load_dword v%d, v%d, %s, 0 offen' % (a + 1, a + 2, srd(S_WD)))

def x_dma_items(p):
    toks = [[] for _ in range(8)]; items = []
    for c in range(8):
        def f(c=c):
            p('s_add_u32 m0, s%d, %d' % (sWB, 4096 * c))
            p('s_add_u32 s%d, s%d, 1' % (sKX, sKX)); p('s_and_b32 s%d, s%d, 7' % (sKX, sKX))
            p('s_movk_i32 s%d, 128' % sIncX); p('s_cmp_eq_u32 s%d, 0' % sKX); p('s_cselect_b32 s%d, 0xfffffc80, s%d' % (sIncX, sIncX))
            for q in range(4):
                toks[c].append(p.vm('buffer_load_dwordx4 v%d, %s, s%d offen %slds' % (vX[q], srd(S_X), sXB, ('offset:%d ' % (1024 * q)) if q else '')))
            if c < 7:
                for q in range(4): p('v_add_u32 v%d, s%d, v%d' % (vX[q], sIncX, vX[q]))
        items.append(f)
    return items, toks

def setup(p, role):
    q = p
    a, b, c = vT + 16, vT + 17, vT + 18
    q('v_lshrrev_b32 v%d, 3, v%d' % (a, vL))
    q('v_lshrrev_b32 v%d, 2, v%d' % (c, vL)); q('v_and_b32 v%d, 4, v%d' % (c, c))
    q('v_and_b32 v%d, 7, v%d' % (b, vL)); q('v_xor_b32 v%d, v%d, v%d' % (b, b, c)); q('v_lshlrev_b32 v%d, 4, v%d' % (b, b))
    q('v_lshl_add_u32 v%d, v%d, 10, v%d' % (vD2, a, b))
    q('s_movk_i32 s%d, 3072' % sT1); q('s_movk_i32 s%d, 3584' % sT2)
    rot = sROT
    q('s_mul_i32 s%d, s%d, %d' % (sWO1, rot, 64 * 3072)); q('s_mul_i32 s%d, s%d, %d' % (sWD1, rot, 64 * 3584))
    if role == 'AB':
        q('v_mad_u32_u24 v%d, v%d, s%d, v%d' % (vWA, a, sT1, b)); q('v_mad_u32_u24 v%d, v%d, s%d, v%d' % (vWB, a, sT2, b))
        q('v_add_u32 v%d, s%d, v%d' % (vWA, sWO1, vWA)); q('v_add_u32 v%d, s%d, v%d' % (vWB, sWD1, vWB))
        q('v_xor_b32 v%d, 32, v%d' % (vWC, vWB))
    else:
        q('v_mad_u32_u24 v%d, v%d, s%d, v%d' % (vWA, a, sT2, b)); q('v_add_u32 v%d, s%d, v%d' % (vWA, sWD1, vWA))
        q('v_xor_b32 v%d, 32, v%d' % (vWB, vWA))
        q('v_lshrrev_b32 v%d, 2, v%d' % (a, vL)); q('v_and_b32 v%d, 3, v%d' % (b, vL)); q('v_lshlrev_b32 v%d, 4, v%d' % (b, b))
        q('v_mad_u32_u24 v%d, v%d, s%d, v%d' % (vWC, a, sT2, b)); q('v_add_u32 v%d, s%d, v%d' % (vWC, sWD1, vWC))
        q('v_xor_b32 v%d, 32, v%d' % (vWD, vWC))
    q('s_mul_i32 s%d, s%d, %d' % (sT1, sW, 16 * 3072)); q('s_mul_i32 s%d, s%d, %d' % (sT2, sW, 16 * 3584))
    q('s_lshl_b32 s%d, s%d, 2' % (sWO0, sI)); q('s_add_u32 s%d, s%d, s%d' % (sWO0, sWO0, sW))
    q('s_mul_i32 s%d, s%d, %d' % (sHST1, sWO0, 112 * 1024))
    q('s_lshl_b32 s%d, s%d, 15' % (sPQ, sWO0)); q('s_add_u32 s%d, s%d, 0x%x' % (sPQ, sPQ, PQ_OFF))
    if role == 'AB':
        q('s_lshl_b32 s%d, s%d, 1' % (sU, sQD)); q('s_add_u32 s%d, s%d, s%d' % (sU, sU, sMEM))
        q('s_lshl_b32 s%d, s%d, 12' % (sKVP, sU)); q('s_add_u32 s%d, s%d, s%d' % (sPQ, sPQ, sKVP))
        q('s_lshl_b32 s%d, s%d, 2' % (sKVP, sU)); q('s_add_u32 s%d, s%d, s%d' % (sKVP, sKVP, sW)); q('s_lshl_b32 s%d, s%d, 15' % (sKVP, sKVP))
        q('s_lshl_b32 s%d, s%d, 11' % (sHST2, sI)); q('s_add_u32 s%d, s%d, s%d' % (sKVP, sKVP, sHST2)); q('s_add_u32 s%d, s%d, 0x%x' % (sKVP, sKVP, KVP_OFF))
        q('s_lshl_b32 s%d, s%d, 7' % (sT0, sU)); q('s_add_u32 s%d, s%d, s%d' % (sT0, sT0, sT1))
        q('s_add_u32 s%d, s%d, %d' % (sL[0], sT0, 1024)); q('s_add_u32 s%d, s%d, %d' % (sL[1], sT0, 1024 + 8 * 3072 - 1024))
        q('s_add_u32 s%d, s%d, %d' % (sL[2], sT0, 2048 - 2048)); q('s_add_u32 s%d, s%d, %d' % (sL[3], sT0, 2048 + 8 * 3072 - 3072))
        q('s_add_u32 s%d, s%d, %d' % (sL[4], sT0, 0)); q('s_add_u32 s%d, s%d, %d' % (sL[5], sT0, 8 * 3072 - 1024))
        q('s_mul_i32 s%d, s%d, 7' % (sT0, sQD)); q('s_add_u32 s%d, s%d, s%d' % (sT0, sT0, sMEM))
        q('s_lshl_b32 s%d, s%d, 12' % (sHST2, sT0)); q('s_add_u32 s%d, s%d, s%d' % (sHST2, sHST2, sHST1))
        q('s_lshl_b32 s%d, s%d, 7' % (sT0, sT0)); q('s_add_u32 s%d, s%d, s%d' % (sG2[0], sT0, sT2)); q('s_add_u32 s%d, s%d, %d' % (sG2[1], sG2[0], 8 * 3584 - 1024))
    else:
        q('s_mul_i32 s%d, s%d, 7' % (sT0, sQD)); q('s_sub_u32 s%d, s%d, 2' % (sT1, sMEM))
        q('s_mul_i32 s%d, s%d, 3' % (sL[5], sT1)); q('s_add_u32 s%d, s%d, s%d' % (sL[5], sL[5], sT0)); q('s_add_u32 s%d, s%d, 2' % (sL[5], sL[5]))
        q('s_add_u32 s%d, s%d, 4' % (sL[4], sT0))
        q('s_lshl_b32 s%d, s%d, 12' % (sHST1b, sL[4])); q('s_lshl_b32 s%d, s%d, 11' % (sL[3], sT1)); q('s_add_u32 s%d, s%d, s%d' % (sHST1b, sHST1b, sL[3]))
        q('s_add_u32 s%d, s%d, s%d' % (sHST1b, sHST1b, sHST1))
        q('s_lshl_b32 s%d, s%d, 12' % (sL[3], sL[5])); q('s_add_u32 s%d, s%d, 4096' % (sHST2, sL[3])); q('s_add_u32 s%d, s%d, s%d' % (sHST2, sHST2, sHST1))
        q('s_add_u32 s%d, s%d, s%d' % (sHST1, sHST1, sL[3]))
        q('s_lshl_b32 s%d, s%d, 7' % (sL[2], sL[4])); q('s_lshl_b32 s%d, s%d, 6' % (sT1, sT1)); q('s_add_u32 s%d, s%d, s%d' % (sL[2], sL[2], sT1))
        q('s_add_u32 s%d, s%d, s%d' % (sL[2], sL[2], sT2))
        q('s_lshl_b32 s%d, s%d, 7' % (sL[0], sL[5])); q('s_add_u32 s%d, s%d, s%d' % (sL[0], sL[0], sT2)); q('s_add_u32 s%d, s%d, %d' % (sL[1], sL[0], 8 * 3584 - 1024))
        q('s_add_u32 s%d, s%d, 128' % (sG2[0], sL[0])); q('s_add_u32 s%d, s%d, 128' % (sG2[1], sL[1]))
    q('s_mul_i32 s%d, s%d, %d' % (sWD0, sW, 448 * 1024)); q('s_lshl_b32 s%d, s%d, 7' % (sT0, sCT)); q('s_add_u32 s%d, s%d, s%d' % (sWD0, sWD0, sT0))
    q('s_and_b32 s%d, s%d, 3' % (sT1, sRT)); q('s_lshl_b32 s%d, s%d, 3' % (sT1, sT1)); q('s_sub_u32 s%d, 28, s%d' % (sW2WRAP, sT1))
    q('s_lshl_b32 s%d, s%d, 14' % (sT1, sT1)); q('v_add_u32 v%d, s%d, v%d' % (vD2, sT1, vD2))
    q('s_add_u32 s%d, s%d, %d' % (sWD1, sWD0, 8192 - 1024))
    q('s_lshl_b32 s%d, s%d, 17' % (sWO0, sW)); q('s_add_u32 s%d, s%d, s%d' % (sWO0, sWO0, sT0)); q('s_add_u32 s%d, s%d, %d' % (sWO1, sWO0, 8192 - 1024))

def setup_tr(p, role):
    q = p
    t0, t1, t2, t3, t4, u0, u1, t5 = [vT + 16 + i for i in range(8)]
    q('v_lshrrev_b32 v%d, 5, v%d' % (t5, vL)); q('v_lshlrev_b32 v%d, 3, v%d' % (t0, t5))
    q('v_bfe_u32 v%d, v%d, 2, 2' % (t1, vL)); q('v_add_u32 v%d, v%d, v%d' % (t0, t0, t1))
    q('v_lshl_add_u32 v%d, v%d, 2, v%d' % (t5, t5, t1))
    q('v_bfe_u32 v%d, v%d, 4, 1' % (t1, vL)); q('v_bfe_u32 v%d, v%d, 1, 1' % (t2, vL)); q('v_bfe_u32 v%d, v%d, 3, 1' % (t3, vL))
    q('v_and_b32 v%d, 1, v%d' % (t4, vL)); q('v_lshlrev_b32 v%d, 3, v%d' % (t4, t4))
    variants = {}
    names = (['q0', 'q1', 'm0', 'm1', 'm2', 'm3'] if role == 'AB' else ['m0', 'm1', 'm2', 'm3', 'h0', 'h1'])
    def qvar(dst, th, rowreg):
        q('v_lshl_add_u32 v%d, v%d, 1, v%d' % (u0, t1, t2))
        q('v_lshlrev_b32 v%d, 2, v%d' % (u1, t3)); q('v_xor_b32 v%d, %d, v%d' % (u1, 4 * th, u1)); q('v_add_u32 v%d, v%d, v%d' % (u0, u0, u1))
        q('v_lshl_add_u32 v%d, v%d, 4, v%d' % (u0, u0, t4)); q('v_lshl_add_u32 v%d, v%d, 7, v%d' % (dst, rowreg, u0))
    for vi, nm in enumerate(names):
        r0 = vTR + 2 * vi
        if nm[0] == 'q': qvar(r0, int(nm[1]), t0)
        elif nm[0] == 'm':
            tt = int(nm[1])
            q('v_add_u32 v%d, %d, v%d' % (u0, 2 * tt, t2))
            q('v_lshlrev_b32 v%d, 2, v%d' % (u1, t3)); q('v_xor_b32 v%d, v%d, v%d' % (u0, u0, u1))
            q('v_lshlrev_b32 v%d, 1, v%d' % (u1, t1)); q('v_xor_b32 v%d, v%d, v%d' % (u0, u0, u1))
            q('v_lshl_add_u32 v%d, v%d, 4, v%d' % (u0, u0, t4)); q('v_lshl_add_u32 v%d, v%d, 7, v%d' % (u0, t0, u0)); q('v_lshl_add_u32 v%d, v%d, 11, v%d' % (r0, t1, u0))
        else:
            tt = int(nm[1])
            q('v_add_u32 v%d, %d, v%d' % (u0, 2 * tt, t2))
            q('v_lshlrev_b32 v%d, 1, v%d' % (u1, t1)); q('v_xor_b32 v%d, v%d, v%d' % (u0, u0, u1))
            q('v_lshl_add_u32 v%d, v%d, 4, v%d' % (u0, u0, t4)); q('v_lshl_add_u32 v%d, v%d, 6, v%d' % (u0, t0, u0)); q('v_lshl_add_u32 v%d, v%d, 10, v%d' % (r0, t1, u0))
        q('v_add_u32 v%d, 0x10000, v%d' % (r0 + 1, r0))
        q('v_add_u32 v%d, 0x20000, v%d' % (ACC2 + vi, r0))
        variants[nm] = {0: r0, 1: r0 + 1, 2: ACC2 + vi}
    qvar(vS0, 0, t5); qvar(vS1, 1, t5)
    q('v_add_u32 v%d, s%d, v%d' % (vR0, sWB, vS0)); q('v_add_u32 v%d, s%d, v%d' % (vR1, sWB, vS1))
    q('v_add_u32 v%d, s%d, v%d' % (vS0, sS2, vS0)); q('v_add_u32 v%d, s%d, v%d' % (vS1, sS2, vS1))
    return variants

def dma_stage_items(p, role, Tg):
    toks = []; items = []
    base = 6144 * ((Tg - 1) % NRING)
    def ld(v, s, so, off): toks.append(p.vm('buffer_load_dwordx4 v%d, %s, s%d offen %slds' % (v, srd(s), so, ('offset:%d ' % off) if off else '')))
    def inc(step, wrap):
        p('s_cmp_eq_u32 s%d, %d' % (sWRAP, Tg & 7)); p('s_cselect_b32 s%d, s%d, s%d' % (sInc, wrap, step))
    adv = lambda v: p('v_add_u32 v%d, s%d, v%d' % (v, sInc, v))
    m0 = lambda off: p('s_add_u32 m0, s%d, %d' % ((sT2, off) if Tg == 0 else (sWB, base + off)))
    if Tg < 8 and role == 'AB':
        def f0(): m0(0); inc(sStepQ, sWrapQ); ld(vWA, S_WQ, sL[0], 0); ld(vWA, S_WQ, sL[1], 1024)
        def f1(): pass
        def f01(): f0(); ld(vWA, S_WQ, sL[2], 2048); ld(vWA, S_WQ, sL[3], 3072)
        def f2():
            m0(4096); p('s_nop 0'); ld(vWA, S_WQ, sL[4], 0); ld(vWA, S_WQ, sL[5], 1024)
            if Tg < 7: adv(vWA)
        items = [f01, f2]
    elif Tg < 8:
        def f0(): m0(0); inc(sStepG, sWrapG); ld(vWA, S_WG, sL[0], 0); ld(vWA, S_WG, sL[1], 1024); adv(vWA)
        def f1(): m0(2048); p('s_nop 0'); ld(vWB, S_WU, sL[0], 0); ld(vWB, S_WU, sL[1], 1024); adv(vWB)
        def f2():
            m0(4096); p('s_nop 0'); ld(vWC, S_WG, sL[2], 0)
            if Tg < 7: adv(vWC)
            m0(5120); p('s_nop 0'); ld(vWD, S_WU, sL[2], 0)
            if Tg < 7: adv(vWD)
        items = [f0, f1, f2]
    else:
        g, u = (vWB, vWC) if role == 'AB' else (vWA, vWB)
        def f0():
            m0(0); inc(sStepG, sWrapG); ld(g, S_WG, sG2[0], 0); ld(g, S_WG, sG2[1], 1024)
            if Tg < 15: adv(g)
        def f1():
            m0(2048); p('s_nop 0'); ld(u, S_WU, sG2[0], 0); ld(u, S_WU, sG2[1], 1024)
            if Tg < 15: adv(u)
        items = [f0, f1]
    return items, toks

def store_item(p, reg, soff, off, keep=None):
    def f():
        t = p.vm('buffer_store_dwordx4 v[%d:%d], v%d, %s, s%d offen %s%s' % (reg, reg + 3, vST, srd(S_WS), soff, ('offset:%d ' % off) if off else '', DST))
        if keep is not None: keep.append(t)
    return f

def norm_items(p, s, t):
    it = []
    for pr in range(2):
        r0, r1 = XF + 4 * s + 2 * pr, XF + 4 * s + 2 * pr + 1
        a0, a1, b0, b1 = t + 4 * pr, t + 4 * pr + 1, t + 4 * pr + 2, t + 4 * pr + 3
        seq = ['v_lshlrev_b32 v%d, 16, v%d' % (a0, r0), 'v_and_b32 v%d, s%d, v%d' % (a1, sMASK, r0),
               'v_lshlrev_b32 v%d, 16, v%d' % (b0, r1), 'v_and_b32 v%d, s%d, v%d' % (b1, sMASK, r1),
               'v_fma_f32 v%d, v%d, v%d, v%d' % (a0, a0, vRS, vNM), 'v_fma_f32 v%d, v%d, v%d, v%d' % (a1, a1, vRS, vNM),
               'v_fma_f32 v%d, v%d, v%d, v%d' % (b0, b0, vRS, vNM), 'v_fma_f32 v%d, v%d, v%d, v%d' % (b1, b1, vRS, vNM),
               'v_cvt_pk_bf16_f32 v%d, v%d, v%d' % (r0, a0, a1), 'v_cvt_pk_bf16_f32 v%d, v%d, v%d' % (r1, b0, b1)]
        it += [T(p, x) for x in seq]
    return it

def mlp_epi_items(p, acc, in_agpr, t, soff, off, keep=None):
    it = []
    if in_agpr:
        for half in range(2):
            rr = range(4 * half, 4 * half + 4)
            for r in rr: it.append(T(p, 'v_accvgpr_read_b32 v%d, a%d' % (t + (r & 3), acc + r)))
            for r in rr: it.append(T(p, 'v_accvgpr_read_b32 v%d, a%d' % (t + 4 + (r & 3), acc + 8 + r)))
            for r in rr: it.append(T(p, 'v_max_f32 v%d, 0, v%d' % (t + (r & 3), t + (r & 3))))
            for r in rr: it.append(T(p, 'v_mul_f32 v%d, v%d, v%d' % (t + (r & 3), t + (r & 3), t + 4 + (r & 3))))
            for q in range(2): it.append(T(p, 'v_cvt_pk_bf16_f32 v%d, v%d, v%d' % (t + 8 + 2 * half + q, t + 2 * q, t + 2 * q + 1)))
    else:
        for r in range(8): it.append(T(p, 'v_max_f32 v%d, 0, v%d' % (acc + r, acc + r)))
        for r in range(8): it.append(T(p, 'v_mul_f32 v%d, v%d, v%d' % (acc + r, acc + r, acc + 8 + r)))
        for q in range(4): it.append(T(p, 'v_cvt_pk_bf16_f32 v%d, v%d, v%d' % (t + 8 + q, acc + 2 * q, acc + 2 * q + 1)))
    it.append(store_item(p, t + 8, soff, off, keep))
    return it

def phi_items(p, acc, t, dst):
    it = []
    for half in range(2):
        rr = list(range(4 * half, 4 * half + 4))
        for r in rr: it.append(T(p, 'v_accvgpr_read_b32 v%d, a%d' % (t + (r & 3), acc + r)))
        for r in rr: it.append(T(p, 'v_mul_f32 v%d, s%d, v%d' % (t + 4 + (r & 3), sLOG2E, t + (r & 3))))
        for r in rr: it.append(T(p, 'v_exp_f32 v%d, v%d clamp' % (t + 4 + (r & 3), t + 4 + (r & 3))))
        for r in rr: it.append(T(p, 'v_max_f32 v%d, s%d, v%d' % (t + (r & 3), sEPS, t + (r & 3))))
        for r in rr: it.append(T(p, 'v_add_f32 v%d, v%d, v%d' % (t + (r & 3), t + (r & 3), t + 4 + (r & 3))))
        for q in range(2): it.append(T(p, 'v_cvt_pk_bf16_f32 v%d, v%d, v%d' % (dst + 2 * half + q, t + 2 * q, t + 2 * q + 1)))
    return it

def pack_items(p, acc, t, dst):
    it = []
    for half in range(2):
        rr = list(range(4 * half, 4 * half + 4))
        for r in rr: it.append(T(p, 'v_accvgpr_read_b32 v%d, a%d' % (t + (r & 3), acc + r)))
        for q in range(2): it.append(T(p, 'v_cvt_pk_bf16_f32 v%d, v%d, v%d' % (dst + 2 * half + q, t + 2 * q, t + 2 * q + 1)))
    return it

def emit_flag(p, base, idx_sgpr):
    p('s_lshl_b32 s%d, s%d, 7' % (sT0, idx_sgpr)); p('s_add_u32 s%d, s%d, 0x%x' % (sT0, sT0, base))
    p('v_mov_b32 v%d, s%d' % (vT + 4, sNONCE)); p('v_mov_b32 v%d, 0' % (vT + 5))
    p('s_mov_b64 s[%d:%d], exec' % (sEX, sEX + 1)); p('s_mov_b64 exec, 1')
    p('buffer_store_dword v%d, v%d, %s, s%d offen %s' % (vT + 4, vT + 5, srd(S_WS), sT0, ST))
    p('s_mov_b64 exec, s[%d:%d]' % (sEX, sEX + 1))

def uniform_flag(p, base, idx_sgpr):
    la = p.newlabel('L_fa')
    p('s_cmp_lg_u32 s%d, 0' % sW); p('s_cbranch_scc1 %s' % la)
    emit_flag(p, base, idx_sgpr)
    p.label(la)

def poll_issue(p, vaddr, soff, vdst):
    return p.vm('buffer_load_dword v%d, v%d, %s, s%d offen %s' % (vdst, vaddr, srd(S_WS), soff, LD))

def poll_check(p, tok, vaddr, soff, vdst):
    if tok is not None: p.wait(tok)
    l0, l1 = p.newlabel('L_pc'), p.newlabel('L_pcok')
    p('v_cmp_eq_u32 vcc, s%d, v%d' % (sNONCE, vdst)); p('s_nop 1'); p('s_cmp_eq_u64 vcc, -1'); p('s_cbranch_scc1 %s' % l1)
    p('s_mov_b32 s%d, 0' % sSPIN)
    p.label(l0)
    p('buffer_load_dword v%d, v%d, %s, s%d offen %s' % (vdst, vaddr, srd(S_WS), soff, LD))
    p('s_waitcnt vmcnt(0)')
    p('v_cmp_eq_u32 vcc, s%d, v%d' % (sNONCE, vdst)); p('s_nop 1'); p('s_cmp_eq_u64 vcc, -1'); p('s_cbranch_scc1 %s' % l1)
    p('s_sleep %d' % SLEEP)
    p('s_add_u32 s%d, s%d, 1' % (sSPIN, sSPIN)); p('s_cmp_lt_u32 s%d, 20000' % sSPIN); p('s_cbranch_scc1 %s' % l0)
    p.label(l1)

def epilogue1_items(p, role, free_oct, kvp_toks):
    t = vT + 8
    if role == 'CD':
        pre = []
        for j in range(6):
            soff, off = (sHST1, 1024 * j) if j < 4 else (sHST1b, 1024 * (j - 4))
            pre += mlp_epi_items(p, ACC1 + 16 * j, True, t + (j & 1) * 12, soff, off)
            pre.append(Mark(lambda j=j: free_oct.extend([('a', ACC1 + 16 * j), ('a', ACC1 + 16 * j + 8)])))
        return [pre]
    PK = vT + 16; VV = vT + 24; BS = vT + 32
    pre = []
    for pr in range(2):
        pre += phi_items(p, ACC1 + 16 * pr, t, PK) + phi_items(p, ACC1 + 16 * pr + 8, t, PK + 4)
        pre += pack_items(p, ACC1 + 32 + 16 * pr, t, VV) + pack_items(p, ACC1 + 32 + 16 * pr + 8, t, VV + 4)
        da = ACC1 + 16 * pr; db = ACC1 + 32 + 16 * pr
        for hb, (d, msk) in enumerate(((da, 0x0000ffff), (db, 0xffff0000))):
            pre.append(T(p, 's_mov_b32 vcc_lo, 0x%x' % msk)); pre.append(T(p, 's_mov_b32 vcc_hi, 0x%x' % msk))
            for r in range(8): pre.append(T(p, 'v_cndmask_b32 v%d, v%d, v%d, vcc' % (BS + r, vT + 7, VV + r)))
            pre.append(T(p, 's_nop 1'))
            pre.append(T(p, 'v_mfma_f32_32x32x16_bf16 a[%d:%d], v[%d:%d], v[%d:%d], 0' % (d, d + 15, PK, PK + 3, BS, BS + 3)))
            pre.append(T(p, 'v_mfma_f32_32x32x16_bf16 a[%d:%d], v[%d:%d], v[%d:%d], a[%d:%d]' % (d, d + 15, PK + 4, PK + 7, BS + 4, BS + 7, d, d + 15)))
    def qhead(pr, hb):
        dst = PK + 4 * hb
        return phi_items(p, ACC1 + 64 + 16 * pr + 8 * hb, t, dst) + [store_item(p, dst, sPQ, 1024 * (2 * pr + hb)), Mark(lambda: free_oct.append(('a', ACC1 + 64 + 16 * pr + 8 * hb)))]
    pre += qhead(0, 0)
    KA = vT + 6
    pre.append(T(p, 'v_add_u32 v%d, s%d, v%d' % (KA, sWB, vST)))
    for hd in range(4):
        pr, hb = hd >> 1, hd & 1
        src = (ACC1 + 16 * pr) if hb == 0 else (ACC1 + 32 + 16 * pr + 8)
        for q in range(2):
            pre.append(lambda src=src, q=q, hd=hd: p.last_ds_writes.append(p.lg('ds_write_b128 v%d, a[%d:%d] offset:%d' % (KA, src + 4 * q, src + 4 * q + 3, KVS[hd] + q * 1024))))
    pre.append(Mark(lambda: free_oct.extend([('a', ACC1 + 8 * k) for k in range(8)])))
    post = []
    RA = vT + 6; RB = vT + 5; rtok = []
    post.append(T(p, 's_mul_i32 s%d, s%d, 6144' % (sT0, sW))); post.append(T(p, 's_add_u32 s%d, s%d, 4096' % (sT0, sT0)))
    post.append(T(p, 'v_add_u32 v%d, s%d, v%d' % (RA, sT0, vST))); post.append(T(p, 'v_add_u32 v%d, 0x10000, v%d' % (RB, RA)))
    R = vT + 8
    def rd(wv, q, dst): return lambda: rtok.append(p.lg('ds_read_b128 v[%d:%d], v%d offset:%d' % (dst, dst + 3, RA if wv < 2 else RB, (wv & 1) * 32768 + q * 1024)))
    for wv in range(4):
        for q in range(2): post.append(rd(wv, q, R + 8 * wv + 4 * q))
    post.append(lambda: p.wait(rtok))
    for wv in (1, 2, 3):
        for r in range(8): post.append(T(p, 'v_add_f32 v%d, v%d, v%d' % (R + r, R + r, R + 8 * wv + r)))
    for q in range(2): post.append(store_item(p, R + 4 * q, sKVP, 1024 * q, kvp_toks))
    post.append(T(p, 's_nop 1'))
    rest = []
    for (pr, hb) in ((0, 1), (1, 0), (1, 1)): rest += qhead(pr, hb)
    return [pre, post + rest]

def interleave(p, mf, lists):
    n = len(mf); idx = [0] * len(lists)
    for j, m in enumerate(mf):
        for k, L in enumerate(lists):
            upto = (len(L) * (j + 1) + n - 1) // n
            while idx[k] < min(upto, len(L)):
                L[idx[k]](); idx[k] += 1
        m()

def touch_wo(p):
    a = vT + 30
    p('s_lshr_b32 s%d, s2, 3' % sT0); p('s_lshl_b32 s%d, s%d, 2' % (sT0, sT0)); p('s_add_u32 s%d, s%d, s%d' % (sT0, sT0, sW)); p('s_lshl_b32 s%d, s%d, 12' % (sT0, sT0))
    p('v_and_b32 v%d, 31, v%d' % (a, vL)); p('v_lshlrev_b32 v%d, 7, v%d' % (a, a))
    p.vm('buffer_load_dword v%d, v%d, %s, s%d offen' % (vT + 31, a, srd(S_WO), sT0))
def touch_g2(p):
    a = vT + 30
    p('s_and_b32 s%d, s%d, 7' % (sT0, sI)); p('s_lshl_b32 s%d, s%d, 2' % (sT0, sT0)); p('s_mul_i32 s%d, s%d, %d' % (sT0, sT0, 16 * 3584))
    p('s_add_u32 s%d, s%d, s%d' % (sT0, sT0, sG2[0]))
    p('v_and_b32 v%d, 15, v%d' % (a, vL)); p('v_mul_u32_u24 v%d, 3584, v%d' % (a, a))
    p.vm('buffer_load_dword v%d, v%d, %s, s%d offen' % (vT + 31, a, srd(S_WG), sT0))
    p.vm('buffer_load_dword v%d, v%d, %s, s%d offen' % (vT + 31, a, srd(S_WU), sT0))
def build_role(p, role):
    stok = {}
    kc1, kc2 = 250, (210 if role == 'AB' else 160)
    est = [0]
    for S in range(64): est.append(est[-1] + (kc1 if S < 32 else kc2))
    free_oct = [('a', b) for b in AOCT]
    NSL = 5
    W = dict(pos=0, loc={}, dtok={}, ttok={}, dS={}, slot_owner=[None] * NSL)
    RES = [(51, o) for o in (0, 2048, 4096)] + [(55, o) for o in (6144, 8192, 10240)] + [(59, o) for o in (12288, 14336, 16384)] + [(63, o) for o in (18432, 20480, 22528)] + [(64, o) for o in (24576, 26624, 28672)]
    res_next = [0]; wo_loc, wo_tok = {}, {}; wo_next = [0]
    cur_S = [0]
    def slot_info(sl):
        if sl == 0: return sWB, 30720, (vR0, vR1), 30720
        return sS2, 2048 * (sl - 1), (vS0, vS1), 2048 * (sl - 1)
    def wd_dma(pos, breg, off, pre=None):
        toks = W['dtok'].setdefault(pos, [])
        def f():
            if pre: p.wait(pre)
            p('s_add_u32 m0, s%d, %d' % (breg, off))
            if pos > 0 and pos % 4 == 0:
                p('s_mov_b32 s%d, 0x4000' % sT2); p('s_cmp_eq_u32 s%d, %d' % (sW2WRAP, pos)); p('s_cselect_b32 s%d, 0x%x, s%d' % (sT2, (-27 * 0x4000) & 0xffffffff, sT2))
                p('v_add_u32 v%d, s%d, v%d' % (vD2, sT2, vD2))
            elif pos > 0: p('v_add_u32 v%d, 0x4000, v%d' % (vD2, vD2))
            else: p('s_nop 0')
            toks.append(p.vm('buffer_load_dwordx4 v%d, %s, s%d offen lds' % (vD2, srd(S_WD), sWD0)))
            toks.append(p.vm('buffer_load_dwordx4 v%d, %s, s%d offen offset:1024 lds' % (vD2, srd(S_WD), sWD1)))
        return f
    def wo_dma(hh, breg, off, pre=None):
        toks = wo_tok.setdefault(hh, [])
        def f():
            if pre: p.wait(pre)
            p('s_add_u32 m0, s%d, %d' % (breg, off))
            if hh == 0:
                p('v_and_b32 v%d, 0x3fff, v%d' % (vD2, vD2))
            else: p('v_add_u32 v%d, 0x4000, v%d' % (vD2, vD2))
            toks.append(p.vm('buffer_load_dwordx4 v%d, %s, s%d offen lds' % (vD2, srd(S_WO), sWO0)))
            toks.append(p.vm('buffer_load_dwordx4 v%d, %s, s%d offen offset:1024 lds' % (vD2, srd(S_WO), sWO1)))
        return f
    def tr4_items(pos, regs, off, oc, store):
        it = []
        for nt, reg in enumerate(regs):
            for rd in range(2):
                b = oc[1] + 4 * nt + 2 * rd
                def f(b=b, reg=reg, o=off + 1024 * rd, first=(nt == 0 and rd == 0)):
                    if first: p.wait(W['dtok'][pos])
                    store.append(p.lg('ds_read_b64_tr_b16 %s[%d:%d], v%d offset:%d' % (oc[0], b, b + 1, reg, o)))
                it.append(f)
        return it
    def slot_free(sl):
        own = W['slot_owner'][sl]
        if sl >= 1 and cur_S[0] < 7: return False
        return own is None or (own >= 0 and W['loc'][own][0] == 'reg' and len(W['ttok'].get(own, [])) == 4)
    def next_w2_item(S):
        cur_S[0] = S
        pos = W['pos']
        if pos < 28:
            for sl in range(NSL):
                if slot_free(sl):
                    own = W['slot_owner'][sl]
                    pre = W['ttok'][own] if own is not None else None
                    breg, moff, _, _ = slot_info(sl)
                    W['slot_owner'][sl] = pos; W['loc'][pos] = ('stage', sl); W['dS'][pos] = S; W['pos'] += 1
                    return wd_dma(pos, breg, moff, pre)
            if res_next[0] < len(RES) and S >= RES[res_next[0]][0]:
                off = RES[res_next[0]][1]; res_next[0] += 1
                W['loc'][pos] = ('res', off); W['dS'][pos] = S; W['pos'] += 1
                return wd_dma(pos, sWB, off)
            return None
        if wo_next[0] < 8:
            for sl in range(NSL):
                if slot_free(sl):
                    own = W['slot_owner'][sl]
                    pre = W['ttok'][own] if own is not None else None
                    W['slot_owner'][sl] = -1
                    breg, moff, regs, toff = slot_info(sl)
                    hh = wo_next[0]; wo_next[0] += 1; wo_loc[hh] = (regs, toff)
                    return wo_dma(hh, breg, moff, pre)
            if res_next[0] < len(RES) and S >= RES[res_next[0]][0]:
                off = RES[res_next[0]][1]; res_next[0] += 1
                hh = wo_next[0]; wo_next[0] += 1; wo_loc[hh] = ((vR0, vR1), off)
                return wo_dma(hh, sWB, off)
        return None
    def staged_to_reg(S_now, force=False):
        cand = [q for q in sorted(W['loc']) if W['loc'][q][0] == 'stage']
        if not cand or not free_oct: return []
        st = cand[0]
        if len(W['dtok'].get(st, [])) != 2: return []
        if not force and est[max(S_now, 0)] < est[max(W['dS'][st], 0)] + LAT and W['dS'][st] >= 0: return []
        oc = free_oct.pop(0); sl = W['loc'][st][1]; W['loc'][st] = ('reg', oc)
        _, _, regs, toff = slot_info(sl)
        return tr4_items(st, regs, toff, oc, W['ttok'].setdefault(st, []))
    xit, xt = x_dma_items(p)
    q = Prog(); setup(q, role); variants = setup_tr(q, role)
    t = vT + 16
    q('v_and_b32 v%d, 31, v%d' % (t, vL)); q('v_lshrrev_b32 v%d, 5, v%d' % (t + 1, vL)); q('v_bfe_u32 v%d, v%d, 1, 3' % (t + 2, vL))
    q('v_xor_b32 v%d, v%d, v%d' % (t + 1, t + 1, t + 2))
    q('v_lshlrev_b32 v%d, 7, v%d' % (t, t)); q('v_add_u32 v%d, s%d, v%d' % (t, sWB, t))
    for ss in range(4):
        q('v_xor_b32 v%d, %d, v%d' % (t + 2, 2 * ss, t + 1)); q('v_lshl_add_u32 v%d, v%d, 4, v%d' % (vXA[ss], t + 2, t))
    if role == 'AB':
        q('v_mov_b32 v%d, s%d' % (t, sEPS))
        for r in range(16): q('v_accvgpr_write_b32 a%d, v%d' % (EPSB + r, t))
    su = [T(p, x) for x in q.ins]
    p('s_mov_b32 s%d, s%d' % (sSPIN, sHST2))
    for c in range(4): xit[c]()
    XR = vT + 8
    vS, vQ = vT + 4, vT + 5
    p.wait(p.xl)
    p.stamp(14)
    p('v_mov_b32 v%d, 0' % vS); p('v_mov_b32 v%d, 0' % vQ)
    for r in range(8):
        p('v_dot2_f32_bf16 v%d, v%d, s%d, v%d' % (vS, XR + r, sONES, vS)); p('v_dot2_f32_bf16 v%d, v%d, v%d, v%d' % (vQ, XR + r, XR + r, vQ))
    for sh in (8, 4, 2, 1):
        p('s_nop 1')
        p('v_add_f32_dpp v%d, v%d, v%d row_ror:%d row_mask:0xf bank_mask:0xf' % (vS, vS, vS, sh))
        p('v_add_f32_dpp v%d, v%d, v%d row_ror:%d row_mask:0xf bank_mask:0xf' % (vQ, vQ, vQ, sh))
    p('v_mov_b32 v%d, v%d' % (vT + 6, vS)); p('v_mov_b32 v%d, v%d' % (vT + 7, vQ)); p('s_nop 1')
    p('v_permlane16_swap_b32 v%d, v%d' % (vS, vT + 6)); p('v_permlane16_swap_b32 v%d, v%d' % (vQ, vT + 7)); p('s_nop 1')
    p('v_add_f32 v%d, v%d, v%d' % (vS, vS, vT + 6)); p('v_add_f32 v%d, v%d, v%d' % (vQ, vQ, vT + 7))
    p('v_mul_f32 v%d, 0x3b000000, v%d' % (vS, vS)); p('v_mul_f32 v%d, 0x3b000000, v%d' % (vQ, vQ))
    p('v_fma_f32 v%d, -v%d, v%d, v%d' % (vQ, vS, vS, vQ))
    p('v_max_f32 v%d, 0, v%d' % (vQ, vQ)); p('v_add_f32 v%d, 0x3727c5ac, v%d' % (vQ, vQ))
    p('v_rsq_f32 v%d, v%d' % (vQ, vQ)); p('s_nop 0')
    p('v_mul_f32 v%d, v%d, v%d' % (vS, vS, vQ)); p('v_sub_f32 v%d, 0, v%d' % (vS, vS))
    p.wait(p.nl)
    p('v_add_u32 v%d, 64, v%d' % (vT + 3, vT + 3)); p('v_or_b32 v%d, 1, v%d' % (vT + 3, vT + 3))
    G = vT + 16
    p('v_mov_b32 v%d, v%d' % (G, vQ)); p('v_mov_b32 v%d, v%d' % (G + 1, vT + 3)); p('v_mov_b32 v%d, v%d' % (G + 2, vS)); p('v_mov_b32 v%d, v%d' % (G + 3, vT + 3))
    p('v_lshrrev_b32 v%d, 5, v%d' % (vT + 6, vL)); p('v_lshlrev_b32 v%d, 4, v%d' % (vT + 6, vT + 6))
    p('v_readfirstlane_b32 s%d, v%d' % (sNONCE, vT + 3))
    p('s_mov_b64 s[%d:%d], exec' % (sEX, sEX + 1)); p('s_mov_b32 exec_lo, 1'); p('s_mov_b32 exec_hi, 1')
    p.vm('buffer_store_dwordx4 v[%d:%d], v%d, %s, s%d offen %s' % (G, G + 3, vT + 6, srd(S_WS), sSPIN, ST))
    p('s_mov_b64 exec, s[%d:%d]' % (sEX, sEX + 1))
    p.stamp(3)
    k = 0
    for c in range(4, 8):
        xit[c]()
        upto = (len(su) * (c - 3)) // 4
        while k < upto: su[k](); k += 1
    p('s_mul_i32 s%d, s%d, 6144' % (sT2, sW)); p('s_add_u32 s%d, s%d, %d' % (sT2, sT2, SPARE))
    it, stok[0] = dma_stage_items(p, role, 0)
    for f in it: f()
    if TTLB: touch_tlb(p)
    GR = vT + 8; vGA = vT + 12
    p('v_and_b32 v%d, 31, v%d' % (vGA, vL)); p('v_lshlrev_b32 v%d, 4, v%d' % (vGA, vGA))
    p('s_lshr_b32 s%d, s%d, 6' % (sT1, sXB)); p('s_add_u32 s%d, s%d, 0x%x' % (sT1, sT1, STAT_OFF))
    p('s_mov_b32 s%d, s%d' % (sKX, sT1))
    gt = p.vm('buffer_load_dwordx4 v[%d:%d], v%d, %s, s%d offen %s' % (GR, GR + 3, vGA, srd(S_WS), sKX, LD))
    p.stamp(2)
    free_after = {1: 1, 2: 2}
    rt = {}
    for c in range(8):
        p.wait(xt[c])
        rt[c] = [p.lg('ds_read_b128 %s, v%d offset:%d' % (xf(4 * c + ss), vXA[ss], 4096 * c)) for ss in range(4)]
        if EARLY12 and c - 1 in free_after:
            p.wait(rt[c - 1])
            it, stok[free_after[c - 1]] = dma_stage_items(p, role, free_after[c - 1])
            for f in it: f()
    p.wait([t for c in range(8) for t in rt[c]])
    p.stamp(14)
    if not EARLY12:
        for Tg in (1, 2):
            it, stok[Tg] = dma_stage_items(p, role, Tg)
            for f in it: f()
    dmaq0 = []
    for Tg in range(3, NRING + 1):
        it, stok[Tg] = dma_stage_items(p, role, Tg); dmaq0 += it
    p.wait(gt)
    l0, l1 = p.newlabel('L_g'), p.newlabel('L_gok')
    p('s_mov_b32 s%d, 0' % sSPIN)
    p.label(l0)
    p('v_xor_b32 v%d, s%d, v%d' % (vGA + 1, sNONCE, GR + 1)); p('v_xor_b32 v%d, s%d, v%d' % (vGA + 2, sNONCE, GR + 3)); p('v_or_b32 v%d, v%d, v%d' % (vGA + 1, vGA + 1, vGA + 2))
    p('v_cmp_eq_u32 vcc, 0, v%d' % (vGA + 1)); p('s_nop 1'); p('s_cmp_eq_u64 vcc, -1'); p('s_cbranch_scc1 %s' % l1)
    p('s_sleep 2')
    p('buffer_load_dwordx4 v[%d:%d], v%d, %s, s%d offen %s' % (GR, GR + 3, vGA, srd(S_WS), sKX, LD)); p('s_waitcnt vmcnt(0)')
    p('s_add_u32 s%d, s%d, 1' % (sSPIN, sSPIN)); p('s_cmp_lt_u32 s%d, 20000' % sSPIN); p('s_cbranch_scc1 %s' % l0)
    p.label(l1)
    p('v_mov_b32 v%d, v%d' % (vRS, GR)); p('v_mov_b32 v%d, v%d' % (vNM, GR + 2))
    p.stamp(15)
    for f in norm_items(p, 0, vT): f()
    p.wait(stok[0]); p('s_barrier')
    p.stamp(4)
    ftok = {}
    for f in tr_items(p, role, 0, variants, ftok): f()
    kvp_toks = []
    p.last_ds_writes = []
    phases = epilogue1_items(p, role, free_oct, kvp_toks)
    st = dict(cur=0, done=-1, kvp_S=0, flagged=False)
    dmaq = dmaq0
    for S in range(64):
        grp = 1 if S < 32 else 2
        tl = tiles_of(role, grp); G = len(tl); s = S & 31
        def mk(j, S=S, s=s, tl=tl, G=G, grp=grp):
            var, lo, rds, sw = tl[j]
            b = wf(S, j, G); Wr = 'a[%d:%d]' % (b, b + 3)
            if grp == 1: d = 'a[%d:%d]' % (ACC1 + 16 * j, ACC1 + 16 * j + 15)
            else: d = 'v[%d:%d]' % (ACC2 + 16 * j, ACC2 + 16 * j + 15)
            c0 = '0'
            if grp == 1 and role == 'AB' and j in (0, 1, 4, 5): c0 = 'a[%d:%d]' % (EPSB, EPSB + 15)
            c = c0 if s == 0 else d
            A, B = (xf(s), Wr) if sw else (Wr, xf(s))
            def f():
                h = G // 2
                tk = []
                if j % h == 0: tk += [t for jj in range(j, j + h) for t in ftok[(S, jj)]]
                p.wait(tk)
                p('v_mfma_f32_32x32x16_bf16 %s, %s, %s, %s' % (d, A, B, c))
            return f
        mf = [mk(j) for j in range(G)]
        if S == 32: p.stamp(5)
        p.stamp(100 + S)
        if S == 1: free_oct.extend([('a', EPSB), ('a', EPSB + 8)])
        if S == 33: free_oct.extend([('a', WF + 32), ('a', WF + 40)])
        def barrier_block(S=S):
            Tn = (S + 2) >> 2
            toks = list(stok[Tn]) if Tn <= 15 else []
            flag_kvp = (role == 'AB' and len(kvp_toks) == 2 and not st['flagged'] and est[S] >= est[st['kvp_S']] + 1300)
            if flag_kvp: toks += kvp_toks
            adv_phase = (st['done'] >= 0 and st['done'] < S and st['cur'] + 1 < len(phases))
            if adv_phase: toks += p.last_ds_writes
            p.wait(toks)
            p('s_barrier')
            if adv_phase: st['cur'] += 1; st['done'] = -1
            if flag_kvp:
                p('s_lshl_b32 s%d, s%d, 4' % (sT1, sU)); p('s_add_u32 s%d, s%d, s%d' % (sT1, sT1, sI))
                uniform_flag(p, FLG_KVP, sT1); st['flagged'] = True
            Td = (S >> 2) - 1 + NRING
            if NRING + 1 <= Td <= 15:
                it, stok[Td] = dma_stage_items(p, role, Td); dmaq.extend(it)
        mf[0]()
        L_tr = tr_items(p, role, S + 1, variants, ftok) if S + 1 < 64 else []
        L_misc = norm_items(p, s + 1, vT) if (grp == 1 and s + 1 < 32) else []
        if TOUCH and S == 5: L_misc = L_misc + [lambda: touch_g2(p)]
        if TOUCH and S == 9: L_misc = L_misc + [lambda: touch_wo(p)]
        if S == 31 and role == 'AB': L_misc = [T(p, 'v_mov_b32 v%d, s%d' % (vT + 7, sONES))]
        L_dma = []
        if dmaq: L_dma.append(dmaq.pop(0))
        if dmaq and len(dmaq) > 3: L_dma.append(dmaq.pop(0))
        if (len(L_dma) < 1 or ((grp == 1) or S >= 48) and len(L_dma) < 2):
            f = next_w2_item(S)
            if f is not None: L_dma.append(f)
        L_w2tr = staged_to_reg(S)
        L_epi = []
        if grp == 2 and st['cur'] < len(phases) and phases[st['cur']]:
            ph = phases[st['cur']]
            last = (45 if st['cur'] == 0 else 62) if role == 'AB' else 50
            left = max(1, last - S + 1)
            n = (len(ph) + left - 1) // left
            L_epi = ph[:n]; del ph[:n]
            if not ph: st['done'] = S
            if role == 'AB' and st['cur'] == 1 and len(kvp_toks) < 2: st['kvp_S'] = S
        Ls = [L_tr, L_misc, L_epi, L_w2tr, L_dma]
        if S % 4 == 2:
            h = G // 2
            part = lambda L, lo, hi, n: L[(len(L) * lo) // n:(len(L) * hi) // n]
            interleave(p, mf[1:h + 1], [part(L, 0, h, G - 1) for L in Ls])
            barrier_block()
            interleave(p, mf[h + 1:], [part(L, h, G - 1, G - 1) for L in Ls])
        else:
            interleave(p, mf[1:], Ls)
    for ph in phases: assert not ph, len(ph)
    assert not dmaq
    if role == 'AB': assert st['flagged']
    p.stamp(6)
    p('s_nop 7'); p('s_nop 3')
    hst = []
    for j in range(4):
        for f in mlp_epi_items(p, ACC2 + 16 * j, False, vT + 12 * (j & 1), sHST2, 1024 * j, hst): f()
    p.stamp(7)
    p.c('W2 state: pos=%d wo=%d loc=%s' % (W['pos'], wo_next[0], sorted(W['loc'].items())))
    return dict(W=W, free_oct=free_oct, wo_loc=wo_loc, wo_tok=wo_tok, hst=hst, next_w2_item=next_w2_item, tr4_items=tr4_items, slot_info=slot_info, staged_to_reg=staged_to_reg)

def phase2(p, role, info):
    W, free_oct = info['W'], info['free_oct']
    sH0, sH1, sPQ0, sPQ1, sKZ, sF = sL[0], sL[1], sL[2], sL[3], sL[4], sL[5]
    p.wait(info['hst'][-1]); p('s_barrier')
    p('s_lshl_b32 s%d, s%d, 4' % (sT1, sI)); p('s_add_u32 s%d, s%d, s%d' % (sT1, sT1, sC))
    uniform_flag(p, FLG_H, sT1)
    p.stamp(8)
    while True:
        f = info['next_w2_item'](64)
        if f is None:
            if W['pos'] == 28 and len(info['wo_loc']) == 8: break
            it = info['staged_to_reg'](64, force=True)
            if not it: break
            for g in it: g()
            continue
        f()
    if not (W['pos'] == 28 and len(info['wo_loc']) == 8):
        print(W['loc'], W['slot_owner'], info['wo_loc']); raise SystemExit('W2 overflow')
    vPH, vPZ, vPD = vT + 16, vT + 17, vT + 18
    p('v_and_b32 v%d, 3, v%d' % (vPH, vL)); p('v_lshlrev_b32 v%d, 7, v%d' % (vPH, vPH))
    p('s_lshr_b32 s%d, s%d, 1' % (sT0, sRT)); p('s_lshl_b32 s%d, s%d, 4' % (sT0, sT0)); p('s_lshl_b32 s%d, s%d, 2' % (sT1, sW)); p('s_add_u32 s%d, s%d, s%d' % (sT0, sT0, sT1))
    p('s_lshl_b32 s%d, s%d, 7' % (sT0, sT0)); p('s_add_u32 s%d, s%d, 0x%x' % (sG2[0], sT0, FLG_H))
    p('v_and_b32 v%d, 31, v%d' % (vPZ, vL)); p('v_lshlrev_b32 v%d, 7, v%d' % (vPZ, vPZ))
    p('s_lshl_b32 s%d, s%d, 12' % (sG2[1], sW)); p('s_add_u32 s%d, s%d, 0x%x' % (sG2[1], sG2[1], FLG_KVZ))
    p('s_mul_i32 s%d, s%d, %d' % (sH0, sRT, 2 * 112 * 1024)); p('s_mul_i32 s%d, s%d, %d' % (sT0, sW, 28 * 1024)); p('s_add_u32 s%d, s%d, s%d' % (sH0, sH0, sT0))
    p('s_and_b32 s%d, s%d, 3' % (sT0, sRT)); p('s_lshl_b32 s%d, s%d, 13' % (sT0, sT0)); p('s_add_u32 s%d, s%d, s%d' % (sH0, sH0, sT0))
    p('s_add_u32 s%d, s%d, %d' % (sH1, sH0, 112 * 1024))
    p('s_lshl_b32 s%d, s%d, 16' % (sPQ0, sRT)); p('s_lshl_b32 s%d, s%d, 13' % (sT0, sW)); p('s_add_u32 s%d, s%d, s%d' % (sPQ0, sPQ0, sT0)); p('s_add_u32 s%d, s%d, 0x%x' % (sPQ0, sPQ0, PQ_OFF))
    p('s_add_u32 s%d, s%d, 32768' % (sPQ1, sPQ0))
    p('s_add_u32 s%d, s%d, 0x%x' % (sKZ, sT0, KVZ_OFF))
    KR = vT + 8
    if role == 'CD':
        p('s_lshl_b32 s%d, s%d, 1' % (sU, sQD)); p('s_add_u32 s%d, s%d, s%d' % (sU, sU, sMEM)); p('s_sub_u32 s%d, s%d, 2' % (sU, sU))
        p('v_and_b32 v%d, 15, v%d' % (vT + 6, vL)); p('v_lshlrev_b32 v%d, 7, v%d' % (vT + 6, vT + 6))
        p('s_lshl_b32 s%d, s%d, 11' % (sF, sU)); p('s_add_u32 s%d, s%d, 0x%x' % (sF, sF, FLG_KVP))
        lw = p.newlabel('L_kp')
        p('s_cmp_lg_u32 s%d, 0' % sW); p('s_cbranch_scc1 %s' % lw)
        n_before = (p.vm_issued, p.vm_done)
        p('s_waitcnt vmcnt(0)')
        p('buffer_load_dword v%d, v%d, %s, s%d offen %s' % (vPD, vT + 6, srd(S_WS), sF, LD)); p('s_waitcnt vmcnt(0)')
        poll_check(p, None, vT + 6, sF, vPD)
        p.label(lw)
        p('s_barrier')
        p('v_lshrrev_b32 v%d, 3, v%d' % (vT + 6, vL)); p('v_lshlrev_b32 v%d, 12, v%d' % (vT + 6, vT + 6))
        p('v_bfe_u32 v%d, v%d, 2, 1' % (vT + 7, vL)); p('v_lshl_add_u32 v%d, v%d, 10, v%d' % (vT + 6, vT + 7, vT + 6))
        p('v_and_b32 v%d, 3, v%d' % (vT + 7, vL)); p('v_lshl_add_u32 v%d, v%d, 4, v%d' % (vT + 6, vT + 7, vT + 6))
        p('s_lshl_b32 s%d, s%d, 2' % (sF, sU)); p('s_add_u32 s%d, s%d, s%d' % (sF, sF, sW))
        p('s_lshl_b32 s%d, s%d, 15' % (sT0, sF)); p('s_lshl_b32 s%d, s%d, 6' % (sT1, sI)); p('s_add_u32 s%d, s%d, s%d' % (sT0, sT0, sT1)); p('s_add_u32 s%d, s%d, 0x%x' % (sT0, sT0, KVP_OFF))
        krt = [p.vm('buffer_load_dwordx4 v[%d:%d], v%d, %s, s%d offen %s%s' % (KR + 4 * k, KR + 4 * k + 3, vT + 6, srd(S_WS), sT0, 'offset:2048 ' if k else '', LD)) for k in range(2)]
        p.wait(krt)
        for r in range(4): p('v_add_f32 v%d, v%d, v%d' % (KR + r, KR + r, KR + 4 + r))
        for r in range(4): p('v_mov_b32 v%d, v%d' % (KR + 4 + r, KR + r))
        p('s_nop 1')
        for r in range(4): p('v_permlane32_swap_b32 v%d, v%d' % (KR + r, KR + 4 + r))
        p('s_nop 1')
        for r in range(4): p('v_add_f32 v%d, v%d, v%d' % (KR + r, KR + r, KR + 4 + r))
        for r in range(4): p('v_mov_b32 v%d, v%d' % (KR + 4 + r, KR + r))
        p('s_nop 1')
        for r in range(4): p('v_permlane16_swap_b32 v%d, v%d' % (KR + r, KR + 4 + r))
        p('s_nop 1')
        for r in range(4): p('v_add_f32 v%d, v%d, v%d' % (KR + r, KR + r, KR + 4 + r))
        p('s_nop 1')
        for r in range(4): p('v_add_f32_dpp v%d, v%d, v%d row_ror:8 row_mask:0xf bank_mask:0xf' % (KR + 4 + r, KR + r, KR + r))
        p('v_cvt_pk_bf16_f32 v%d, v%d, v%d' % (KR, KR + 4, KR + 5)); p('v_cvt_pk_bf16_f32 v%d, v%d, v%d' % (KR + 1, KR + 6, KR + 7))
        p('v_and_b32 v%d, 3, v%d' % (vT + 7, vL)); p('v_lshlrev_b32 v%d, 4, v%d' % (vT + 6, vT + 7))
        p('v_bfe_u32 v%d, v%d, 2, 1' % (vT + 7, vL)); p('v_lshl_add_u32 v%d, v%d, 3, v%d' % (vT + 6, vT + 7, vT + 6))
        p('s_lshl_b32 s%d, s%d, 10' % (sT0, sF)); p('s_lshl_b32 s%d, s%d, 6' % (sT1, sI)); p('s_add_u32 s%d, s%d, s%d' % (sT0, sT0, sT1)); p('s_add_u32 s%d, s%d, 0x%x' % (sT0, sT0, KVZ_OFF))
        p('s_mov_b64 s[%d:%d], exec' % (sEX, sEX + 1)); p('s_mov_b64 exec, 0xff')
        kzs = p.vm('buffer_store_dwordx2 v[%d:%d], v%d, %s, s%d offen %s' % (KR, KR + 1, vT + 6, srd(S_WS), sT0, ST))
        p('s_mov_b64 exec, s[%d:%d]' % (sEX, sEX + 1))
        p.wait(kzs); p('s_barrier')
        p('s_lshl_b32 s%d, s%d, 4' % (sT1, sU)); p('s_add_u32 s%d, s%d, s%d' % (sT1, sT1, sI))
        uniform_flag(p, FLG_KVZ, sT1)
    def to_reg(pos):
        kind, where = W['loc'][pos]
        oc = free_oct.pop(0)
        if kind == 'stage': _, _, regs, off = info['slot_info'](where)
        else: regs, off = (vR0, vR1), where
        W['loc'][pos] = ('reg', oc)
        for f in info['tr4_items'](pos, regs, off, oc, W['ttok'].setdefault(pos, [])): f()
    tk = poll_issue(p, vPH, sG2[0], vPD); poll_check(p, tk, vPH, sG2[0], vPD)
    p.stamp(9)
    NR = 16; ht = {}
    def hb(j, mt): return XF + 8 * (j % NR) + 4 * mt
    def ld_h(j):
        ht[j] = []
        for mt, so in enumerate((sH0, sH1)):
            r = hb(j, mt)
            ht[j].append(p.vm('buffer_load_dwordx4 v[%d:%d], v%d, %s, s%d offen %s%s' % (r, r + 3, vST, srd(S_WS), so, ('offset:%d ' % (1024 * (j & 3))) if j & 3 else '', LD)))
        if j & 3 == 3 and j < 27:
            p('s_movk_i32 s%d, 4096' % sT2); p('s_cmp_eq_u32 s%d, %d' % (sW2WRAP, j + 1)); p('s_cselect_b32 s%d, 0x%x, s%d' % (sT2, (4096 - 28 * 1024) & 0xffffffff, sT2))
            p('s_add_u32 s%d, s%d, s%d' % (sH0, sH0, sT2)); p('s_add_u32 s%d, s%d, s%d' % (sH1, sH1, sT2))
    for j in range(NR): ld_h(j)
    for pos in range(28):
        if W['loc'][pos][0] != 'reg': to_reg(pos)
    ACC = ACC2
    PQR, KZR = XF, XF + 96
    ND = vT + 0
    pqt, kzt = {}, {}
    XR = vT + 24; ga = vT + 22; zt = None
    for j in range(28):
        p.wait(ht[j] + W['ttok'][j])
        oc = W['loc'][j][1]
        for nt in range(2):
            for mt in range(2):
                d = ACC + 16 * (2 * nt + mt); r = hb(j, mt)
                p('v_mfma_f32_32x32x16_bf16 v[%d:%d], %s[%d:%d], v[%d:%d], %s' % (d, d + 15, oc[0], oc[1] + 4 * nt, oc[1] + 4 * nt + 3, r, r + 3, '0' if j == 0 else 'v[%d:%d]' % (d, d + 15)))
        if j + NR < 28: ld_h(j + NR)
        if 16 <= j < 24:
            hh = j - 16
            for mt, so in enumerate((sPQ0, sPQ1)):
                r = PQR + 8 * hh + 4 * mt
                pqt[(hh, mt)] = p.vm('buffer_load_dwordx4 v[%d:%d], v%d, %s, s%d offen %s%s' % (r, r + 3, vST, srd(S_WS), so, ('offset:%d ' % (1024 * (hh & 3))) if hh & 3 else '', LD))
            if hh == 3: p('s_add_u32 s%d, s%d, 4096' % (sPQ0, sPQ0)); p('s_add_u32 s%d, s%d, 4096' % (sPQ1, sPQ1))
        if j == 12: zt = poll_issue(p, vPZ, sG2[1], vPD)
        if j == 16:
            poll_check(p, zt, vPZ, sG2[1], vPD)
            for hh in range(8):
                kzt[hh] = p.vm('buffer_load_dwordx4 v[%d:%d], v%d, %s, s%d offen %s%s' % (KZR + 4 * hh, KZR + 4 * hh + 3, vST, srd(S_WS), sKZ, ('offset:%d ' % (1024 * (hh & 3))) if hh & 3 else '', LD))
                if hh == 3: p('s_add_u32 s%d, s%d, 4096' % (sKZ, sKZ))
        if j == 20:
            p('v_lshrrev_b32 v%d, 3, v0' % ga); p('v_lshlrev_b32 v%d, 10, v%d' % (ga, ga))
            p('v_and_b32 v%d, 7, v0' % (vT + 23)); p('v_lshl_add_u32 v%d, v%d, 4, v%d' % (ga, vT + 23, ga))
            p('s_lshl_b32 s%d, s%d, 16' % (sHST1, sRT)); p('s_lshl_b32 s%d, s%d, 7' % (sT1, sCT)); p('s_add_u32 s%d, s%d, s%d' % (sHST1, sHST1, sT1))
            p('s_add_u32 s%d, s%d, 32768' % (sHST2, sHST1))
            xt = [p.vm('buffer_load_dwordx4 v[%d:%d], v%d, %s, s%d offen' % (XR + 4 * k, XR + 4 * k + 3, ga, srd(S_X), (sHST1, sHST2)[k])) for k in range(2)]
    p.stamp(10)
    ND = XF + 64
    wfr = {}
    FBS = [0, 8, 16]
    def wo_tr(hh):
        p.wait(info['wo_tok'][hh]); t = []
        fb = FBS[hh % 3]; regs, off = info['wo_loc'][hh]
        for nt, reg in enumerate(regs):
            for rd in range(2):
                b = fb + 4 * nt + 2 * rd
                t.append(p.lg('ds_read_b64_tr_b16 a[%d:%d], v%d offset:%d' % (b, b + 1, reg, off + 1024 * rd)))
        wfr[hh] = t
    def nd_mfma(u):
        hh, mt = u >> 1, u & 1; d = ND + 16 * (u & 1)
        p.wait([kzt[hh], pqt[(hh, mt)]])
        p('v_mfma_f32_32x32x16_bf16 v[%d:%d], v[%d:%d], v[%d:%d], 0' % (d, d + 15, KZR + 4 * hh, KZR + 4 * hh + 3, PQR + 8 * hh + 4 * mt, PQR + 8 * hh + 4 * mt + 3))
    def o_valu(u):
        hh = u >> 1; d = ND + 16 * (u & 1)
        num, den = (d, d + 8) if hh % 2 == 0 else (d + 8, d)
        t = vT + 8 * (u & 1)
        p('v_add_f32 v%d, s%d, v%d' % (t + 4, sEPS, den)); p('v_rcp_f32 v%d, v%d' % (t + 4, t + 4)); p('s_nop 0')
        for r in range(8): p('v_mul_f32 v%d, v%d, v%d' % (num + r, num + r, t + 4))
        for q in range(4): p('v_cvt_pk_bf16_f32 v%d, v%d, v%d' % (t + q, num + 2 * q, num + 2 * q + 1))
    def wo_mfma(u):
        hh, mt = u >> 1, u & 1
        p.wait(wfr[hh])
        fb = FBS[hh % 3]; t = vT + 8 * (u & 1)
        for nt in range(2):
            d = ACC + 16 * (2 * nt + mt)
            p('v_mfma_f32_32x32x16_bf16 v[%d:%d], a[%d:%d], v[%d:%d], v[%d:%d]' % (d, d + 15, fb + 4 * nt, fb + 4 * nt + 3, t, t + 3, d, d + 15))
    p('s_nop 3')
    wo_tr(0); wo_tr(1)
    nd_mfma(0); nd_mfma(1)
    for u in range(16):
        o_valu(u)
        if u + 2 < 16: nd_mfma(u + 2)
        if u % 2 == 0 and (u >> 1) + 2 < 8: wo_tr((u >> 1) + 2)
        wo_mfma(u)
    p.stamp(11)
    p.wait_all(vm=False)
    wa = vT
    p('v_and_b32 v%d, 31, v%d' % (wa, vL)); p('v_mul_u32_u24 v%d, 272, v%d' % (wa, wa))
    p('v_lshrrev_b32 v%d, 5, v%d' % (wa + 1, vL)); p('v_lshl_add_u32 v%d, v%d, 4, v%d' % (wa, wa + 1, wa))
    p('v_add_u32 v%d, s%d, v%d' % (wa, sWB, wa))
    ra = vT + 2
    p('v_lshrrev_b32 v%d, 3, v0' % ra); p('v_mul_u32_u24 v%d, 272, v%d' % (ra, ra))
    p('v_and_b32 v%d, 7, v0' % (vT + 3)); p('v_lshl_add_u32 v%d, v%d, 5, v%d' % (ra, vT + 3, ra))
    p('v_add_u32 v%d, 0x10000, v%d' % (ra + 1, ra))
    p('s_nop 3')
    for mt in range(2):
        for nt in range(2):
            for q in range(4):
                r = ACC + 16 * (2 * nt + mt) + 4 * q
                p.lg('ds_write_b128 v%d, v[%d:%d] offset:%d' % (wa, r, r + 3, mt * 8704 + nt * 128 + q * 32))
    p.wait_all(vm=False); p('s_barrier')
    R = XF; rt = {}
    for j in range(2):
        for wv in range(4):
            for hh in range(2):
                r = R + 32 * j + 8 * wv + 4 * hh
                rt[(j, wv, hh)] = p.lg('ds_read_b128 v[%d:%d], v%d offset:%d' % (r, r + 3, ra if wv < 2 else ra + 1, (wv & 1) * 32768 + j * 8704 + hh * 16))
    for j in range(2):
        p.wait([rt[(j, wv, hh)] for wv in range(4) for hh in range(2)])
        b = R + 32 * j
        for r in range(8): p('v_add_f32 v%d, v%d, v%d' % (b + r, b + r, b + 8 + r))
        for r in range(8): p('v_add_f32 v%d, v%d, v%d' % (b + 16 + r, b + 16 + r, b + 24 + r))
        for r in range(8): p('v_add_f32 v%d, v%d, v%d' % (b + r, b + r, b + 16 + r))
        p.wait(xt[j])
        t = vT + 16
        for q in range(4):
            x = XR + 4 * j + q
            p('v_lshlrev_b32 v%d, 16, v%d' % (t, x)); p('v_and_b32 v%d, 0xffff0000, v%d' % (t + 1, x))
            p('v_add_f32 v%d, v%d, v%d' % (b + 2 * q, b + 2 * q, t)); p('v_add_f32 v%d, v%d, v%d' % (b + 2 * q + 1, b + 2 * q + 1, t + 1))
            p('v_cvt_pk_bf16_f32 v%d, v%d, v%d' % (x, b + 2 * q, b + 2 * q + 1))
        p.vm('buffer_store_dwordx4 v[%d:%d], v%d, %s, s%d offen' % (XR + 4 * j, XR + 4 * j + 3, ga, srd(S_OUT), (sHST1, sHST2)[j]))
    la = p.newlabel('L_ns')
    p('s_or_b32 s%d, s2, s%d' % (sT1, sW)); p('s_cmp_lg_u32 s%d, 0' % sT1); p('s_cbranch_scc1 %s' % la)
    p('s_barrier') if False else None
    p('v_mov_b32 v%d, s%d' % (vT + 4, sNONCE)); p('v_mov_b32 v%d, 0' % (vT + 5)); p('s_mov_b32 s%d, 0x%x' % (sT1, NONCE_OFF))
    p('s_mov_b64 exec, 1')
    p('buffer_store_dword v%d, v%d, %s, s%d offen %s' % (vT + 4, vT + 5, srd(S_WS), sT1, ST))
    p.label(la)
    p.stamp(12)
    if p.stamps_on:
        p('s_mov_b64 exec, -1')
        p('s_waitcnt vmcnt(0)'); p.stamp_rt(13)
        p.stamp_dump(srd(S_WS), 0x8000000, 14)

def build(stamps=None):
    p = Prog(); p.stamps_on = stamps is not None
    if stamps: p.stamp_map = {i: k for k, i in enumerate(stamps)}
    p('s_cmp_ge_u32 s2, 256'); p('s_cbranch_scc1 L_end')
    prologue(p)
    pro = list(p.ins)
    st = (p.vm_issued, p.vm_done, p.lg_issued, p.lg_done)
    paths = {}
    for role in ('AB', 'CD'):
        p.vm_issued, p.vm_done, p.lg_issued, p.lg_done = st
        n0 = len(p.ins)
        info = build_role(p, role)
        phase2(p, role, info)
        paths[role] = p.ins[n0:]
    probs = []
    head = pro + ['s_cmp_ge_u32 s%d, 2' % sMEM, 's_cbranch_scc1 L_cd']
    out = list(head)
    for role in ('AB', 'CD'):
        fixed, n = fix_hazards(head + paths[role])
        assert fixed[:len(head)] == head, 'hazard in prologue'
        body = fixed[len(head):]
        print(role, 'auto-inserted wait states:', n, 'instrs', len(body))
        probs += check_hazards(head + body, role) + check_waits(head + body, 'w' + role)
        if role == 'CD': out.append('L_cd:')
        out += body
        if role == 'AB': out.append('s_branch L_end')
        paths[role] = body
    out.append('L_end:')
    p.ins = out
    return p, probs, paths

if __name__ == '__main__':
    sys.path.insert(0, 'dev')
    from asmlib import make_file
    stamps = [int(x) for x in sys.argv[2].split(',')] if len(sys.argv) > 2 else None
    p, probs, paths = build(stamps)
    for x in probs[:30]: print(x)
    for l in p.ins:
        if l.startswith('; W2 state'): print(l[:700])
    print('problems:', len(probs), 'regs', maxregs(p.ins), 'n', len(p.ins))
    ks = [dict(name=NAME, body=p.text(), grid=(256, 1, 1), block=(256, 1, 1), lds=163840, vgpr=512, accum=256, sgpr=102)]
    txt = make_file(ks, single=True)
    if 'CODE_STRIDE' in txt:
        import subprocess, re as _re
        tmp = txt.replace('CODE_STRIDE', '0x780')
        open('_cs.s', 'w').write(tmp)
        subprocess.run(['clang', '-x', 'assembler', '-target', 'amdgcn-amd-amdhsa', '-mcpu=gfx950', '-c', '_cs.s', '-o', '_cs.o'], check=True)
        sym = subprocess.run(['llvm-readelf', '-s', '_cs.o'], capture_output=True, text=True).stdout
        addr = {}
        for l in sym.splitlines():
            f = l.split()
            if len(f) >= 8 and f[7] in ('L_end', NAME): addr[f[7]] = int(f[1], 16)
        size = addr['L_end'] - addr[NAME]
        stride = (size // 33) & ~127
        print('code size', size, 'stride', stride)
        assert 31 * stride + stride + 4 <= size
        txt = txt.replace('CODE_STRIDE', '0x%x' % stride)
    open(sys.argv[1], 'w').write(txt)
```
